```python
import torch

def _softmax(x, axis=-1):
    return torch.softmax(x, dim=axis)
def _gelu(x):
    return torch.nn.functional.gelu(x, approximate="tanh")
def _silu(x):
    return torch.nn.functional.silu(x)
def _sigmoid(x):
    return torch.sigmoid(x)
def _layernorm(x, axis=-1, eps=1e-5):
    m = x.mean(dim=axis, keepdim=True)
    v = x.var(dim=axis, keepdim=True, unbiased=False)
    return (x - m) / torch.sqrt(v + eps)
def _scatter_add(tgt, idx, src, axis=0):
    return tgt.clone().index_add_(axis, idx, src)
def _segment_sum(src, seg, n):
    out = torch.zeros((n,) + src.shape[1:], dtype=src.dtype)
    return out.index_add_(0, seg, src)
def _pad(x, pw):
    flat = tuple(v for pair in reversed(pw) for v in pair)
    return torch.nn.functional.pad(x, flat)

kernel_name = 'concat_heads__ssm_conv_h3__mha_block__prompt'

def setup_inputs():

    _w = (lambda a: (lambda t: t.to(torch.bfloat16) if t.is_floating_point() else t)(torch.as_tensor(a)))
    def _A_setup():
        B, S, D = 1, 2048, 1024
        ks = 4
        return {
            "q": _w((lambda *s: torch.randn(*s, dtype=torch.bfloat16) * 0.05)(B, S, D)),
            "k": _w((lambda *s: torch.randn(*s, dtype=torch.bfloat16) * 0.8)(B, S, D)),
            "v": _w((lambda *s: torch.randn(*s, dtype=torch.bfloat16) * 0.8)(B, S, D)),
            "shift_k": _w((lambda *s: torch.randn(*s, dtype=torch.bfloat16) * 0.8)(D, ks) * 0.5),
            "ssm_k": _w((lambda *s: torch.randn(*s, dtype=torch.bfloat16) * 0.8)(D, S) * (1.0 / S ** 0.5)),
            "ssm_D": _w((lambda *s: torch.randn(*s, dtype=torch.bfloat16) * 0.8)(D)),
        }
    _A_in = _A_setup()

    def _B_setup():
        B, S, D, H = 1, 2048, 1024, 32
        return {
            "x": _w((lambda *s: torch.randn(*s, dtype=torch.bfloat16) * 0.2)(B, S, D)),
            "wqkv": _w((lambda *s: torch.randn(*s, dtype=torch.bfloat16) * 0.2)(D, 3 * D)),
            "wo": _w((lambda *s: torch.randn(*s, dtype=torch.bfloat16) * 0.05)(D, D)),
        }
    _B_in = _B_setup()

    return {
        "A_q": _A_in["q"],
        "A_k": _A_in["k"],
        "A_v": _A_in["v"],
        "A_shift_k": _A_in["shift_k"],
        "A_ssm_k": _A_in["ssm_k"],
        "A_ssm_D": _A_in["ssm_D"],
        "B_x": _B_in["x"],
        "B_wqkv": _B_in["wqkv"],
        "B_wo": _B_in["wo"],
    }

def reference(A_q, A_k, A_v, A_shift_k, A_ssm_k, A_ssm_D, B_x, B_wqkv, B_wo):
    def _A_ref(q, k, v, shift_k, ssm_k, ssm_D):
        B, S, D = q.shape
        ks = shift_k.shape[-1]
        k_pad = _pad(k, ((0, 0), (ks - 1, 0), (0, 0)))
        k_shift = torch.zeros_like(k)
        for t in range(ks):
            k_shift = k_shift + k_pad[:, t:t + S, :] * shift_k[:, ks - 1 - t][None, None, :]
        kv = k_shift * v
        L = 2 * S
        kv_pad = _pad(kv, ((0, 0), (0, S), (0, 0)))
        kf_pad = _pad(ssm_k, ((0, 0), (0, S)))
        kv_f = (lambda x, axes=(-2,-1): torch.fft.rfft2(x.float(), dim=axes))(kv_pad[:, None, :, :], axes=(1, 2))
        kf_f = (lambda x, axes=(-2,-1): torch.fft.rfft2(x.float(), dim=axes))(kf_pad[:, None, :], axes=(1, 2))
        kf_f = (lambda x, *d: x.permute(*d))(kf_f, 1, 2, 0)
        y_f = kv_f * kf_f[None, :, :, :]
        y = (lambda x, s, axes=(-2,-1): torch.fft.irfft2(x, s=s, dim=axes).to(torch.bfloat16))(y_f, (1, L), axes=(1, 2))[:, 0, :S, :]
        y = y + kv * ssm_D[None, None, :]
        return q * y

    def _B_ref(x, wqkv, wo):
        B, S, D = x.shape
        H = 32
        Dh = D // H
        qkv = (lambda x, *d: x.permute(*d))((x @ wqkv).reshape(B, S, 3, H, Dh), 2, 0, 3, 1, 4)
        q, k, v = qkv[0], qkv[1], qkv[2]
        scores = torch.einsum("bhqd,bhkd->bhqk", q, k) * (Dh ** -0.5)
        p = _softmax(scores, axis=-1)
        o = torch.einsum("bhqk,bhkd->bhqd", p, v)
        return (lambda x, *d: x.permute(*d))(o, 0, 2, 1, 3).reshape(B, S, D) @ wo

    a = _A_ref(A_q, A_k, A_v, A_shift_k, A_ssm_k, A_ssm_D)
    b = _B_ref(B_x, B_wqkv, B_wo)
    return torch.concatenate([a, b], axis=-1)
```

```python
import re

REG_RE = re.compile(r'^(-|abs\()?([vsa])(\d+)\)?$')
RANGE_RE = re.compile(r'^(-)?([vsa])\[(\d+):(\d+)\]$')


def regs_of(tok):
    tok = tok.strip()
    m = REG_RE.match(tok)
    if m:
        return [(m.group(2), int(m.group(3)))]
    m = RANGE_RE.match(tok)
    if m:
        return [(m.group(2), i) for i in range(int(m.group(3)), int(m.group(4)) + 1)]
    if tok == 'vcc':
        return [('vcc', 0)]
    if tok in ('vcc_lo', 'vcc_hi'):
        return [('vcc', 0)]
    if tok == 'exec':
        return [('exec', 0)]
    if tok == 'm0':
        return [('m0', 0)]
    if tok == 'scc':
        return [('scc', 0)]
    return []


TRANS = ('v_exp_f32', 'v_log_f32', 'v_rcp_f32', 'v_rsq_f32', 'v_sqrt_f32', 'v_sin_f32', 'v_cos_f32',
         'v_exp_f16', 'v_rcp_iflag_f32')


class Ins:
    __slots__ = ('text', 'op', 'ops', 'mods', 'w', 'r', 'kind', 'passes', 'label', 'target', 'ws',
                 'srcC', 'srcAB', 'lds_dma', 'line')

    def __init__(self, text):
        self.text = text
        t = text.split(';')[0].strip()
        self.label = None
        self.target = None
        self.w = []
        self.r = []
        self.kind = 'other'
        self.passes = 0
        self.ws = 1
        self.srcC = []
        self.srcAB = []
        self.lds_dma = False
        self.op = ''
        if not t or t.startswith('.'):
            self.kind = 'none'
            self.ws = 0
            return
        if t.endswith(':'):
            self.label = t[:-1]
            self.kind = 'none'
            self.ws = 0
            return
        parts = t.split(None, 1)
        op = parts[0]
        self.op = op
        rest = parts[1] if len(parts) > 1 else ''
        toks = [x.strip() for x in rest.split(',')] if rest else []
        mods = []
        if toks:
            last = toks[-1].split()
            if last:
                toks[-1] = last[0]
                mods = last[1:]
        self.ops = toks
        self.mods = mods
        R = regs_of
        if op.startswith('v_mfma') or op.startswith('v_smfmac'):
            self.kind = 'mfma'
            if '32x32x16' in op or '32x32x8' in op or '32x32x32' in op:
                self.passes = 8
            elif '16x16x32' in op or '16x16x16' in op or '16x16x64' in op:
                self.passes = 4
            elif '4x4x4' in op:
                self.passes = 2
            else:
                raise ValueError('unknown mfma ' + op)
            self.w = R(toks[0])
            self.srcAB = R(toks[1]) + R(toks[2])
            if op.startswith('v_smfmac'):
                self.srcC = R(toks[0])
                self.srcAB += R(toks[3])
            else:
                self.srcC = R(toks[3])
            self.r = self.srcAB + self.srcC
        elif op.startswith('v_'):
            self.kind = 'valu'
            base = op.replace('_e32', '').replace('_e64', '').replace('_sdwa', '').replace('_dpp', '')
            if base in TRANS:
                self.kind = 'trans'
            if op.startswith('v_cmpx'):
                self.w = R(toks[0]) + [('exec', 0)]
                self.r = sum([R(x) for x in toks[1:]], [])
            elif op.startswith('v_cmp'):
                self.w = R(toks[0])
                self.r = sum([R(x) for x in toks[1:]], [])
            elif (op.startswith('v_permlane') and 'swap' in op) or op.startswith('v_swap'):
                self.w = R(toks[0]) + R(toks[1])
                self.r = R(toks[0]) + R(toks[1])
            elif '_co_' in op or op.startswith('v_mad_u64') or op.startswith('v_div_scale'):
                self.w = R(toks[0]) + R(toks[1])
                self.r = sum([R(x) for x in toks[2:]], [])
            elif op == 'v_nop':
                pass
            else:
                self.w = R(toks[0])
                self.r = sum([R(x) for x in toks[1:]], [])
                if base.startswith('v_fmac') or base.startswith('v_dot2c') or base.startswith('v_pk_fmac') \
                        or 'UNUSED_PRESERVE' in t or base.startswith('v_writelane') or '_dpp' in op \
                        or 'row_' in t or 'quad_perm' in t:
                    self.r += R(toks[0])
                if base.startswith('v_cndmask') and len(toks) == 3:
                    self.r += [('vcc', 0)]
        elif op.startswith('ds_'):
            self.kind = 'ds'
            if op.startswith('ds_read') or op.startswith('ds_bpermute') or op.startswith('ds_permute') \
                    or op.startswith('ds_swizzle') or '_rtn' in op:
                self.w = R(toks[0])
                self.r = sum([R(x) for x in toks[1:]], [])
            else:
                self.r = sum([R(x) for x in toks], [])
        elif op.startswith('buffer_') or op.startswith('global_'):
            self.kind = 'vmem'
            if op in ('buffer_inv', 'buffer_wbl2'):
                pass
            elif 'lds' in mods or 'load_lds' in op:
                self.lds_dma = True
                self.r = sum([R(x) for x in toks], []) + [('m0', 0)]
            elif 'load' in op:
                self.w = R(toks[0])
                self.r = sum([R(x) for x in toks[1:]], [])
            elif 'atomic' in op:
                self.r = sum([R(x) for x in toks], [])
                if 'sc0' in mods:
                    if op.startswith('buffer_'):
                        self.w = R(toks[0])
                    else:
                        self.w = R(toks[0])
                        self.r = sum([R(x) for x in toks[1:]], [])
            else:
                self.r = sum([R(x) for x in toks], [])
        elif op.startswith('s_'):
            self.kind = 'salu'
            if op == 's_nop':
                self.ws = int(toks[0], 0) + 1
            elif op in ('s_waitcnt', 's_barrier', 's_endpgm', 's_setprio', 's_sleep'):
                pass
            elif op.startswith('s_cbranch') or op == 's_branch':
                self.target = toks[0]
                if 'vcc' in op:
                    self.r = [('vcc', 0)]
            elif op.startswith('s_load') or op.startswith('s_memtime') or op.startswith('s_memrealtime') \
                    or op.startswith('s_buffer_load'):
                self.kind = 'smem'
                self.w = R(toks[0])
                self.r = sum([R(x) for x in toks[1:]], [])
            elif op.startswith('s_cmp') or op.startswith('s_bitcmp'):
                self.r = sum([R(x) for x in toks], [])
            else:
                self.w = R(toks[0])
                self.r = sum([R(x) for x in toks[1:]], [])
                if 'saveexec' in op:
                    self.w += [('exec', 0)]
        else:
            raise ValueError('unknown instruction: ' + text)


def _is_valu(i):
    return i.kind in ('valu', 'trans')


def check_seq(seq, errs, where=''):
    seq = [i for i in seq if i.kind != 'none']
    n = len(seq)
    for b in range(n):
        c = seq[b]
        dist = 0
        for a in range(b - 1, max(-1, b - 24), -1):
            p = seq[a]
            need = 0
            why = ''
            pw = set(p.w)
            cr = set(c.r)
            cw = set(c.w)
            vw = {x for x in pw if x[0] in 'va' and x[0] != 'vcc'}
            sw = {x for x in pw if x[0] in ('s', 'vcc')}
            if _is_valu(p):
                if c.kind == 'mfma' and vw & cr:
                    need, why = 2, 'VALU->MFMA src'
                if p.kind == 'trans' and c.kind in ('valu', 'mfma') and vw & (cr | cw) and c.kind != 'trans':
                    need, why = max(need, 1), why or 'trans->valu'
                if sw and c.kind == 'vmem' and sw & cr:
                    need, why = 5, 'VALU sgpr->VMEM'
                if sw and _is_valu(c) and sw & cr:
                    if c.op.startswith('v_readlane') or c.op.startswith('v_writelane'):
                        need, why = 4, 'VALU sgpr->lane sel'
                    else:
                        need, why = max(need, 2), 'VALU sgpr->VALU const'
                if (c.op.startswith('v_readfirstlane') or c.op.startswith('v_readlane')) and vw & cr:
                    need, why = max(need, 1), 'VALU->readlane'
                if c.op.startswith('v_permlane') and vw & cr:
                    need, why = max(need, 2), 'VALU->permlane'
                if _is_valu(c) and ('_dpp' in c.op or 'row_' in c.text or 'quad_perm' in c.text) and vw & cr:
                    need, why = max(need, 2), 'VALU->DPP'
                if ('exec', 0) in pw:
                    if c.kind == 'mfma':
                        need, why = max(need, 4), 'VALU exec->MFMA'
                    if c.op.startswith('v_readfirstlane') or c.op.startswith('v_readlane') or c.op.startswith('v_permlane'):
                        need, why = max(need, 4), 'VALU exec->lane'
                if ('sdwa' in p.op or 'op_sel' in p.text) and _is_valu(c) and vw & (cr | cw):
                    need, why = max(need, 1), why or 'sdwa->valu'
                if sw and c.kind == 'salu' and sw & cr:
                    pass
            if p.kind == 'mfma':
                P = p.passes
                tab_valu = {2: 5, 4: 8, 8: 12, 16: 20}[P]
                tab_ovl = {2: 4, 4: 6, 8: 10, 16: 18}[P]
                tab_war = {2: 1, 4: 3, 8: 7, 16: 15}[P]
                if c.kind == 'mfma':
                    if pw & set(c.srcAB):
                        need, why = tab_valu, 'MFMA D->MFMA AB'
                    if pw & set(c.srcC):
                        if list(p.w) == list(c.srcC) and p.passes == c.passes:
                            need2 = 2 if P == 2 else 0
                        else:
                            need2 = tab_ovl
                        if need2 > need:
                            need, why = need2, 'MFMA D->MFMA C overlap'
                    elif pw & cw:
                        if tab_ovl > need and not (list(p.w) == list(c.w) and p.passes == c.passes):
                            need, why = tab_ovl, 'MFMA WAW'
                elif _is_valu(c):
                    if pw & (cr | cw):
                        need, why = tab_valu, 'MFMA D->VALU'
                    if set(p.srcC) & cw:
                        if tab_war > need:
                            need, why = tab_war, 'MFMA C WAR VALU'
                elif c.kind in ('vmem', 'ds'):
                    if pw & (cr | cw):
                        need, why = tab_valu, 'MFMA D->mem'
                    if set(p.srcC) & cw:
                        if tab_war > need:
                            need, why = tab_war, 'MFMA C WAR load'
            if p.kind == 'salu' and ('m0', 0) in pw and c.lds_dma:
                need, why = 1, 'm0->lds dma'
            if p.kind == 'salu' and ('exec', 0) in pw and c.kind == 'mfma':
                pass
            if p.kind == 'vmem' and ('x4' in p.op or 'x3' in p.op) and 'store' in p.op:
                data = set(regs_of(p.ops[0] if p.op.startswith('buffer') else p.ops[1]))
                if data & cw:
                    need, why = (2 if _is_valu(c) else 1), 'store data WAR'
            if need > dist:
                errs.append(f"HAZARD {where} need {need} have {dist} [{why}]: '{p.text.strip()}' -> '{c.text.strip()}'")
            dist += p.ws
            if dist >= 20:
                break


def check_waits(seq, errs, where='', init_vm=(), init_lgkm=()):
    vm = list(init_vm)
    lg = list(init_lgkm)
    smem_out = False
    for i in seq:
        if i.kind == 'none':
            continue
        if i.op == 's_waitcnt':
            t = i.text
            m = re.search(r'vmcnt\((\d+)\)', t)
            if m:
                k = int(m.group(1))
                while len(vm) > k:
                    vm.pop(0)
            m = re.search(r'lgkmcnt\((\d+)\)', t)
            if m:
                k = int(m.group(1))
                if k > 0 and any(x[1] for x in lg):
                    keep = [x for x in lg if x[1]]
                    ds = [x for x in lg if not x[1]]
                    while len(ds) > k:
                        ds.pop(0)
                    lg = keep + ds
                else:
                    while len(lg) > k:
                        lg.pop(0)
            continue
        touched = set(i.r) | set(i.w)
        for q in vm:
            if q & touched:
                errs.append(f"WAIT {where} vmcnt pending {sorted(q & touched)[:3]}: '{i.text.strip()}'")
                break
        for q, _ in lg:
            if q & touched:
                errs.append(f"WAIT {where} lgkmcnt pending {sorted(q & touched)[:3]}: '{i.text.strip()}'")
                break
        if i.kind == 'vmem' and i.op not in ('buffer_inv', 'buffer_wbl2'):
            vm.append(set(i.w))
            if len(vm) > 63:
                errs.append(f"WAIT {where} vmcnt overflow at '{i.text.strip()}'")
                vm.pop(0)
        elif i.kind == 'ds':
            lg.append((set(i.w), False))
            if len([x for x in lg if not x[1]]) > 15:
                lg.pop(0)
        elif i.kind == 'smem':
            lg.append((set(i.w), True))


class Asm:
    def __init__(self):
        self.ins = []
        self.uid = 0

    def __call__(self, text):
        for line in text.split('\n'):
            s = line.strip()
            if not s or s.startswith(';'):
                if s:
                    x = Ins('')
                    x.text = '    ' + s
                    self.ins.append(x)
                continue
            x = Ins(s)
            x.text = s if (x.label or s.startswith('.')) else '    ' + s
            self.ins.append(x)

    def label(self, base):
        self.uid += 1
        return f"L_{base}_{self.uid}"

    def text(self):
        return '\n'.join(i.text for i in self.ins) + '\n'

    def check(self, verbose=True):
        errs = []
        ins = self.ins
        seg = []
        segs = []
        for i in ins:
            seg.append(i)
            if i.op in ('s_branch', 's_endpgm'):
                segs.append(seg)
                seg = []
        segs.append(seg)
        for s in segs:
            check_seq(s, errs, 'lin')
        labels = {i.label: k for k, i in enumerate(ins) if i.label}
        for k, i in enumerate(ins):
            if i.target:
                t = labels[i.target]
                pre = [x for x in ins[max(0, k - 40):k + 1]]
                for j in range(len(pre) - 2, -1, -1):
                    if pre[j].op in ('s_branch', 's_endpgm'):
                        pre = pre[j + 1:]
                        break
                post = []
                for x in ins[t:t + 40]:
                    post.append(x)
                    if x.op in ('s_branch', 's_endpgm'):
                        break
                e2 = []
                check_seq(pre + post, e2, 'br:' + i.target)
                errs += e2
        errs = list(dict.fromkeys(errs))
        if verbose:
            for e in errs:
                print(e)
        return errs

    def trace(self, start_label, decisions, end_label=None, maxlen=2000000):
        ins = self.ins
        labels = {i.label: k for k, i in enumerate(ins) if i.label}
        pc = labels[start_label]
        cnt = {}
        out = []
        while pc < len(ins) and len(out) < maxlen:
            i = ins[pc]
            if end_label and i.label == end_label:
                break
            out.append(i)
            if i.op == 's_endpgm':
                break
            if i.op == 's_branch':
                pc = labels[i.target]
                continue
            if i.target:
                c = cnt.get(pc, 0)
                cnt[pc] = c + 1
                d = decisions.get(i.target, False)
                if callable(d):
                    d = d(c)
                if d:
                    pc = labels[i.target]
                    continue
            pc += 1
        return out

    def check_trace(self, start_label, decisions, name=''):
        tr = self.trace(start_label, decisions)
        errs = []
        check_seq(tr, errs, 'trace ' + name)
        check_waits(tr, errs, 'trace ' + name)
        errs = list(dict.fromkeys(errs))
        for e in errs[:40]:
            print(e)
        nb = sum(1 for i in tr if i.op == 's_barrier')
        print(f"trace {name}: {len(tr)} instrs, {nb} barriers, {len(errs)} problems")
        return errs


def v(a, n=1):
    return f"v{a}" if n == 1 else f"v[{a}:{a + n - 1}]"


def s(a, n=1):
    return f"s{a}" if n == 1 else f"s[{a}:{a + n - 1}]"


def kd(name, vgpr, sgpr=96, accum=None):
    vg = vgpr
    acc = accum if accum is not None else ((vgpr + 3) // 4) * 4
    return f""".p2align 6
.amdhsa_kernel {name}
  .amdhsa_next_free_vgpr {vg}
  .amdhsa_next_free_sgpr {sgpr}
  .amdhsa_accum_offset {acc}
  .amdhsa_group_segment_fixed_size 0
  .amdhsa_kernarg_size 96
  .amdhsa_user_sgpr_count 2
  .amdhsa_user_sgpr_kernarg_segment_ptr 1
  .amdhsa_system_sgpr_workgroup_id_x 1
.end_amdhsa_kernel
"""
```

```python
import gen
from gen import *

RING = 65536
HCS = 4160
CONV_U = 4 * HCS
CONV_SZ = CONV_U + 4608
K2_LDS = RING + 4 * CONV_SZ
L_THR = f32bits(2.0 ** 60)


def gen_k2(A):
    header(A, 'k2_kernel')
    A("s_cmp_ge_u32 s2, 256")
    A("s_cbranch_scc1 K2_END")
    A(f"s_load_dwordx2 s[8:9], s[0:1], {KA_WS}")
    A(f"s_load_dwordx4 s[4:7], s[0:1], {KA_SSMK}")
    A("v_lshrrev_b32 v1, 6, v0")
    A("v_and_b32 v0, 63, v0")
    A("v_readfirstlane_b32 s3, v1")
    stamp(A, 0)
    if gen.PROF:
        A("s_mov_b32 s69, s3")
    A("s_and_b32 s10, s2, 7")
    A("s_lshl_b32 s10, s10, 2")
    A("s_lshr_b32 s11, s2, 6")
    A("s_or_b32 s10, s10, s11")
    A("s_bfe_u32 s11, s2, 0x30003")
    A("v_lshlrev_b32 v1, 4, v0")
    A("s_lshl_b32 s12, s10, 18")
    A(f"s_add_u32 s12, s12, {WS_KV}")
    A("s_cmp_lt_u32 s3, 8")
    A("s_cbranch_scc1 K2_ATT")

    A("s_sub_u32 s3, s3, 8")
    A("s_lshl_b32 s13, s3, 12")
    A("s_add_u32 s14, s12, s13")
    A("s_waitcnt lgkmcnt(0)")
    srd(A, 20, 8, 9, WS_SIZE)

    def issue_kv(st):
        A(f"s_add_u32 m0, s13, {(st % 4) * 16384}")
        A("s_nop 0")
        for j in range(4):
            A(f"buffer_load_dwordx4 v1, s[20:23], s14 offen offset:{j*1024} lds")
        A("s_add_u32 s14, s14, 16384")

    issue_kv(0)
    issue_kv(1)
    A("s_lshl_b32 s15, s2, 2")
    A("s_add_u32 s15, s15, s3")
    A("s_lshl_b32 s16, s15, 12")
    A(f"s_mul_i32 s17, s3, {CONV_SZ}")
    A(f"s_add_u32 s17, s17, {RING}")
    srd(A, 24, 4, 5, 4 * MB)
    srd(A, 28, 6, 7, 2048)
    A("v_mov_b32 v2, 0")
    A(f"buffer_load_dwordx2 v[4:5], v2, s[24:27], s16 offen")
    A("s_lshl_b32 s18, s15, 1")
    A(f"buffer_load_ushort v6, v2, s[28:31], s18 offen")
    A(f"s_add_u32 s18, s16, {WS_UT}")
    A(f"s_add_u32 m0, s17, {CONV_U}")
    A("s_nop 0")
    for j in range(4):
        A(f"buffer_load_dwordx4 v1, s[20:23], s18 offen offset:{j*1024} lds")
    for c in range(1, 5):
        A(f"s_add_u32 s18, s16, {2*c}")
        A(f"s_add_u32 m0, s17, {(c-1)*HCS+32}")
        A("s_nop 0")
        for j in range(4):
            A(f"buffer_load_dwordx4 v1, s[24:27], s18 offen offset:{j*1024} lds")
    NC = 22
    A("v_lshrrev_b32 v7, 1, v0")
    A(f"v_mul_u32_u24 v7, {HCS}, v7")
    A("v_and_b32 v8, 1, v0")
    A("v_lshl_add_u32 v7, v8, 4, v7")
    A("v_subrev_u32 v8, 8, v0")
    A("v_min_u32 v8, 31, v8")
    A(f"v_lshlrev_b32 v8, 4, v8")
    A(f"v_add_u32 v8, {CONV_U+4096}, v8")
    A("v_cmp_gt_u32 vcc, 8, v0")
    A("v_mov_b32 v12, 0")
    A("v_mov_b32 v13, 0")
    A("v_cndmask_b32 v7, v8, v7, vcc")
    A("v_add_u32 v7, s17, v7")
    A("v_mov_b32 v14, 0")
    A("v_mov_b32 v15, 0")
    A("ds_write_b128 v7, v[12:15]")
    A("v_and_b32 v8, 3, v0")
    A(f"v_mul_u32_u24 v8, {HCS-2}, v8")
    A("v_add_u32 v8, 30, v8")
    A("v_add_u32 v8, s17, v8")
    A("v_and_b32 v9, 3, v0")
    A(f"v_mul_u32_u24 v9, {HCS}, v9")
    A("v_lshrrev_b32 v10, 4, v0")
    A("v_lshl_add_u32 v9, v10, 4, v9")
    A("v_bfe_u32 v11, v0, 2, 2")
    A("v_lshl_add_u32 v9, v11, 3, v9")
    A("v_add_u32 v9, s17, v9")
    A("v_and_b32 v11, 15, v0")
    A("v_lshlrev_b32 v12, 5, v11")
    A("v_lshlrev_b32 v13, 4, v10")
    A("v_sub_u32 v13, v13, v12")
    A(f"v_add_u32 v13, {CONV_U+480}, v13")
    A("v_add_u32 v10, s17, v13")
    A("v_lshrrev_b32 v13, 4, v0")
    A("v_lshl_add_u32 v12, v13, 3, v12")
    A(f"v_sub_u32 v11, {CONV_U+4088-3584}, v12")
    A("v_add_u32 v11, s17, v11")
    A(f"s_add_u32 s19, s16, {WS_ZT}")
    FR, UR, YR = 16, 48, 80

    A(f"s_waitcnt vmcnt({4+NC})")
    A("s_barrier")
    issue_kv(2)
    pairs = [(a, b) for a in range(8) for b in range(8) if a + b <= 7]
    pairs.sort(key=lambda p: (p[0], p[1]))
    for rho in range(8):
        for half in range(2):
            st = 2 * rho + 1 + half
            if st <= 15:
                if st == 1:
                    n = 24
                elif st + 1 <= 15:
                    n = 4
                else:
                    n = 0
                A(f"s_waitcnt vmcnt({n})")
                A("s_barrier")
                if st + 2 <= 15:
                    issue_kv(st + 2)
            if half == 0:
                if rho == 0:
                    A("s_waitcnt vmcnt(8)")
                    A("ds_write_b64 v8, v[4:5]")
                    A("v_lshlrev_b32 v6, 16, v6")
                for a in range(8):
                    A(f"ds_read_b128 {v(UR+4*a,4)}, v10 offset:{512*(7-a)+64*rho}")
                    A(f"ds_read_b64 {v(FR+4*a,2)}, v9 offset:{512*a+64*rho}")
                    A(f"ds_read_b64 {v(FR+4*a+2,2)}, v9 offset:{512*a+64*rho+8}")
                A("s_waitcnt lgkmcnt(0)")
            for (a, b) in pairs[18 * half:18 * half + 18]:
                G = a + b
                c = '0' if (rho == 0 and a == 0) else YR + 4 * G
                A(mfma16(YR + 4 * G, FR + 4 * a, UR + 4 * b, c))
            if half == 1:
                A("s_nop 1")
    for G in range(8):
        A(f"ds_read_b64 {v(FR+2*G,2)}, v11 offset:{512*(7-G)}")
    A("s_waitcnt lgkmcnt(0)")
    for G in range(8):
        y = YR + 4 * G
        t = UR
        A(f"v_and_b32 v{t}, 0xffff0000, v{FR+2*G+1}")
        A(f"v_lshlrev_b32 v{t+1}, 16, v{FR+2*G+1}")
        A(f"v_and_b32 v{t+2}, 0xffff0000, v{FR+2*G}")
        A(f"v_lshlrev_b32 v{t+3}, 16, v{FR+2*G}")
        for r in range(4):
            A(f"v_fmac_f32 v{y+r}, v{t+r}, v6")
        A(f"v_cvt_pk_bf16_f32 v{y}, v{y}, v{y+1}")
        A(f"v_cvt_pk_bf16_f32 v{y+1}, v{y+2}, v{y+3}")
        A(f"buffer_store_dwordx2 {v(y,2)}, v12, s[20:23], s19 offen offset:{512*G}")
    stamp(A, 1)
    dump_stamps(A, 2, 8, 9, 1)
    A("s_endpgm")

    A("K2_ATT:")
    Q, NM, S, P, O, L, KF, VF, ON = 4, 16, [32, 48], 64, 72, 88, [92, 100], [108, 116], 124
    A("s_lshl_b32 s13, s11, 3")
    A("s_add_u32 s13, s13, s3")
    A("s_lshl_b32 s14, s10, 6")
    A("s_add_u32 s14, s14, s13")
    A("s_lshl_b32 s14, s14, 11")
    A("s_lshl_b32 s15, s13, 5")
    A("s_add_u32 s15, s15, s10")
    A("s_lshl_b32 s15, s15, 11")
    A(f"s_add_u32 s15, s15, {WS_OF}")
    A("s_waitcnt lgkmcnt(0)")
    srd(A, 20, 8, 9, WS_SIZE)
    A(f"buffer_load_dwordx4 {v(Q,4)}, v1, s[20:23], s14 offen")
    A(f"buffer_load_dwordx4 {v(Q+4,4)}, v1, s[20:23], s14 offen offset:1024")
    A("v_lshrrev_b32 v2, 2, v0")
    A("v_xor_b32 v2, v2, v0")
    A("v_and_b32 v2, 4, v2")
    A("v_cmp_eq_u32 vcc, 0, v2")
    A("v_mov_b32 v3, 0x3f803f80")
    A("s_nop 0")
    A(f"v_cndmask_b32 v{ON}, 0, v3, vcc")
    for r in range(1, 4):
        A(f"v_mov_b32 v{ON+r}, v{ON}")

    def rdK(t):
        b = t & 1
        o = (t % 16) * 4096
        return [f"ds_read_b128 {v(KF[b],4)}, v1 offset:{o}", f"ds_read_b128 {v(KF[b]+4,4)}, v1 offset:{o+1024}"]

    def rdV(t):
        b = t & 1
        o = (t % 16) * 4096 + 2048
        return [f"ds_read_b128 {v(VF[b],4)}, v1 offset:{o}", f"ds_read_b128 {v(VF[b]+4,4)}, v1 offset:{o+1024}"]

    stamp(A, 1)
    A("s_barrier")
    stamp(A, 2)
    for x in rdK(0) + rdK(1) + rdV(0):
        A(x)
    A("s_waitcnt vmcnt(0) lgkmcnt(4)")
    A(mfma32(S[1], KF[0], Q, '0'))
    A(mfma32(S[1], KF[0] + 4, Q + 4, S[1]))
    for r in range(16):
        A(f"v_mov_b32 v{O+r}, 0")
    for r in range(4):
        A(f"v_mov_b32 v{L+r}, 0")
    s1 = S[1]
    A(f"v_max3_f32 v2, v{s1}, v{s1+1}, v{s1+2}")
    for r in range(3, 15, 2):
        A(f"v_max3_f32 v2, v2, v{s1+r}, v{s1+r+1}")
    A(f"v_max_f32 v2, v2, v{s1+15}")
    A("v_mov_b32 v3, v2")
    A("s_nop 1")
    A("v_permlane32_swap_b32 v2, v3")
    A("v_max_f32 v2, v2, v3")
    for r in range(16):
        A(f"v_xor_b32 v{NM+r}, 0x80000000, v2")
    A("s_nop 1")
    A(mfma32(S[0], KF[0], Q, NM))
    A(mfma32(S[0], KF[0] + 4, Q + 4, S[0]))
    A("s_nop 7")
    A("s_mov_b32 s16, 0")
    stamp(A, 3)

    def tile(t, last_group):
        c, n = S[t & 1], S[(t + 1) & 1]
        kb, vb = KF[(t + 1) & 1], VF[t & 1]
        do_qk = not (last_group and t == 15)
        rk = rdK(t + 2) if not (last_group and t >= 14) else []
        rv = rdV(t + 1) if not (last_group and t == 15) else []
        E = lambda r: f"v_exp_f32 v{c+r}, v{c+r}"
        C = lambda r: f"v_cvt_pk_bf16_f32 v{P+r}, v{c+2*r}, v{c+2*r+1}"
        A("s_waitcnt lgkmcnt(2)")
        if do_qk:
            A(mfma32(n, kb, Q, NM))
        if t % 4 == 2 and rk:
            A("s_barrier")
        for x in rk:
            A(x)
        for r in range(0, 4):
            A(E(r))
        if do_qk:
            A(mfma32(n, kb + 4, Q + 4, n))
        for r in range(4, 8):
            A(E(r))
        A(C(0)); A(C(1))
        A(E(8)); A(E(9))
        A(C(2)); A(C(3))
        A(E(10)); A(E(11))
        A(f"s_waitcnt lgkmcnt({len(rk)})")
        A(mfma32(O, vb, P, O))
        A(E(12)); A(E(13))
        A(mfma16(L, ON, P, L))
        A(E(14)); A(E(15))
        A(C(4)); A(C(5)); A(C(6)); A(C(7))
        for x in rv:
            A(x)
        if len(rv) < 2:
            A("s_nop 1")
        A(mfma32(O, vb + 4, P + 4, O))
        A(mfma16(L, ON, P + 4, L))

    A("K2_LOOP:")
    for t in range(16):
        tile(t, False)
    A("s_add_u32 s16, s16, 1")
    A("s_cmp_lt_u32 s16, 3")
    A("s_cbranch_scc1 K2_LOOP")
    for t in range(16):
        tile(t, True)
    stamp(A, 4)
    A("s_nop 7")
    A(f"s_mov_b32 s17, {L_THR:#x}")
    A(f"v_cmp_nge_f32 vcc, s17, v{L}")
    A("s_nop 3")
    A("s_cbranch_vccnz K2_SLOW")
    A("K2_FIN:")
    A(f"v_rcp_f32 v2, v{L}")
    A("s_nop 0")
    for r in range(16):
        A(f"v_mul_f32 v{O+r}, v{O+r}, v2")
    for r in range(8):
        A(f"v_cvt_pk_bf16_f32 v{P+r}, v{O+2*r}, v{O+2*r+1}")
    A(f"buffer_store_dwordx4 {v(P,4)}, v1, s[20:23], s15 offen")
    A(f"buffer_store_dwordx4 {v(P+4,4)}, v1, s[20:23], s15 offen offset:1024")
    stamp(A, 5)
    dump_stamps(A, 6, 8, 9, 1)
    A("K2_END:")
    A("s_endpgm")

    A("K2_SLOW:")
    A("v_mov_b32 v2, 0xff7fffff")
    A("s_mov_b32 s16, s12")
    A("s_mov_b32 s17, 0")
    A("K2_SLOW1:")
    A(f"buffer_load_dwordx4 {v(KF[0],4)}, v1, s[20:23], s16 offen")
    A(f"buffer_load_dwordx4 {v(KF[0]+4,4)}, v1, s[20:23], s16 offen offset:1024")
    A("s_waitcnt vmcnt(0)")
    A(mfma32(s1, KF[0], Q, '0'))
    A(mfma32(s1, KF[0] + 4, Q + 4, s1))
    A("s_nop 7")
    A("s_nop 3")
    for r in range(0, 16, 2):
        A(f"v_max3_f32 v2, v2, v{s1+r}, v{s1+r+1}")
    A("s_add_u32 s16, s16, 4096")
    A("s_add_u32 s17, s17, 1")
    A("s_cmp_lt_u32 s17, 64")
    A("s_cbranch_scc1 K2_SLOW1")
    A("v_mov_b32 v3, v2")
    A("s_nop 1")
    A("v_permlane32_swap_b32 v2, v3")
    A("v_max_f32 v2, v2, v3")
    for r in range(16):
        A(f"v_xor_b32 v{NM+r}, 0x80000000, v2")
        A(f"v_mov_b32 v{O+r}, 0")
    for r in range(4):
        A(f"v_mov_b32 v{L+r}, 0")
    A("s_mov_b32 s16, s12")
    A("s_mov_b32 s17, 0")
    A("K2_SLOW2:")
    A(f"buffer_load_dwordx4 {v(KF[0],4)}, v1, s[20:23], s16 offen")
    A(f"buffer_load_dwordx4 {v(KF[0]+4,4)}, v1, s[20:23], s16 offen offset:1024")
    A(f"buffer_load_dwordx4 {v(VF[0],4)}, v1, s[20:23], s16 offen offset:2048")
    A(f"buffer_load_dwordx4 {v(VF[0]+4,4)}, v1, s[20:23], s16 offen offset:3072")
    A("s_waitcnt vmcnt(0)")
    A(mfma32(s1, KF[0], Q, NM))
    A(mfma32(s1, KF[0] + 4, Q + 4, s1))
    A("s_nop 7")
    A("s_nop 3")
    for r in range(16):
        A(f"v_exp_f32 v{s1+r}, v{s1+r}")
    A("s_nop 0")
    for r in range(8):
        A(f"v_cvt_pk_bf16_f32 v{P+r}, v{s1+2*r}, v{s1+2*r+1}")
    A("s_nop 1")
    A(mfma32(O, VF[0], P, O))
    A(mfma16(L, ON, P, L))
    A(mfma32(O, VF[0] + 4, P + 4, O))
    A(mfma16(L, ON, P + 4, L))
    A("s_add_u32 s16, s16, 4096")
    A("s_add_u32 s17, s17, 1")
    A("s_cmp_lt_u32 s17, 64")
    A("s_cbranch_scc1 K2_SLOW2")
    A("s_nop 7")
    A("s_nop 3")
    A("s_branch K2_FIN")
    return kd('k2_kernel', 128, 100)


K3_LDS = 163840


def gen_k3(A):
    header(A, 'k3_kernel')
    A("s_cmp_ge_u32 s2, 256")
    A("s_cbranch_scc1 K3_END")
    A(f"s_load_dwordx4 s[4:7], s[0:1], {KA_WO}")
    A(f"s_load_dwordx2 s[8:9], s[0:1], {KA_WS}")
    A(f"s_load_dwordx2 s[10:11], s[0:1], {KA_Q}")
    A("v_lshrrev_b32 v1, 6, v0")
    A("v_and_b32 v0, 63, v0")
    A("v_readfirstlane_b32 s3, v1")
    stamp(A, 0)
    if gen.PROF:
        A("s_mov_b32 s69, s3")
    A("s_bfe_u32 s12, s2, 0x20001")
    A("s_lshl_b32 s12, s12, 2")
    A("s_bfe_u32 s13, s2, 0x20003")
    A("s_or_b32 s12, s12, s13")
    A("s_and_b32 s13, s2, 1")
    A("s_lshl_b32 s13, s13, 3")
    A("s_lshr_b32 s14, s2, 5")
    A("s_or_b32 s13, s13, s14")
    A("s_and_b32 s14, s3, 3")
    A("s_lshr_b32 s15, s3, 2")
    A("v_lshlrev_b32 v1, 4, v0")
    A("v_lshrrev_b32 v2, 3, v0")
    A("v_and_b32 v3, 7, v0")
    A("v_bfe_u32 v4, v0, 4, 1")
    A("v_lshlrev_b32 v4, 1, v4")
    A("v_xor_b32 v4, v4, v3")
    A("v_lshlrev_b32 v4, 4, v4")
    A("v_lshl_add_u32 v4, v2, 11, v4")
    for j in range(1, 4):
        A(f"v_add_u32 v{4+j}, {15360*j}, v4")
    A("s_lshl_b32 s16, s15, 9")
    A("s_lshl_b32 s17, s14, 5")
    A("s_add_u32 s16, s16, s17")
    A("s_lshl_b32 s17, s16, 7")
    A("s_lshl_b32 s16, s16, 11")
    A("s_lshl_b32 s18, s13, 7")
    A("s_add_u32 s16, s16, s18")
    A("s_lshl_b32 s18, s12, 2")
    A("s_add_u32 s18, s18, s14")
    A("s_lshl_b32 s18, s18, 16")
    A("s_lshl_b32 s19, s15, 15")
    A("s_add_u32 s18, s18, s19")
    A(f"s_add_u32 s18, s18, {WS_OF}")
    A("s_waitcnt lgkmcnt(0)")
    srd(A, 20, 4, 5, 2 * MB)
    srd(A, 24, 8, 9, WS_SIZE)
    OFR = 64
    ACC = 32
    WF = [16, 24]

    ZR, QR = 192, 208
    A("s_cmp_eq_u32 s15, 0")
    A("s_cbranch_scc1 K3_NOA1")
    srd(A, 28, 10, 11, 4 * MB)
    A("s_lshr_b32 s32, s2, 4")
    A("s_lshl_b32 s32, s32, 7")
    A("s_lshl_b32 s33, s14, 5")
    A("s_add_u32 s32, s32, s33")
    A("s_and_b32 s33, s2, 15")
    A("s_lshl_b32 s33, s33, 6")
    A("v_lshl_add_u32 v8, v2, 2, s32")
    A("v_lshl_add_u32 v9, v3, 3, s33")
    A("v_lshlrev_b32 v10, 1, v8")
    A("v_lshl_add_u32 v10, v9, 12, v10")
    A("v_lshlrev_b32 v11, 1, v9")
    A("v_lshl_add_u32 v12, v8, 11, v11")
    A("v_add_u32 v13, 4096, v12")
    A("v_lshl_add_u32 v11, v8, 12, v11")
    A(f"s_mov_b32 s34, {WS_ZT}")
    for j in range(8):
        A(f"buffer_load_dwordx2 {v(ZR+2*j,2)}, v10, s[24:27], s34 offen")
        if j < 7:
            A("s_add_u32 s34, s34, 4096")
    for i in range(4):
        A(f"buffer_load_dwordx4 {v(QR+4*i,4)}, v{12+i//2}, s[28:31], 0 offen offset:{2048*(i&1)}")
    A("K3_NOA1:")

    for p in range(4):
        A(f"s_add_u32 m0, s17, {p*16384}")
        A("s_nop 0")
        for j in range(4):
            A(f"buffer_load_dwordx4 v{4+j}, s[20:23], s16 offen offset:{j*1024} lds")
        A(f"s_add_u32 s16, s16, {128*2048}")
        for i in range(8):
            A(f"buffer_load_dwordx4 {v(OFR+32*p+4*i,4)}, v1, s[24:27], s18 offen offset:{(i%4)*1024}")
            if i % 4 == 3:
                A("s_add_u32 s18, s18, 4096")
    srd(A, 36, 6, 7, 8 * MB)
    A("v_lshrrev_b32 v4, 5, v0")
    A("v_bfe_u32 v5, v0, 2, 2")
    A("v_lshl_add_u32 v5, v4, 2, v5")
    A("v_lshlrev_b32 v5, 7, v5")
    A("v_and_b32 v6, 1, v0")
    A("v_lshl_add_u32 v5, v6, 6, v5")
    A("v_bfe_u32 v6, v0, 4, 1")
    A("v_lshl_add_u32 v5, v6, 4, v5")
    A("v_bfe_u32 v6, v0, 1, 1")
    A("v_lshl_add_u32 v5, v6, 3, v5")
    A("v_bfe_u32 v6, v0, 3, 1")
    A("v_xor_b32 v6, s15, v6")
    A("v_lshl_add_u32 v5, v6, 5, v5")
    A("s_lshl_b32 s19, s15, 16")
    A("v_add_u32 v14, s19, v5")
    A("v_xor_b32 v15, 32, v14")
    A("s_lshl_b32 s19, s3, 12")
    A("s_add_u32 s19, s19, 131072")
    A("v_add_u32 v6, s19, v1")
    A("v_xor_b32 v7, 0x4000, v6")
    A("v_and_b32 v5, 31, v0")
    A("v_lshlrev_b32 v5, 12, v5")
    A("v_lshl_add_u32 v5, v4, 6, v5")
    A("s_lshl_b32 s32, s12, 19")
    A("s_lshl_b32 s33, s14, 17")
    A("s_add_u32 s32, s32, s33")
    A("s_lshl_b32 s33, s13, 7")
    A("s_add_u32 s32, s32, s33")
    A("s_lshl_b32 s33, s15, 5")
    A("s_add_u32 s32, s32, s33")
    A("s_add_u32 s32, s32, 2048")

    A("s_cmp_eq_u32 s15, 0")
    A("s_cbranch_scc1 K3_NOA2")
    A("s_waitcnt vmcnt(48)")
    T = 16
    for i in range(4):
        for dw in range(4):
            for hi in range(2):
                zr = ZR + 2 * (2 * dw + hi) + (i >> 1)
                A(f"v_and_b32 v{T+hi}, 0xffff0000, v{zr}" if i & 1 else f"v_lshlrev_b32 v{T+hi}, 16, v{zr}")
            A(f"v_lshlrev_b32 v{T+2}, 16, v{QR+4*i+dw}")
            A(f"v_and_b32 v{T+3}, 0xffff0000, v{QR+4*i+dw}")
            A(f"v_mul_f32 v{T}, v{T}, v{T+2}")
            A(f"v_mul_f32 v{T+1}, v{T+1}, v{T+3}")
            A(f"v_cvt_pk_bf16_f32 v{QR+4*i+dw}, v{T}, v{T+1}")
    A("K3_NOA2:")

    def reads(step):
        b = step & 1
        out = []
        for nt in range(2):
            for j in range(2):
                out.append(f"ds_read_b64_tr_b16 {v(WF[b]+4*nt+2*j,2)}, v{14+nt} offset:{(16*step+8*j)*128}")
        return out

    stamp(A, 1)
    for step in range(32):
        p = step // 8
        if step % 8 == 0:
            A(f"s_waitcnt vmcnt({12*(3-p)+8})")
            A("s_barrier")
            stamp(A, 2 + p)
            for x in reads(step):
                A(x)
        nxt = reads(step + 1) if (step + 1) % 8 else []
        for x in nxt:
            A(x)
        A(f"s_waitcnt vmcnt({12*(3-p)+7-(step%8)}) lgkmcnt({len(nxt)})")
        b = step & 1
        for nt in range(2):
            c = '0' if step == 0 else ACC + 16 * nt
            A(mfma32(ACC + 16 * nt, WF[b] + 4 * nt, OFR + 4 * step, c))
    stamp(A, 6)
    A("s_cmp_eq_u32 s15, 0")
    A("s_cbranch_scc1 K3_NOA3")
    A("s_movk_i32 s34, 0x1000")
    A("s_movk_i32 s35, 0x2000")
    A("s_movk_i32 s33, 0x3000")
    for i, so in enumerate(['0', 's34', 's35', 's33']):
        A(f"buffer_store_dwordx4 {v(QR+4*i,4)}, v11, s[36:39], {so} offen")
    A("K3_NOA3:")
    A("s_nop 7")
    A("s_nop 3")
    for i in range(4):
        A(f"ds_write_b128 v6, {v(ACC+16+4*i,4)} offset:{1024*i}")
    A("s_waitcnt lgkmcnt(0)")
    A("s_barrier")
    for i in range(4):
        A(f"ds_read_b128 {v(OFR+4*i,4)}, v7 offset:{1024*i}")
    for i in range(4):
        A(f"s_waitcnt lgkmcnt({3-i})")
        for r in range(4):
            A(f"v_add_f32 v{ACC+4*i+r}, v{ACC+4*i+r}, v{OFR+4*i+r}")
    for r in range(8):
        A(f"v_cvt_pk_bf16_f32 v{16+r}, v{ACC+2*r}, v{ACC+2*r+1}")
    A(f"buffer_store_dwordx4 v[16:19], v5, s[36:39], s32 offen")
    A(f"buffer_store_dwordx4 v[20:23], v5, s[36:39], s32 offen offset:16")
    if gen.PROF:
        A("s_waitcnt vmcnt(0)")
    stamp(A, 7)
    dump_stamps(A, 8, 8, 9, 2)
    A("K3_END:")
    A("s_endpgm")
    return kd('k3_kernel', 224, 100)


LAUNCH = {
    'k2': f"; @launch kernel=k2_kernel grid=(256,1,1) block=(768,1,1) lds={K2_LDS}",
    'k3': f"; @launch kernel=k3_kernel grid=(256,1,1) block=(512,1,1) lds={K3_LDS}",
}
GENS = {'k2': gen_k2, 'k3': gen_k3}


def traces(A, ks):
    if 'k2' in ks:
        A.check_trace('k2_kernel', {'K2_ATT': True, 'K2_LOOP': lambda c: c < 2}, 'k2 att')
        A.check_trace('k2_kernel', {'K2_ATT': True, 'K2_LOOP': lambda c: c < 2, 'K2_SLOW': True,
                                    'K2_SLOW1': lambda c: c < 2, 'K2_SLOW2': lambda c: c < 2}, 'k2 att slow')
        A.check_trace('k2_kernel', {}, 'k2 conv')
    if 'k3' in ks:
        A.check_trace('k3_kernel', {}, 'k3 kh1')
        A.check_trace('k3_kernel', {'K3_NOA1': True, 'K3_NOA2': True, 'K3_NOA3': True}, 'k3 kh0')
```

```python
import sys, struct, math
sys.path.insert(0, 'dev')
from asmlib import *

MB = 1 << 20
WS_QF = 0
WS_KV = 4 * MB
WS_OF = 12 * MB
WS_UT = 16 * MB
WS_ZT = 20 * MB
WS_SIZE = 24 * MB

KA_Q, KA_K, KA_V, KA_SH, KA_SSMK, KA_D, KA_X, KA_W, KA_WO, KA_OUT, KA_DBG, KA_WS = [8 * i for i in range(12)]


def f32bits(x):
    return struct.unpack('<I', struct.pack('<f', x))[0]


QSCALE = f32bits(math.log2(math.e) / math.sqrt(32.0))


def srd(A, d, lo, hi, size):
    if lo != d:
        A(f"s_mov_b32 s{d}, s{lo}")
    A(f"s_and_b32 s{d+1}, s{hi}, 0xffff")
    A(f"s_mov_b32 s{d+2}, {size}")
    A(f"s_mov_b32 s{d+3}, 0x00020000")


def srd_off(A, d, lo, hi, off, size):
    A(f"s_add_u32 s{d}, s{lo}, {off}")
    A(f"s_addc_u32 s{d+1}, s{hi}, 0")
    A(f"s_and_b32 s{d+1}, s{d+1}, 0xffff")
    A(f"s_mov_b32 s{d+2}, {size}")
    A(f"s_mov_b32 s{d+3}, 0x00020000")


def mfma32(d, a, b, c):
    cs = c if isinstance(c, str) else v(c, 16)
    return f"v_mfma_f32_32x32x16_bf16 {v(d,16)}, {v(a,4)}, {v(b,4)}, {cs}"


def mfma16(d, a, b, c):
    cs = c if isinstance(c, str) else v(c, 4)
    return f"v_mfma_f32_16x16x32_bf16 {v(d,4)}, {v(a,4)}, {v(b,4)}, {cs}"


PROF = False
WS_PROF = 32 * MB


def stamp(A, idx):
    if PROF:
        A(f"s_memtime s[{70+2*idx}:{71+2*idx}]")


def dump_stamps(A, n, wslo, wshi, kidx, vt=2):
    if not PROF:
        return
    A("s_waitcnt lgkmcnt(0)")
    srd_off(A, 64, wslo, wshi, WS_PROF + kidx * MB, MB)
    A("s_lshl_b32 s68, s2, 10")
    A("s_lshl_b32 s69, s69, 6")
    A("s_add_u32 s68, s68, s69")
    A(f"v_mov_b32 v{vt+1}, 0")
    for i in range(n):
        A(f"v_mov_b32 v{vt}, s{70+2*i}")
        A(f"buffer_store_dword v{vt}, v{vt+1}, s[64:67], s68 offen offset:{4*i}")
    A("s_waitcnt vmcnt(0)")


def header(A, name):
    A(f".globl {name}")
    A(".p2align 8")
    A(f".type {name},@function")
    A(f"{name}:")


K1_SLOT = 40960
K1_LDS = 4 * K1_SLOT


def gen_k1(A):
    header(A, 'k1_kernel')
    A("s_cmp_ge_u32 s2, 256")
    A("s_cbranch_scc1 K1_END")
    A(f"s_load_dwordx4 s[4:7], s[0:1], {KA_X}")
    A(f"s_load_dwordx2 s[8:9], s[0:1], {KA_WS}")
    A("v_lshrrev_b32 v1, 6, v0")
    A("v_and_b32 v0, 63, v0")
    A("v_readfirstlane_b32 s3, v1")
    stamp(A, 0)
    if PROF:
        A("s_mov_b32 s69, s3")
    A("s_and_b32 s10, s2, 1")
    A("s_lshl_b32 s10, s10, 3")
    A("s_bfe_u32 s11, s2, 0x30003")
    A("s_or_b32 s10, s10, s11")
    A("s_bfe_u32 s11, s2, 0x20001")
    A("s_lshl_b32 s11, s11, 2")
    A("s_lshr_b32 s12, s2, 6")
    A("s_or_b32 s11, s11, s12")
    A("s_cmp_lt_u32 s3, 4")
    A("s_cbranch_scc1 K1_COMPUTE")

    A(f"s_load_dwordx4 s[36:39], s[0:1], {KA_K}")
    A(f"s_load_dwordx2 s[40:41], s[0:1], {KA_SH}")
    A("s_sub_u32 s3, s3, 4")
    A("v_lshrrev_b32 v2, 3, v0")
    A("v_and_b32 v3, 7, v0")
    A("v_lshrrev_b32 v4, 4, v0")
    A("v_xor_b32 v5, v3, v4")
    A("v_lshlrev_b32 v5, 4, v5")
    A("v_lshl_add_u32 v5, v2, 11, v5")
    A("v_xor_b32 v6, 64, v5")
    A(f"v_add_u32 v6, {15360}, v6")
    A(f"v_add_u32 v7, {2*15360}, v5")
    A(f"v_add_u32 v8, {2*15360}, v6")
    A("v_and_b32 v9, 1, v4")
    A("v_lshlrev_b32 v9, 2, v9")
    A("v_xor_b32 v9, v9, v3")
    A("v_lshlrev_b32 v9, 4, v9")
    A("v_mul_u32_u24 v10, 6144, v2")
    A("v_add_u32 v9, v9, v10")
    A(f"v_add_u32 v10, {49152-1024}, v9")
    A("s_lshl_b32 s13, s10, 18")
    A("s_lshl_b32 s14, s3, 16")
    A("s_add_u32 s13, s13, s14")
    A(f"s_mul_i32 s14, s3, {16*6144}")
    A("s_lshl_b32 s15, s11, 7")
    A("s_add_u32 s14, s14, s15")
    A("s_add_u32 s15, s14, 4096")
    A(f"s_mul_i32 s16, s3, 10240")
    A("s_waitcnt lgkmcnt(0)")
    srd(A, 20, 4, 5, 4 * MB)
    srd(A, 24, 6, 7, 6 * MB)

    def issue_stage(st):
        slot = st % 4
        A(f"s_add_u32 m0, s16, {slot*K1_SLOT}")
        A("s_nop 0")
        for j in range(4):
            A(f"buffer_load_dwordx4 v{5+j}, s[20:23], s13 offen offset:{j*1024} lds")
        A(f"s_add_u32 m0, s16, {slot*K1_SLOT+4096}")
        A("s_add_u32 s13, s13, 128")
        for t in range(4):
            A(f"buffer_load_dwordx4 v{9+(t&1)}, s[24:27], s14 offen offset:{t*1024} lds")
        A(f"s_add_u32 m0, s16, {slot*K1_SLOT+8192}")
        A(f"s_add_u32 s14, s14, {64*6144}")
        for t in range(2):
            A(f"buffer_load_dwordx4 v{9+t}, s[24:27], s15 offen offset:{t*1024} lds")
        A(f"s_add_u32 s15, s15, {64*6144}")

    for st in range(3):
        issue_stage(st)

    srd(A, 28, 36, 37, 4 * MB)
    srd(A, 32, 38, 39, 4 * MB)
    srd(A, 44, 40, 41, 8192)
    srd_off(A, 48, 8, 9, WS_UT, 4 * MB)
    A("s_lshr_b32 s17, s2, 4")
    A("s_lshl_b32 s17, s17, 7")
    A("s_lshl_b32 s18, s3, 5")
    A("s_add_u32 s17, s17, s18")
    A("s_and_b32 s18, s2, 15")
    A("s_lshl_b32 s18, s18, 6")
    A("v_lshl_add_u32 v11, v2, 2, s17")
    A("v_lshl_add_u32 v12, v3, 3, s18")
    A("v_lshlrev_b32 v13, 1, v12")
    A("v_lshl_add_u32 v15, v11, 11, v13")
    A("v_subrev_u32 v13, 6144, v15")
    A("v_subrev_u32 v14, 2048, v15")
    A("v_add_u32 v16, 4096, v15")
    A("v_lshlrev_b32 v17, 3, v12")
    KR = 20
    VR = 48
    WR = 64
    krows = [(13, 0), (13, 2048), (14, 0), (15, 0), (15, 2048), (16, 0), (16, 2048)]
    for i, (a, o) in enumerate(krows):
        A(f"buffer_load_dwordx4 {v(KR+4*i,4)}, v{a}, s[28:31], 0 offen offset:{o}")
    for i, (a, o) in enumerate(krows[3:]):
        A(f"buffer_load_dwordx4 {v(VR+4*i,4)}, v{a}, s[32:35], 0 offen offset:{o}")
    for i in range(4):
        A(f"buffer_load_dwordx4 {v(WR+4*i,4)}, v17, s[44:47], 0 offen offset:{16*i}")
    NP = 15
    A("v_sub_u32 v18, 2044, v11")
    A("v_lshlrev_b32 v18, 1, v18")
    A("v_lshl_add_u32 v18, v12, 12, v18")

    prep = []
    T = 80
    OUT = 112
    for j in range(8):
        dw, hi = j // 2, j & 1

        def unp(dst, src):
            return f"v_and_b32 v{dst}, 0xffff0000, v{src}" if hi else f"v_lshlrev_b32 v{dst}, 16, v{src}"
        for i in range(7):
            prep.append(unp(T + i, KR + 4 * i + dw))
        for i in range(4):
            prep.append(unp(T + 7 + i, VR + 4 * i + dw))
        prep.append(f"v_lshlrev_b32 v{T+11}, 16, v{WR+2*j}")
        prep.append(f"v_and_b32 v{T+12}, 0xffff0000, v{WR+2*j}")
        prep.append(f"v_lshlrev_b32 v{T+13}, 16, v{WR+2*j+1}")
        prep.append(f"v_and_b32 v{T+14}, 0xffff0000, v{WR+2*j+1}")
        for i in range(4):
            prep.append(f"v_mul_f32 v{T+15+i}, v{T+i}, v{T+14}")
        for t in (2, 1, 0):
            for i in range(4):
                prep.append(f"v_fmac_f32 v{T+15+i}, v{T+3+i-t}, v{T+11+t}")
        for i in range(4):
            prep.append(f"v_mul_f32 v{T+15+i}, v{T+15+i}, v{T+7+i}")
        prep.append(f"v_cvt_pk_bf16_f32 v{OUT+2*j}, v{T+18}, v{T+17}")
        prep.append(f"v_cvt_pk_bf16_f32 v{OUT+2*j+1}, v{T+16}, v{T+15}")
    per = len(prep) // 8
    for st in range(16):
        if st <= 2:
            n = 20 + NP
        elif st <= 13:
            n = 20
        else:
            n = 10 * (15 - st)
        A(f"s_waitcnt vmcnt({n})")
        A("s_barrier")
        if st + 3 < 16:
            issue_stage(st + 3)
        if 4 <= st < 12:
            for x in prep[(st - 4) * per:(st - 3) * per]:
                A(x)
    A("s_movk_i32 s17, 0x1000")
    A("s_movk_i32 s18, 0x2000")
    A("s_movk_i32 s19, 0x3000")
    A("s_movk_i32 s40, 0x4000")
    A("s_movk_i32 s41, 0x5000")
    A("s_movk_i32 s42, 0x6000")
    A("s_movk_i32 s43, 0x7000")
    for j, so in enumerate(['0', 's17', 's18', 's19', 's40', 's41', 's42', 's43']):
        A(f"buffer_store_dwordx2 {v(OUT+2*j,2)}, v18, s[48:51], {so} offen")
    A("s_endpgm")

    A("K1_COMPUTE:")
    ACC = 0
    ACC = 64
    XF = [16, 40]
    WF = [24, 48]
    XA = 160
    WA = 168
    A("s_lshr_b32 s13, s3, 1")
    A("s_and_b32 s14, s3, 1")
    A("v_and_b32 v2, 31, v0")
    A("v_lshrrev_b32 v3, 5, v0")
    A("v_bfe_u32 v4, v0, 1, 3")
    A("v_xor_b32 v4, v4, v3")
    A("v_lshlrev_b32 v4, 4, v4")
    A("v_lshl_add_u32 v4, v2, 7, v4")
    A("s_mul_i32 s15, s13, 20480")
    A("v_add_u32 v4, s15, v4")
    for ks in range(4):
        if ks == 0:
            A(f"v_mov_b32 v{XA}, v4")
        else:
            A(f"v_xor_b32 v{XA+ks}, {32*ks}, v4")
        A(f"v_add_u32 v{XA+4+ks}, {2*K1_SLOT}, v{XA+ks}")
    A("v_bfe_u32 v5, v0, 2, 2")
    A("v_lshlrev_b32 v6, 7, v5")
    A("v_lshl_add_u32 v6, v3, 10, v6")
    A("v_bfe_u32 v7, v0, 3, 1")
    A("v_xor_b32 v7, s14, v7")
    A("v_lshl_add_u32 v6, v7, 6, v6")
    A("v_bfe_u32 v7, v0, 4, 1")
    A("v_lshl_add_u32 v6, v7, 5, v6")
    A("v_and_b32 v7, 3, v0")
    A(f"v_lshl_add_u32 v{WA}, v7, 3, v6")
    for sl in range(1, 4):
        A(f"v_add_u32 v{WA+sl}, {sl*K1_SLOT}, v{WA}")
    A("v_lshlrev_b32 v1, 4, v0")
    A("s_lshl_b32 s16, s11, 1")
    A("s_add_u32 s16, s16, s14")
    A("s_lshl_b32 s16, s16, 6")
    A("s_lshl_b32 s17, s10, 2")
    A("s_add_u32 s16, s16, s17")
    A("s_lshl_b32 s17, s13, 1")
    A("s_add_u32 s16, s16, s17")
    A("s_lshl_b32 s17, s16, 11")
    A("s_lshl_b32 s18, s16, 12")
    A(f"s_add_u32 s18, s18, {WS_KV}")
    A("s_add_u32 s19, s18, 4096")
    A(f"s_mov_b32 s24, {QSCALE:#x}")
    A("s_waitcnt lgkmcnt(0)")
    srd(A, 20, 8, 9, 12 * MB)

    def reads(step):
        st, ks = divmod(step, 4)
        slot = st % 4
        b = step & 1
        out = []
        xa = XA + 4 * (slot >> 1) + ks
        out.append(f"ds_read_b128 {v(XF[b],4)}, v{xa} offset:{(slot&1)*K1_SLOT}")
        for seg in range(3):
            for j in range(2):
                out.append(f"ds_read_b64_tr_b16 {v(WF[b]+4*seg+2*j,2)}, v{WA+slot} offset:{ks*10240+4096+seg*2048+j*512}")
            if seg == 0:
                out.append(f"ds_read_b128 {v(XF[b]+4,4)}, v{xa} offset:{(slot&1)*K1_SLOT+10240}")
        return out

    def mfmas(step):
        b = step & 1
        out = []
        for seg in range(3):
            for rt in range(2):
                d = ACC + 16 * (3 * rt + seg)
                c = '0' if step == 0 else d
                if seg < 2:
                    out.append(mfma32(d, WF[b] + 4 * seg, XF[b] + 4 * rt, c))
                else:
                    out.append(mfma32(d, XF[b] + 4 * rt, WF[b] + 4 * seg, c))
        return out

    stamp(A, 1)
    A("s_barrier")
    stamp(A, 2)
    for r in reads(0):
        A(r)
    for step in range(64):
        m = mfmas(step)
        nxt = reads(step + 1) if step + 1 < 64 else []
        A("s_waitcnt lgkmcnt(0)")
        A(m[0])
        if (step + 1) % 4 == 0 and step + 1 < 64:
            A("s_barrier")
            if (step + 1) % 8 == 4:
                stamp(A, 3 + (step + 1) // 8)
        gaps = [nxt[0:3], nxt[3:5], nxt[5:7], nxt[7:8], [], []]
        for x in gaps[0]:
            A(x)
        for k in range(1, 6):
            A(m[k])
            for x in gaps[k]:
                A(x)
    stamp(A, 11)
    A("s_nop 7")
    O = 16
    for rt in range(2):
        for seg in range(3):
            d = ACC + 16 * (3 * rt + seg)
            o = O + 8 * ((3 * rt + seg) % 4)
            if seg == 0:
                for r in range(16):
                    A(f"v_mul_f32 v{d+r}, s24, v{d+r}")
            for r in range(8):
                A(f"v_cvt_pk_bf16_f32 v{o+r}, v{d+2*r}, v{d+2*r+1}")
            if seg == 0:
                so, off = 's17', rt * 2048
            else:
                so, off = ('s18', 's19')[rt], (seg - 1) * 2048
            A(f"buffer_store_dwordx4 {v(o,4)}, v1, s[20:23], {so} offen offset:{off}")
            A(f"buffer_store_dwordx4 {v(o+4,4)}, v1, s[20:23], {so} offen offset:{off+1024}")
    if PROF:
        A("s_waitcnt vmcnt(0)")
    stamp(A, 12)
    dump_stamps(A, 13, 8, 9, 0)
    A("K1_END:")
    A("s_endpgm")
    return kd('k1_kernel', 172, 100)


def build(path, kernels=('k1', 'k2', 'k3')):
    hdr = open('concat_heads__ssm_conv_h3__mha_block__prompt.s.ref').read().split('\n')
    hdr = [l for l in hdr if l.startswith(';') and 'launch' not in l and 'Harness parses' not in l]
    launches = {
        'k1': f"; @launch kernel=k1_kernel grid=(256,1,1) block=(512,1,1) lds={K1_LDS}",
    }
    gens = {'k1': gen_k1}
    try:
        import gen23
        launches.update(gen23.LAUNCH)
        gens.update(gen23.GENS)
    except ImportError:
        pass
    A = Asm()
    kds = []
    for k in kernels:
        kds.append(gens[k](A))
    errs = A.check()
    out = '\n'.join(hdr) + '\n' + '\n'.join(launches[k] for k in kernels) + '\n'
    out += '.amdgcn_target "amdgcn-amd-amdhsa--gfx950"\n.text\n' + A.text()
    out += '.section .rodata,"a"\n' + ''.join(kds)
    open(path, 'w').write(out)
    return A, errs


if __name__ == '__main__':
    sys.modules['gen'] = sys.modules['__main__']
    if 'prof' in sys.argv:
        PROF = True
        sys.modules['gen'] = sys.modules['__main__']
    ks = sys.argv[2].split(',') if len(sys.argv) > 2 else ('k1', 'k2', 'k3')
    A, errs = build(sys.argv[1] if len(sys.argv) > 1 else 'out.s', ks)
    if 'k1' in ks:
        A.check_trace('k1_kernel', {'K1_COMPUTE': True}, 'k1 compute')
        A.check_trace('k1_kernel', {}, 'k1 loader')
    try:
        import gen23
        gen23.traces(A, ks)
    except ImportError:
        pass
```

```python
import sys, struct, math, os
sys.path.insert(0, 'dev')
from asmlib import *

OPT = set(os.environ.get('OPT', '').split(','))
PROF = 'prof' in OPT
NAME = 'concat_heads__ssm_conv_h3__mha_block__prompt_kernel'
LA = int(os.environ.get('LA', 2))
GP = 'gp' in OPT

MB = 1 << 20
WS_QF = 0
WS_KV = 4 * MB
WS_OF = 12 * MB
WS_UT = 16 * MB
WS_ZT = 20 * MB
WS_SYNC = 24 * MB
WS_SIZE = 24 * MB + 16384
WS_PROF = 32 * MB
C1, CU, CZ, C2 = 0, 16, 32, 48

P_Q, P_K, P_V, P_SH, P_SSMK, P_D, P_X, P_W, P_WO, P_OUT, P_DBG, P_WS = [16 + 2 * i for i in range(12)]
SRD_WS = 8
WS = f"s[{SRD_WS}:{SRD_WS+3}]"


def f32bits(x):
    return struct.unpack('<I', struct.pack('<f', x))[0]


QSCALE = f32bits(math.log2(math.e) / math.sqrt(32.0))
L_THR = f32bits(2.0 ** 60)

SLOT = 40960
LDS = 163840
HCS = 4160
HC_STRIDE = 4 * HCS + 64
U_BASE = 4 * HC_STRIDE
U_SZ = 4608
CNT_LDS = U_BASE + 4 * U_SZ
RING = 98304
SC = ' sc1'
NT = ' nt' if 'nont' not in OPT else ''


def srd(A, d, p, size):
    A(f"s_mov_b32 s{d}, s{p}")
    A(f"s_and_b32 s{d+1}, s{p+1}, 0xffff")
    A(f"s_mov_b32 s{d+2}, {size}")
    A(f"s_mov_b32 s{d+3}, 0x00020000")


def mfma32(d, a, b, c):
    cs = c if isinstance(c, str) else v(c, 16)
    return f"v_mfma_f32_32x32x16_bf16 {v(d,16)}, {v(a,4)}, {v(b,4)}, {cs}"


def mfma16(d, a, b, c):
    cs = c if isinstance(c, str) else v(c, 4)
    return f"v_mfma_f32_16x16x32_bf16 {v(d,4)}, {v(a,4)}, {v(b,4)}, {cs}"


MT = 's_memrealtime' if 'rt' in OPT else 's_memtime'


def stamp1(A, idx):
    if PROF and 'p1' in OPT:
        A(f"{MT} s[{70+2*idx}:{71+2*idx}]")


def stamp(A, idx):
    if PROF and 'p1' in OPT and idx != 0:
        return
    if PROF:
        A(f"{MT} s[{70+2*idx}:{71+2*idx}]")
        if idx == 0:
            A("s_memrealtime s[68:69]")


def dump_stamps(A, n, vt=2):
    if not PROF:
        return
    A("s_memrealtime s[62:63]")
    A("s_waitcnt lgkmcnt(0)")
    A(f"s_add_u32 s64, s{P_WS}, {WS_PROF}")
    A(f"s_addc_u32 s65, s{P_WS+1}, 0")
    A("s_and_b32 s65, s65, 0xffff")
    A(f"s_mov_b32 s66, {MB}")
    A("s_mov_b32 s67, 0x00020000")
    A("s_lshl_b32 s60, s2, 10")
    A("s_lshl_b32 s61, s3, 6")
    A("s_add_u32 s60, s60, s61")
    A(f"v_mov_b32 v{vt+1}, 0")
    for i in range(n):
        A(f"v_mov_b32 v{vt}, s{70+2*i}")
        A(f"buffer_store_dword v{vt}, v{vt+1}, s[64:67], s60 offen offset:{4*i}")
    A(f"v_mov_b32 v{vt}, s68")
    A(f"buffer_store_dword v{vt}, v{vt+1}, s[64:67], s60 offen offset:56")
    A(f"v_mov_b32 v{vt}, s62")
    A(f"buffer_store_dword v{vt}, v{vt+1}, s[64:67], s60 offen offset:60")
    A("s_waitcnt vmcnt(0)")


SLP = int(os.environ.get('SLP', 4))


def poll(A, name, srdn, soff, target, vz, vt, st):
    A("s_mov_b32 s98, 0")
    A(f"{name}:")
    A(f"buffer_load_dword v{vt}, v{vz}, s[{srdn}:{srdn+3}], {soff} offen sc1")
    A("s_waitcnt vmcnt(0)")
    A(f"v_readfirstlane_b32 s{st}, v{vt}")
    A(f"s_cmp_eq_u32 s{st}, {target}")
    A(f"s_cbranch_scc1 {name}_OK")
    A(f"s_sleep {SLP}")
    A("s_add_u32 s98, s98, 1")
    A("s_cmp_lt_u32 s98, 0x40000")
    A(f"s_cbranch_scc1 {name}")
    A(f"{name}_OK:")


def signal(A, soff, va, vt, lanes=1):
    A(f"s_mov_b64 exec, {(1 << lanes) - 1}")
    A(f"v_mov_b32 v{vt}, 1")
    A(f"buffer_atomic_add v{vt}, v{va}, {WS}, {soff} offen")
    A("s_mov_b64 exec, -1")


def gen(A):
    A(f".globl {NAME}")
    A(".p2align 8")
    A(f".type {NAME},@function")
    A(f"{NAME}:")
    A("s_cmp_ge_u32 s2, 256")
    A("s_cbranch_scc1 K_END")
    A("s_load_dwordx16 s[16:31], s[0:1], 0")
    A("s_load_dwordx8 s[32:39], s[0:1], 64")
    A("v_lshrrev_b32 v1, 6, v0")
    A("v_and_b32 v0, 63, v0")
    A("v_readfirstlane_b32 s3, v1")
    stamp(A, 0)
    A("s_and_b32 s4, s2, 1")
    A("s_lshl_b32 s4, s4, 3")
    A("s_bfe_u32 s5, s2, 0x30003")
    A("s_or_b32 s4, s4, s5")
    A("s_bfe_u32 s5, s2, 0x20001")
    A("s_lshl_b32 s5, s5, 2")
    A("s_lshr_b32 s6, s2, 6")
    A("s_or_b32 s5, s5, s6")
    A("v_lshlrev_b32 v1, 4, v0")
    A("v_mov_b32 v2, 0")
    A("s_cmp_lt_u32 s3, 4")
    A("s_cbranch_scc1 P1_COMPUTE")

    A("s_sub_u32 s6, s3, 4")
    A("v_lshrrev_b32 v3, 3, v0")
    A("v_and_b32 v4, 7, v0")
    A("v_lshrrev_b32 v11, 4, v0")
    A("v_xor_b32 v5, v4, v11")
    A("v_lshlrev_b32 v5, 4, v5")
    A("v_lshl_add_u32 v5, v3, 11, v5")
    A("v_xor_b32 v6, 64, v5")
    A(f"v_add_u32 v6, {15360}, v6")
    A(f"v_add_u32 v7, {2*15360}, v5")
    A(f"v_add_u32 v8, {2*15360}, v6")
    A("v_and_b32 v9, 1, v11")
    A("v_lshlrev_b32 v9, 2, v9")
    A("v_xor_b32 v9, v9, v4")
    A("v_lshlrev_b32 v9, 4, v9")
    A("v_mul_u32_u24 v10, 6144, v3")
    A("v_add_u32 v9, v9, v10")
    A(f"v_add_u32 v10, {49152-1024}, v9")
    A("s_lshl_b32 s12, s4, 18")
    A("s_lshl_b32 s13, s6, 16")
    A("s_add_u32 s96, s12, s13")
    A(f"s_mul_i32 s13, s6, {16*6144}")
    A("s_lshl_b32 s14, s5, 7")
    A("s_add_u32 s97, s13, s14")
    A(f"s_xor_b32 s12, s14, {128 if GP else 0}")
    A("s_add_u32 s94, s13, s12")
    A(f"s_xor_b32 s12, s14, {256 if GP else 0}")
    A("s_add_u32 s99, s13, s12")
    A("s_add_u32 s99, s99, 4096")
    if 'fullrot' in OPT:
        A("s_lshl_b32 s95, s5, 1")
        A("s_add_u32 s95, s95, s4")
        A("s_lshl_b32 s95, s95, 1")
    elif 'rot8' in OPT:
        A("s_lshl_b32 s95, s5, 1")
        A("s_add_u32 s95, s95, s4")
        A("s_and_b32 s95, s95, 7")
    else:
        A("s_add_u32 s95, s4, s5")
        A("s_and_b32 s95, s95, 3")
    A("s_mul_i32 s15, s6, 10240")
    A("s_waitcnt lgkmcnt(0)")
    srd(A, 40, P_X, 4 * MB)
    srd(A, 44, P_W, 6 * MB)

    vm = []
    fill = []

    def F(n):
        for _ in range(n):
            if fill:
                A(fill.pop(0))

    def issue_stage(st, nf=0):
        slot = st % 4
        if 'fullrot' in OPT:
            A(f"s_add_u32 s14, s95, {st}")
            A("s_and_b32 s14, s14, 15")
        else:
            A(f"s_xor_b32 s14, s95, {st}")
        A("s_lshl_b32 s12, s14, 7")
        A(f"s_add_u32 m0, s15, {slot*SLOT}")
        A("s_add_u32 s12, s12, s96")
        for j in range(4):
            A(f"buffer_load_dwordx4 v{5+j}, s[40:43], s12 offen offset:{j*1024} lds")
            F(nf)
        A(f"s_mul_i32 s14, s14, {64*6144}")
        A(f"s_add_u32 m0, s15, {slot*SLOT+4096}")
        A("s_add_u32 s13, s14, s97")
        for t in range(2):
            A(f"buffer_load_dwordx4 v{9+t}, s[44:47], s13 offen offset:{t*1024} lds")
            F(nf)
        A("s_add_u32 s13, s14, s94")
        for t in range(2, 4):
            A(f"buffer_load_dwordx4 v{9+(t&1)}, s[44:47], s13 offen offset:{t*1024} lds")
            F(nf)
        A(f"s_add_u32 m0, s15, {slot*SLOT+8192}")
        A("s_add_u32 s13, s14, s99")
        for t in range(2):
            A(f"buffer_load_dwordx4 v{9+t}, s[44:47], s13 offen offset:{t*1024} lds")
            F(nf)
        vm.extend([('st', st)] * 10)

    def wait_tag(tag):
        last = max(i for i, t in enumerate(vm) if t == tag)
        A(f"s_waitcnt vmcnt({len(vm) - 1 - last})")
        del vm[:last + 1]

    issue_stage(0)
    issue_stage(1)

    KR, VR, WR, T, OUT = 20, 42, 60, 68, 104
    srd(A, 48, P_K, 4 * MB)
    srd(A, 52, P_V, 4 * MB)
    srd(A, 60, P_SH, 8192)
    A("s_lshr_b32 s7, s2, 4")
    A("s_lshl_b32 s7, s7, 7")
    A("s_lshl_b32 s64, s6, 5")
    A("s_add_u32 s7, s7, s64")
    A("s_and_b32 s64, s2, 15")
    A("s_lshl_b32 s64, s64, 6")
    A("v_lshl_add_u32 v11, v11, 3, s7")
    A("v_and_b32 v12, 15, v0")
    A("v_lshl_add_u32 v12, v12, 2, s64")
    A("v_lshlrev_b32 v13, 1, v12")
    A("v_lshl_add_u32 v15, v11, 11, v13")
    A("v_subrev_u32 v13, 6144, v15")
    A("v_subrev_u32 v14, 2048, v15")
    A("v_lshlrev_b32 v17, 3, v12")
    A("s_movk_i32 s64, 0x1000")
    A("s_movk_i32 s65, 0x2000")
    A("s_movk_i32 s66, 0x3000")
    so4 = ['0', 's64', 's65', 's66']
    rows = [(13, '0', 0), (13, '0', 2048), (14, '0', 0)] + [(15, so4[i // 2], 2048 * (i & 1)) for i in range(8)]
    def prep_loads():
        if 'nopl' in OPT:
            return
        for i in range(2):
            A(f"buffer_load_dwordx4 {v(WR+4*i,4)}, v17, s[60:63], 0 offen offset:{16*i}")
        for i, (a, so, o) in enumerate(rows):
            A(f"buffer_load_dwordx2 {v(KR+2*i,2)}, v{a}, s[48:51], {so} offen offset:{o}{NT}")
        for i, (a, so, o) in enumerate(rows[3:]):
            A(f"buffer_load_dwordx2 {v(VR+2*i,2)}, v{a}, s[52:55], {so} offen offset:{o}{NT}")
        vm.extend(['prep'] * 21)
    ST_PL = int(os.environ.get('ST_PL', -1))
    if ST_PL < 0:
        prep_loads()
    A("v_sub_u32 v18, 2040, v11")
    A("v_lshlrev_b32 v18, 1, v18")
    A("v_lshl_add_u32 v18, v12, 12, v18")
    A(f"v_add_u32 v18, {WS_UT}, v18")
    srd(A, SRD_WS, P_WS, WS_SIZE)
    srd(A, 56, P_DBG, 256)

    prep = []
    for j in range(4):
        dw, hi = j // 2, j & 1

        def unp(dst, src):
            return f"v_and_b32 v{dst}, 0xffff0000, v{src}" if hi else f"v_lshlrev_b32 v{dst}, 16, v{src}"
        for i in range(11):
            prep.append(unp(T + i, KR + 2 * i + dw))
        prep.append(f"v_lshlrev_b32 v{T+11}, 16, v{WR+2*j}")
        prep.append(f"v_and_b32 v{T+12}, 0xffff0000, v{WR+2*j}")
        prep.append(f"v_lshlrev_b32 v{T+13}, 16, v{WR+2*j+1}")
        prep.append(f"v_and_b32 v{T+14}, 0xffff0000, v{WR+2*j+1}")
        for i in range(8):
            prep.append(f"v_mul_f32 v{T+15+i}, v{T+i}, v{T+14}")
        for t in (2, 1, 0):
            for i in range(8):
                prep.append(f"v_fmac_f32 v{T+15+i}, v{T+3+i-t}, v{T+11+t}")
        for i in range(8):
            prep.append(unp(T + i, VR + 2 * i + dw))
        for i in range(8):
            prep.append(f"v_mul_f32 v{T+15+i}, v{T+15+i}, v{T+i}")
        for i in range(4):
            prep.append(f"v_cvt_pk_bf16_f32 v{OUT+4*j+i}, v{T+15+7-2*i}, v{T+15+6-2*i}")

    def h_loads():
        A("s_lshl_b32 s7, s2, 2")
        A("s_add_u32 s7, s7, s6")
        A("s_lshl_b32 s64, s7, 12")
        A(f"s_mul_i32 s65, s6, {HCS}")
        A(f"s_mul_i32 s66, s6, {U_SZ}")
        A(f"s_add_u32 s66, s66, {U_BASE}")
        srd(A, 48, P_SSMK, 4 * MB)
        srd(A, 52, P_D, 2048)
        A("v_min_u32 v203, 32, v0")
        A("v_lshlrev_b32 v203, 7, v203")
        A(f"buffer_load_dword v204, v203 if False else v2, s[48:51], s64 offen".replace('v203 if False else v2', 'v2' if 'noA' in OPT else 'v203'))
        A(f"buffer_load_dwordx2 v[200:201], v2, s[48:51], s64 offen")
        A("s_lshl_b32 s7, s7, 1")
        A(f"buffer_load_ushort v202, v2, s[52:55], s7 offen")
        vm.extend(['h'] * 3)

    def h_write(c):
        if 'noA' in OPT:
            return
        A(f"s_add_u32 s7, s64, {2*c}")
        A(f"s_add_u32 m0, s65, {(c-1)*HC_STRIDE+32}")
        A("s_nop 0")
        for j in range(4):
            A(f"buffer_load_dwordx4 v1, s[48:51], s7 offen offset:{j*1024} lds")
        vm.extend(['cv'] * 4)

    ST_H = int(os.environ.get('ST_H', 0))
    ST_PC = ST_PL + LA + 1
    NF = int(os.environ.get('NF', 7))
    ST_UT = ST_PC + (268 + 10 * NF - 1) // (10 * NF) - 1
    ST_SIG = ST_UT + LA + 1
    ST_CU = int(os.environ.get('ST_CU', 10))
    assert ST_H >= ST_PL and ST_SIG < ST_CU and ST_CU + LA + 1 <= 15
    for st in range(16):
        wait_tag(('st', st))
        A("s_barrier")
        if st == ST_PC:
            assert 'prep' not in vm
            if 'nopc' not in OPT:
                fill.extend(prep)
        if st == 0:
            for k in range(2, LA + 1):
                issue_stage(k)
        elif st + LA < 16:
            issue_stage(st + LA, NF)
        if st == ST_PL:
            prep_loads()
        if st == ST_H:
            h_loads()
        if st == ST_UT - 1:
            A(f"buffer_load_dword v19, v2, s[56:59], 0 offen sc1")
            vm.append('if')
        if st == ST_UT:
            F(len(fill))
            A("s_movk_i32 s7, 0x1000")
            A("s_movk_i32 s12, 0x2000")
            A("s_movk_i32 s13, 0x3000")
            for j, so in enumerate(['0', 's7', 's12', 's13'] if 'nout' not in OPT else []):
                A(f"buffer_store_dwordx4 {v(OUT+4*j,4)}, v18, {WS}, {so} offen{SC}")
                vm.append('ut')
        if st == ST_SIG - 1:
            assert 'if' not in vm
            A("v_readfirstlane_b32 s7, v19")
            A("s_cmp_eq_u32 s7, 1")
            A("s_cbranch_scc1 INITP_OK")
            poll(A, 'INITP', 56, '0', 1, 2, 19, 7)
        if st == ST_SIG:
            assert 'ut' not in vm
            A("s_cmp_lg_u32 s6, 0")
            A("s_cbranch_scc1 NOSIGU")
            A("s_and_b32 s7, s2, 15")
            A("s_lshl_b32 s7, s7, 8")
            A(f"s_add_u32 s7, s7, {WS_SYNC+CU*256}")
            signal(A, 's7', 2, 11)
            A("NOSIGU:")
        if st == ST_CU:
            A("s_lshr_b32 s7, s2, 4")
            A("s_lshl_b32 s7, s7, 8")
            A(f"s_add_u32 s67, s7, {WS_SYNC+CU*256}")
            A(f"buffer_load_dword v19, v2, {WS}, s67 offen sc1")
            vm.append('cu')
        if st == ST_CU + LA + 1:
            assert 'cu' not in vm
            A("v_readfirstlane_b32 s63, v19")
            A(f"s_add_u32 s12, s64, {WS_UT}")
            A("s_cmp_lg_u32 s63, 16")
            A("s_cbranch_scc1 NOUT" if 'noA' not in OPT else "s_branch NOUT")
            A("v_min_u32 v203, 31, v0")
            A("v_lshlrev_b32 v203, 7, v203")
            A(f"buffer_load_dword v204, v203, {WS}, s12 offen sc1")
            A("NOUT:")
        if st == 13 and 'hlate' not in OPT:
            h_write(1)
            h_write(2)
        if st == 14 and 'hlate' not in OPT:
            h_write(3)
            h_write(4)
        if st == 14:
            A("v_lshrrev_b32 v7, 1, v0")
            A(f"v_mul_u32_u24 v7, {HC_STRIDE}, v7")
            A("v_and_b32 v8, 1, v0")
            A("v_lshl_add_u32 v7, v8, 4, v7")
            A("v_add_u32 v7, s65, v7")
            A("v_subrev_u32 v8, 8, v0")
            A("v_min_u32 v8, 31, v8")
            A("v_lshlrev_b32 v8, 4, v8")
            A("v_add_u32 v8, 4096, v8")
            A("v_add_u32 v8, s66, v8")
            A("v_cmp_gt_u32 vcc, 8, v0")
            A("v_mov_b32 v20, 0")
            A("v_mov_b32 v21, 0")
            A("v_cndmask_b32 v7, v8, v7, vcc")
            A("v_mov_b32 v22, 0")
            A("v_mov_b32 v23, 0")
            A("v_and_b32 v8, 3, v0")
            A(f"v_mul_u32_u24 v9, {HC_STRIDE}, v8")
            A("v_lshlrev_b32 v8, 1, v8")
            A("v_sub_u32 v8, v9, v8")
            A("v_add_u32 v8, 30, v8")
            A("v_add_u32 v8, s65, v8")
            A("v_lshlrev_b32 v6, 16, v202")
            A("v_lshrrev_b32 v10, 4, v0")
            A("v_lshl_add_u32 v9, v10, 4, v9")
            A("v_bfe_u32 v11, v0, 2, 2")
            A("v_lshl_add_u32 v9, v11, 3, v9")
            A("v_add_u32 v9, s65, v9")
            A("v_and_b32 v11, 15, v0")
            A("v_lshlrev_b32 v12, 5, v11")
            A("v_lshlrev_b32 v13, 4, v10")
            A("v_sub_u32 v13, v13, v12")
            A("v_lshl_add_u32 v12, v10, 3, v12")
            A("v_add_u32 v13, 480, v13")
            A("v_add_u32 v10, s66, v13")
            A(f"v_sub_u32 v11, {4088-3584}, v12")
            A("v_add_u32 v11, s66, v11")
            A(f"v_mov_b32 v13, {CNT_LDS}")
    A("ds_write_b128 v7, v[20:23]")
    A("ds_write_b32 v13, v2")
    A(f"s_add_u32 s12, s64, {WS_UT}")
    A("s_mov_b32 m0, s66")
    if 'noA' in OPT:
        A("s_waitcnt lgkmcnt(0)")
        A("s_barrier")
        A("v_mov_b32 v216, 0")
        A("s_branch P2_JOIN")
    A("s_cmp_eq_u32 s63, 16")
    A("s_cbranch_scc1 U_EARLY")
    A("s_waitcnt lgkmcnt(0)")
    A("s_barrier")
    poll(A, 'POLLU', SRD_WS, 's67', 16, 2, 19, 7)
    for j in range(4):
        A(f"buffer_load_dwordx4 v1, {WS}, s12 offen offset:{j*1024}{SC} lds")
    A("s_branch U_JOIN")
    A("U_EARLY:")
    for j in range(4):
        A(f"buffer_load_dwordx4 v1, {WS}, s12 offen offset:{j*1024}{SC} lds")
    A("s_waitcnt lgkmcnt(0)")
    A("s_barrier")
    A("U_JOIN:")
    stamp(A, 1)
    if 'hlate' in OPT:
        for c in range(1, 5):
            h_write(c)
        A("s_waitcnt vmcnt(0)")
    else:
        A("s_waitcnt vmcnt(4)")
    A("ds_write_b64 v8, v[200:201]")
    A(f"s_add_u32 s7, s64, {WS_ZT}")
    A("v_add_u32 v216, s7, v12")
    FR, UR, YR = [32, 96], [64, 128], 160
    pairs = [(a, b) for a in range(8) for b in range(8) if a + b <= 7]

    def cF(rho):
        o = []
        for a in range(8):
            o.append(f"ds_read_b64 {v(FR[rho&1]+4*a,2)}, v9 offset:{512*a+64*rho}")
            o.append(f"ds_read_b64 {v(FR[rho&1]+4*a+2,2)}, v9 offset:{512*a+64*rho+8}")
        return o

    def cU(rho):
        return [f"ds_read_b128 {v(UR[rho&1]+4*b,4)}, v10 offset:{512*(7-b)+64*rho}" for b in range(8)]

    for x in cF(0):
        A(x)
    A("s_waitcnt vmcnt(0)")
    for x in cU(0):
        A(x)
    stamp(A, 2)
    for rho in range(8):
        A("s_waitcnt lgkmcnt(0)")
        nxt = (cU(rho + 1) + cF(rho + 1)) if rho < 7 else \
            [f"ds_read_b64 {v(FR[0]+2*G,2)}, v11 offset:{512*(7-G)}" for G in range(8)]
        for i, (a, b) in enumerate(pairs):
            G = a + b
            c = '0' if (rho == 0 and a == 0) else YR + 4 * G
            A(mfma16(YR + 4 * G, FR[rho & 1] + 4 * a, UR[rho & 1] + 4 * b, c))
            if i < len(nxt):
                A(nxt[i])
    A("s_waitcnt lgkmcnt(0)")
    for G in range(8):
        y = YR + 4 * G
        t = UR[0]
        f = FR[0]
        A(f"v_and_b32 v{t}, 0xffff0000, v{f+2*G+1}")
        A(f"v_lshlrev_b32 v{t+1}, 16, v{f+2*G+1}")
        A(f"v_and_b32 v{t+2}, 0xffff0000, v{f+2*G}")
        A(f"v_lshlrev_b32 v{t+3}, 16, v{f+2*G}")
        for r in range(4):
            A(f"v_fmac_f32 v{y+r}, v{t+r}, v6")
        A(f"v_cvt_pk_bf16_f32 v{200+2*G}, v{y}, v{y+1}")
        A(f"v_cvt_pk_bf16_f32 v{201+2*G}, v{y+2}, v{y+3}")
    stamp(A, 3)
    A("s_branch P2_JOIN")

    A("P1_COMPUTE:")
    ACC = 64
    XF = [16, 40, 176, 200]
    WF = [24, 48, 184, 208]
    XA = 160
    WA = 168
    A("s_lshr_b32 s6, s3, 1")
    A("s_and_b32 s7, s3, 1")
    A("v_and_b32 v6, 31, v0")
    A("v_lshrrev_b32 v3, 5, v0")
    A("v_bfe_u32 v4, v0, 1, 3")
    A("v_xor_b32 v4, v4, v3")
    A("v_lshlrev_b32 v4, 4, v4")
    A("v_lshl_add_u32 v4, v6, 7, v4")
    A("s_mul_i32 s12, s6, 20480")
    A("v_add_u32 v4, s12, v4")
    for ks in range(4):
        if ks == 0:
            A(f"v_mov_b32 v{XA}, v4")
        else:
            A(f"v_xor_b32 v{XA+ks}, {32*ks}, v4")
        A(f"v_add_u32 v{XA+4+ks}, {2*SLOT}, v{XA+ks}")
    A("v_bfe_u32 v5, v0, 2, 2")
    A("v_lshlrev_b32 v6, 7, v5")
    A("v_lshl_add_u32 v6, v3, 10, v6")
    A("v_bfe_u32 v7, v0, 3, 1")
    A("v_xor_b32 v7, s7, v7")
    A("v_lshl_add_u32 v6, v7, 6, v6")
    A("v_bfe_u32 v7, v0, 4, 1")
    A("v_lshl_add_u32 v6, v7, 5, v6")
    A("v_and_b32 v7, 3, v0")
    A(f"v_lshl_add_u32 v{WA}, v7, 3, v6")
    for sl in range(1, 4):
        A(f"v_add_u32 v{WA+sl}, {sl*SLOT}, v{WA}")
    A("s_lshl_b32 s12, s5, 1")
    A("s_add_u32 s12, s12, s7")
    A("s_lshl_b32 s12, s12, 6")
    A("s_lshl_b32 s13, s4, 2")
    A("s_add_u32 s12, s12, s13")
    A("s_lshl_b32 s13, s6, 1")
    A("s_add_u32 s12, s12, s13")
    A("s_lshl_b32 s13, s12, 11")
    A("s_lshl_b32 s12, s12, 12")
    A(f"s_xor_b32 s14, s12, {(2 << 18) if GP else 0}")
    A(f"s_add_u32 s14, s14, {WS_KV}")
    A("s_add_u32 s15, s14, 4096")
    A(f"s_xor_b32 s40, s12, {(4 << 18) if GP else 0}")
    A(f"s_add_u32 s40, s40, {WS_KV}")
    A("s_add_u32 s41, s40, 4096")
    A(f"s_mov_b32 s12, {QSCALE:#x}")
    A("s_waitcnt lgkmcnt(0)")
    srd(A, SRD_WS, P_WS, WS_SIZE)
    A("s_or_b32 s42, s2, s3")
    A("s_cmp_lg_u32 s42, 0")
    A("s_cbranch_scc1 NOINIT")
    srd(A, 56, P_DBG, 256)
    A("v_lshlrev_b32 v8, 8, v0")
    A(f"s_mov_b32 s42, {WS_SYNC}")
    A(f"buffer_store_dword v2, v8, {WS}, s42 offen sc1")
    A("s_waitcnt vmcnt(0)")
    A("v_mov_b32 v8, 1")
    A("buffer_store_dword v8, v2, s[56:59], 0 offen sc1")
    A("NOINIT:")

    def bufof(step):
        return step & 1 if step < 60 else {60: 0, 61: 2, 62: 3, 63: 1}[step]

    def reads(step):
        st, ks = divmod(step, 4)
        slot = st % 4
        b = bufof(step)
        out = []
        xa = XA + 4 * (slot >> 1) + ks
        out.append(f"ds_read_b128 {v(XF[b],4)}, v{xa} offset:{(slot&1)*SLOT}")
        for seg in range(3):
            for j in range(2):
                out.append(f"ds_read_b64_tr_b16 {v(WF[b]+4*seg+2*j,2)}, v{WA+slot} offset:{ks*10240+4096+seg*2048+j*512}")
            if seg == 0:
                out.append(f"ds_read_b128 {v(XF[b]+4,4)}, v{xa} offset:{(slot&1)*SLOT+10240}")
        return out

    def mf(step, seg, rt):
        b = bufof(step)
        d = ACC + 16 * (3 * rt + seg)
        c = '0' if step == 0 else d
        if seg < 2:
            return mfma32(d, WF[b] + 4 * seg, XF[b] + 4 * rt, c)
        return mfma32(d, XF[b] + 4 * rt, WF[b] + 4 * seg, c)

    def epi(seg, rt):
        d = ACC + 16 * (3 * rt + seg)
        out = []
        if seg == 0:
            for r in range(16):
                out.append(f"v_mul_f32 v{d+r}, s12, v{d+r}")
        for r in range(8):
            out.append(f"v_cvt_pk_bf16_f32 v{d+r}, v{d+2*r}, v{d+2*r+1}")
        so, off = [('s13', rt * 2048), (('s14', 's15')[rt], 0), (('s40', 's41')[rt], 2048)][seg]
        out.append(f"buffer_store_dwordx4 {v(d,4)}, v1, {WS}, {so} offen offset:{off}{SC}")
        out.append(f"buffer_store_dwordx4 {v(d+4,4)}, v1, {WS}, {so} offen offset:{off+1024}{SC}")
        return out

    A("s_barrier")
    stamp(A, 1)
    stamp1(A, 1)
    for r in reads(0):
        A(r)
    for step in range(60):
        m = [mf(step, seg, rt) for seg in range(3) for rt in range(2)]
        nxt = reads(step + 1)
        A("s_waitcnt lgkmcnt(0)")
        A(m[0])
        if (step + 1) % 4 == 0:
            A("s_barrier")
            bs = (step + 1) // 4
            P1S = (2, 4, 6, 8, 9, 10, 11, 12, 14)
            if bs in P1S:
                stamp1(A, 2 + P1S.index(bs))
        if step == 59:
            nxt = reads(60) + reads(61) + reads(62)
            gaps = [nxt[0:4], nxt[4:8], nxt[8:12], nxt[12:16], nxt[16:20], nxt[20:24]]
        else:
            gaps = [nxt[0:3], nxt[3:5], nxt[5:7], nxt[7:8], [], []]
        for x in gaps[0]:
            A(x)
        for k in range(1, 6):
            A(m[k])
            for x in gaps[k]:
                A(x)
    for x in reads(63):
        A(x)
    order = [(1, 0), (1, 1), (2, 0), (2, 1), (0, 0), (0, 1)]
    pend = []
    A("s_waitcnt lgkmcnt(8)")
    for ti, (seg, rt) in enumerate(order):
        if ti >= 2:
            pend = epi(*order[ti - 2])
        for k, step in enumerate(range(60, 64)):
            if ti == 0 and k == 3:
                A("s_waitcnt lgkmcnt(0)")
            A(mf(step, seg, rt))
            if ti == 0 and k == 3:
                A("s_barrier")
                stamp1(A, 11)
            if ti == 1 and k in (1, 2):
                A("s_nop 3")
            n = (len(pend) + (3 - k)) // (4 - k)
            for x in pend[:n]:
                A(x)
            pend = pend[n:]
    stamp(A, 2)
    A(f"v_mov_b32 v3, {CNT_LDS}")
    A("v_mov_b32 v216, 0x7fff0000")
    A("v_mov_b32 v4, 1")
    A("v_xor_b32 v6, s5, v0")
    A("v_lshlrev_b32 v6, 8, v6")
    A(f"s_mov_b32 s7, {WS_SYNC+C1*256}")
    for x in epi(0, 0) + epi(0, 1):
        A(x)
    A("s_and_b32 s4, s2, 7")
    A("s_lshl_b32 s4, s4, 2")
    A("s_lshr_b32 s5, s2, 6")
    A("s_or_b32 s4, s4, s5")
    A("s_lshr_b32 s42, s4, 1")
    A("s_lshl_b32 s42, s42, 8")
    A(f"s_add_u32 s42, s42, {WS_SYNC+C1*256}")
    A("s_lshl_b32 s12, s4, 18")
    A("s_lshl_b32 s13, s3, 12")
    A("s_add_u32 s12, s12, s13")
    A(f"s_add_u32 s12, s12, {WS_KV}")
    A("s_bfe_u32 s5, s2, 0x30003")
    A("s_lshl_b32 s14, s4, 17")
    A("s_lshl_b32 s15, s5, 14")
    A("s_add_u32 s14, s14, s15")
    A("s_add_u32 s14, s14, s13")
    A("s_waitcnt vmcnt(0)")
    A("s_mov_b64 exec, 1")
    A("ds_add_rtn_u32 v5, v3, v4")
    A("s_waitcnt lgkmcnt(0)")
    A("v_readfirstlane_b32 s6, v5")
    A("s_mov_b64 exec, -1")
    A("s_cmp_lg_u32 s6, 3")
    stamp(A, 3)
    A("s_cbranch_scc1 NOSIG1")
    signal(A, 's7', 6, 4, 3 if GP else 1)
    poll(A, 'POLL1', SRD_WS, 's42', 48 if GP else 16, 2, 5, 6)
    A("v_mov_b32 v4, 64")
    A("ds_write_b32 v3, v4")
    A("s_branch GO1")
    A("NOSIG1:")
    A("s_mov_b32 s98, 0")
    A("LW1:")
    A("s_sleep 1")
    A("ds_read_b32 v5, v3")
    A("s_add_u32 s98, s98, 1")
    A("s_cmp_ge_u32 s98, 0x400000")
    A("s_cbranch_scc1 GO1")
    A("s_waitcnt lgkmcnt(0)")
    A("v_readfirstlane_b32 s6, v5")
    A("s_cmp_lg_u32 s6, 64")
    A("s_cbranch_scc1 LW1")
    A("GO1:")
    A("s_waitcnt lgkmcnt(0)")
    stamp(A, 4)
    A(f"s_add_u32 m0, s13, {RING}")
    A("s_nop 0")
    for j in range(4):
        A(f"buffer_load_dwordx4 v1, {WS}, s12 offen offset:{j*1024}{SC} lds")
    A(f"s_add_u32 m0, s13, {RING+3*16384}")
    A("s_add_u32 s12, s12, 16384")
    for j in range(4):
        A(f"buffer_load_dwordx4 v1, {WS}, s14 offen offset:{j*1024}{SC} lds")
    A(f"s_add_u32 m0, s13, {RING+16384}")
    A("s_nop 0")
    for j in range(4):
        A(f"buffer_load_dwordx4 v1, {WS}, s12 offen offset:{j*1024}{SC} lds")

    A("P2_JOIN:")
    Q, NM, S, P, O, L, KF, VF, ON = 4, 16, [32, 48], 64, 72, 88, [92, 100], [108, 116], 124
    RB, WOA = 128, 129
    GA = 130
    ZR, QR, WL = 136, 144, 152
    A("s_and_b32 s4, s2, 7")
    A("s_lshl_b32 s4, s4, 2")
    A("s_lshr_b32 s5, s2, 6")
    A("s_or_b32 s4, s4, s5")
    A("s_bfe_u32 s5, s2, 0x30003")
    A("s_lshl_b32 s6, s4, 18")
    A(f"s_add_u32 s6, s6, {WS_KV}")
    A("s_lshl_b32 s13, s3, 11")
    A("s_add_u32 s12, s6, s13")
    A("s_add_u32 s12, s12, 32768")
    A(f"s_add_u32 s13, s13, {RING}")
    A("s_lshl_b32 s14, s5, 3")
    A("s_add_u32 s14, s14, s3")
    A("s_lshl_b32 s15, s14, 5")
    A("s_add_u32 s15, s15, s4")
    A("s_lshl_b32 s15, s15, 11")
    A(f"s_add_u32 s15, s15, {WS_OF}")
    A(f"v_add_u32 v{RB}, {RING}, v1")
    A(f"v_add_u32 v3, s13, v1")
    A("s_bfe_u32 s40, s2, 0x20001")
    A("s_lshl_b32 s40, s40, 2")
    A("s_bfe_u32 s41, s2, 0x20003")
    A("s_or_b32 s40, s40, s41")
    A("s_and_b32 s41, s2, 1")
    A("s_lshl_b32 s41, s41, 3")
    A("s_lshr_b32 s42, s2, 5")
    A("s_or_b32 s41, s41, s42")
    srd(A, 44, P_WO, 2 * MB)
    srd(A, 52, P_Q, 4 * MB)
    A("v_lshrrev_b32 v5, 3, v0")
    A("v_and_b32 v6, 7, v0")
    A("v_bfe_u32 v7, v0, 4, 1")
    A("v_lshlrev_b32 v7, 1, v7")
    A("v_xor_b32 v7, v7, v6")
    A("v_lshlrev_b32 v7, 4, v7")
    A(f"v_lshl_add_u32 v{WOA}, v5, 11, v7")
    A("s_lshl_b32 s42, s3, 14")
    A("s_lshl_b32 s43, s41, 7")
    A("s_add_u32 s42, s42, s43")
    A("s_lshl_b32 s43, s3, 10")
    A("s_lshr_b32 s50, s2, 4")
    A("s_lshl_b32 s50, s50, 7")
    A("s_lshl_b32 s51, s3, 4")
    A("s_add_u32 s50, s50, s51")
    A("s_and_b32 s51, s2, 15")
    A("s_lshl_b32 s56, s51, 8")
    A(f"s_add_u32 s56, s56, {WS_SYNC+CZ*256}")
    A("s_lshl_b32 s51, s51, 6")
    A(f"v_lshl_add_u32 v{GA}, v5, 1, s50")
    A(f"v_lshl_add_u32 v{GA+1}, v6, 3, s51")
    A(f"v_lshlrev_b32 v{GA+2}, 1, v{GA}")
    A(f"v_lshl_add_u32 v{GA+2}, v{GA+1}, 12, v{GA+2}")
    A(f"v_lshlrev_b32 v{GA+3}, 1, v{GA+1}")
    A(f"v_lshl_add_u32 v{GA+4}, v{GA}, 11, v{GA+3}")
    A(f"v_lshl_add_u32 v{GA+3}, v{GA}, 12, v{GA+3}")
    IDX = 15
    SM = f"v_smfmac_f32_16x16x64_bf16 {v(L,4)}, {v(ON,4)}, {v(P,8)}, v{IDX}"
    A("v_bfe_u32 v5, v0, 2, 1")
    A("v_cmp_eq_u32 vcc, 0, v5")
    A("v_mov_b32 v6, 0x3f803f80")
    A("v_and_b32 v5, 1, v0")
    A(f"v_cndmask_b32 v{ON}, 0, v6, vcc")
    A(f"v_xor_b32 v{ON+2}, v6, v{ON}")
    A(f"v_mov_b32 v{ON+1}, v{ON}")
    A(f"v_mov_b32 v{ON+3}, v{ON+2}")
    A(f"v_mul_u32_u24 v{IDX}, 0xaaaa, v5")
    A(f"v_add_u32 v{IDX}, 0x4444, v{IDX}")
    for r in range(4):
        A(f"v_mov_b32 v{P+r}, 0")
    for r in range(16):
        A(f"v_mov_b32 v{O+r}, 0")
    for r in range(4):
        A(f"v_mov_b32 v{L+r}, 0")
    for r in range(4):
        A(f"v_mov_b32 v{P+4+r}, 0")
        A(f"v_mov_b32 v{VF[1]+4+r}, 0")
        A(f"v_mov_b32 v{VF[1]+r}, 0")

    def rdK(t):
        b = t & 1
        o = (t % 16) * 4096
        return [f"ds_read_b128 {v(KF[b],4)}, v{RB} offset:{o}", f"ds_read_b128 {v(KF[b]+4,4)}, v{RB} offset:{o+1024}"]

    def rdV(t):
        b = t & 1
        o = (t % 16) * 4096 + 2048
        return [f"ds_read_b128 {v(VF[b],4)}, v{RB} offset:{o}", f"ds_read_b128 {v(VF[b]+4,4)}, v{RB} offset:{o+1024}"]

    def issue_kv(slot):
        return [f"s_add_u32 m0, s13, {slot*16384}", "s_nop 0",
                f"buffer_load_dwordx4 v1, {WS}, s12 offen{SC} lds",
                f"buffer_load_dwordx4 v1, {WS}, s12 offen offset:1024{SC} lds",
                "s_add_u32 s12, s12, 16384"]

    A("s_cmp_ge_u32 s3, 4")
    A("s_cbranch_scc1 P2_NOW")
    A("s_waitcnt vmcnt(4)")
    A("P2_NOW:")
    stamp(A, 5)
    A("s_barrier")
    stamp(A, 6)
    A(f"ds_read_b128 {v(Q,4)}, v3 offset:{3*16384}")
    A(f"ds_read_b128 {v(Q+4,4)}, v3 offset:{3*16384+1024}")
    for x in rdK(0) + rdK(1) + rdV(0):
        A(x)
    for x in issue_kv(2):
        A(x)
    A("s_waitcnt lgkmcnt(4)")
    A(mfma32(S[1], KF[0], Q, '0'))
    A(mfma32(S[1], KF[0] + 4, Q + 4, S[1]))
    A("s_nop 7")
    A("s_nop 3")
    s1 = S[1]
    A(f"v_max3_f32 v12, v{s1}, v{s1+1}, v{s1+2}")
    for r in range(3, 15, 2):
        A(f"v_max3_f32 v12, v12, v{s1+r}, v{s1+r+1}")
    A(f"v_max_f32 v12, v12, v{s1+15}")
    A("v_mov_b32 v13, v12")
    A("s_nop 1")
    A("v_permlane32_swap_b32 v12, v13")
    A("v_max_f32 v12, v12, v13")
    for r in range(16):
        A(f"v_xor_b32 v{NM+r}, 0x80000000, v12")
    for r in range(16):
        A(f"v_sub_f32 v{S[0]+r}, v{s1+r}, v12")
    A("s_cmp_lt_u32 s3, 4")
    A("s_cselect_b64 vcc, -1, 0")
    A("s_mov_b32 s14, 0")
    A("s_mov_b32 s48, s42")
    A("s_mov_b32 s49, s43")
    stamp(A, 7)

    vq = [('kv', 1)] * 4 + [('kv', 2)] * 2

    def vwait(tag):
        if tag not in vq:
            return "s_nop 0"
        lastp = max(i for i, x in enumerate(vq) if x == tag)
        n_ = len(vq) - 1 - lastp
        del vq[:lastp + 1]
        return f"s_waitcnt vmcnt({n_})"

    def slot_a(T):
        j = (T + 2) // 4 + 2
        if T % 4 == 2 and j <= 15:
            vq.append(('kv', j))
            return [f"s_add_u32 m0, s13, {(j%4)*16384}", "s_nop 0", f"buffer_load_dwordx4 v1, {WS}, s12 offen{SC} lds"]
        if T % 4 == 3 and (T + 1) // 4 + 2 <= 15:
            vq.append(('kv', (T + 1) // 4 + 2))
            return [f"buffer_load_dwordx4 v1, {WS}, s12 offen offset:1024{SC} lds", "s_add_u32 s12, s12, 16384"]
        if T % 4 == 0 and 4 <= T <= 48:
            vq.append('wo')
            return ["s_mov_b32 m0, s49", "s_add_u32 s49, s49, 8192",
                    f"buffer_load_dwordx4 v{WOA}, s[44:47], s48 offen lds", f"s_add_u32 s48, s48, {64*2048}"]
        if T == 49:
            vq.append('cz')
            return [f"buffer_load_dword v{GA+5}, v2, {WS}, s56 offen sc1"]
        if 52 <= T <= 55:
            i = T - 52
            kh, hf = divmod(i, 2)
            vq.append('wl')
            return [f"s_add_u32 s48, s42, {(512*kh+384+64*hf)*2048}",
                    f"buffer_load_dwordx4 {v(WL+4*i,4)}, v{WOA}, s[44:47], s48 offen"]
        if 56 <= T <= 59:
            j2 = 2 * (T - 56)
            vq.append('z')
            return [f"s_mov_b32 s51, {WS_ZT+4096*j2}", f"buffer_load_dword v{ZR+j2}, v{GA+2}, {WS}, s51 offen sc1"]
        return []

    def slot_e(T):
        if 2 <= T <= 9 and 'noA' not in OPT:
            G = T - 2
            vq.append('zt')
            return [f"buffer_store_dwordx2 {v(200+2*G,2)}, v216, {WS}, 0 offen offset:{512*G}{SC}"]
        if T in (52, 53):
            i = T - 52
            vq.append('q')
            return [f"buffer_load_dwordx4 {v(QR+4*i,4)}, v{GA+4}, s[52:55], 0 offen offset:{2048*i}{NT}"]
        if 56 <= T <= 59:
            j2 = 2 * (T - 56) + 1
            vq.append('z')
            return [f"s_mov_b32 s51, {WS_ZT+4096*j2}", f"buffer_load_dword v{ZR+j2}, v{GA+2}, {WS}, s51 offen sc1"]
        return []

    def tile(B, T, grp):
        t = T % 16
        c, n = S[t & 1], S[(t + 1) & 1]
        kb, vp = KF[(t + 1) & 1], VF[(t + 1) & 1]
        do_qk = T < 63
        rk = rdK(t + 2) if T < 62 else []
        rv = rdV(t + 1) if T < 63 else []
        E = lambda r: f"v_exp_f32 v{c+r}, v{c+r}"
        C = lambda r: f"v_cvt_pk_bf16_f32 v{P+r}, v{c+2*r}, v{c+2*r+1}"
        B("s_setprio 0")
        B("s_waitcnt lgkmcnt(0)")
        if do_qk:
            B(mfma32(n, kb, Q, NM))
        if T == 55:
            B(vwait('cz'))
            B(f"v_readfirstlane_b32 s50, v{GA+5}")
            B("s_cmp_eq_u32 s50, 16")
            B("s_cbranch_scc1 POLLZ_OK")
            poll(B, 'POLLZ', SRD_WS, 's56', 16, 2, GA + 5, 50)
        for x in slot_a(T):
            B(x)
        B(mfma32(O, vp, P, O))
        B(mfma32(O, vp + 4, P + 4, O))
        for x in rk:
            B(x)
        if do_qk:
            B(mfma32(n, kb + 4, Q + 4, n))
        for x in rv:
            B(x)
        B(SM)
        for x in slot_e(T):
            B(x)
        if grp == 'mid' and t == 6:
            assert 'zt' not in vq
            B("s_lshl_b32 s7, s14, 3")
            B("s_add_u32 s7, s7, s3")
            B("s_cmp_lg_u32 s7, 4")
            B("s_cbranch_scc1 NOSIGZ")
            B("s_lshr_b32 s7, s2, 4")
            B("s_lshl_b32 s7, s7, 8")
            B(f"s_add_u32 s7, s7, {WS_SYNC+CZ*256}")
            signal(B, 's7', 2, 12)
            B("NOSIGZ:")
        if grp == 'mid' and t == 10:
            B(f"s_add_u32 s7, s42, {512*2048}")
            B("s_cmp_eq_u32 s14, 0")
            B("s_cselect_b32 s48, s7, s48")
        nb = t % 4 == 1 and T + 1 < 62
        if nb:
            w = vwait(('kv', (T + 3) // 4))
            if grp == 'mid':
                w = "s_waitcnt vmcnt(4)" if w != "s_nop 0" else w
            B(f"s_cbranch_vccnz SKB_{grp}_{t}")
            B(w)
            B("s_barrier")
            B(f"SKB_{grp}_{t}:")
        for r in range(8):
            B(E(2 * r)); B(E(2 * r + 1))
            if 1 <= r < 7:
                B(C(r - 1))
            if r == 1:
                B("s_setprio 2")
        B(C(6))
        B(C(7))
        if nb:
            B(f"s_cbranch_vccz SKA_{grp}_{t}")
            B(w)
            B("s_barrier")
            B(f"SKA_{grp}_{t}:")

    for T in range(16):
        tile(A, T, 'first')
    A("P2_LOOP:")
    n0 = len(A.ins)
    for T in range(16, 32):
        tile(A, T, 'mid')
    body = [i.text for i in A.ins[n0:]]
    B2 = Asm()
    for T in range(32, 48):
        tile(B2, T, 'mid')
    assert body == [i.text for i in B2.ins]
    A("s_add_u32 s14, s14, 1")
    A("s_cmp_lt_u32 s14, 2")
    A("s_cbranch_scc1 P2_LOOP")
    for T in range(48, 64):
        tile(A, T, 'last')
    A("s_setprio 0")
    A("s_waitcnt lgkmcnt(0)")
    A(mfma32(O, VF[1], P, O))
    A(mfma32(O, VF[1] + 4, P + 4, O))
    A(SM)
    stamp(A, 8)
    srd(A, 52, P_OUT, 8 * MB)
    A(f"s_mov_b32 s50, {L_THR:#x}")
    A("s_lshl_b32 s51, s5, 8")
    A(f"s_add_u32 s51, s51, {WS_SYNC+C2*256}")
    A("s_nop 0")
    A(f"v_add_f32 v{L}, v{L}, v{L+1}")
    A(f"v_cmp_nge_f32 vcc, s50, v{L}")
    A(f"v_rcp_f32 v12, v{L}")
    A("s_nop 1")
    A("s_cbranch_vccnz P2_SLOW")
    A("P2_FIN:")
    for r in range(16):
        A(f"v_mul_f32 v{O+r}, v{O+r}, v12")
    for r in range(8):
        A(f"v_cvt_pk_bf16_f32 v{P+r}, v{O+2*r}, v{O+2*r+1}")
    A(f"buffer_store_dwordx4 {v(P,4)}, v1, {WS}, s15 offen{SC}")
    A(f"buffer_store_dwordx4 {v(P+4,4)}, v1, {WS}, s15 offen offset:1024{SC}")
    A("s_waitcnt vmcnt(2)")
    T = 16
    for i in range(2):
        for dw in range(4):
            for hi in range(2):
                zr = ZR + 2 * dw + hi
                A(f"v_and_b32 v{T+hi}, 0xffff0000, v{zr}" if i else f"v_lshlrev_b32 v{T+hi}, 16, v{zr}")
            A(f"v_lshlrev_b32 v{T+2}, 16, v{QR+4*i+dw}")
            A(f"v_and_b32 v{T+3}, 0xffff0000, v{QR+4*i+dw}")
            A(f"v_mul_f32 v{T}, v{T}, v{T+2}")
            A(f"v_mul_f32 v{T+1}, v{T+1}, v{T+3}")
            A(f"v_cvt_pk_bf16_f32 v{200+4*i+dw}, v{T}, v{T+1}")
    OFR = 64
    ACC = 32
    WF = [16, 24]
    A("s_and_b32 s4, s3, 3")
    A("s_lshr_b32 s5, s3, 2")
    A("s_lshl_b32 s12, s40, 2")
    A("s_add_u32 s12, s12, s4")
    A("s_lshl_b32 s12, s12, 16")
    A("s_lshl_b32 s13, s5, 15")
    A("s_add_u32 s12, s12, s13")
    A(f"s_add_u32 s12, s12, {WS_OF}")
    A("v_lshrrev_b32 v4, 5, v0")
    A("v_bfe_u32 v5, v0, 2, 2")
    A("v_lshl_add_u32 v5, v4, 2, v5")
    A("v_lshlrev_b32 v5, 7, v5")
    A("v_and_b32 v6, 1, v0")
    A("v_lshl_add_u32 v5, v6, 6, v5")
    A("v_bfe_u32 v6, v0, 4, 1")
    A("v_lshl_add_u32 v5, v6, 4, v5")
    A("v_bfe_u32 v6, v0, 1, 1")
    A("v_lshl_add_u32 v5, v6, 3, v5")
    A("v_bfe_u32 v6, v0, 3, 1")
    A("v_xor_b32 v6, s5, v6")
    A("v_lshl_add_u32 v5, v6, 5, v5")
    A("s_mul_i32 s13, s5, 49152")
    A("v_add_u32 v12, s13, v5")
    A("v_xor_b32 v13, 32, v12")
    A("s_lshl_b32 s13, s5, 14")
    A(f"s_add_u32 s13, s13, {RING}")
    A("v_add_u32 v14, s13, v5")
    A("v_xor_b32 v15, 32, v14")
    A("s_lshl_b32 s13, s3, 12")
    A(f"s_add_u32 s13, s13, {RING+32768}")
    A("v_add_u32 v6, s13, v1")
    A("v_xor_b32 v7, 0x4000, v6")
    A("v_and_b32 v5, 31, v0")
    A("v_lshlrev_b32 v5, 12, v5")
    A("v_lshl_add_u32 v5, v4, 6, v5")
    A("s_lshl_b32 s14, s40, 19")
    A("s_lshl_b32 s13, s4, 17")
    A("s_add_u32 s14, s14, s13")
    A("s_lshl_b32 s13, s41, 7")
    A("s_add_u32 s14, s14, s13")
    A("s_lshl_b32 s13, s5, 5")
    A("s_add_u32 s14, s14, s13")
    A("s_add_u32 s14, s14, 2048")
    A("s_lshr_b32 s7, s40, 1")
    A("s_lshl_b32 s7, s7, 8")
    A(f"s_add_u32 s7, s7, {WS_SYNC+C2*256}")
    A(f"v_add_u32 v8, s43, v{RB}")
    A("s_waitcnt vmcnt(0)")
    A("s_barrier")
    A("s_cmp_lg_u32 s3, 0")
    A("s_cbranch_scc1 NOSIG2")
    signal(A, 's51', 2, 9)
    A("NOSIG2:")
    stamp(A, 9)
    for i in range(4):
        A(f"ds_write_b128 v8, {v(WL+4*i,4)} offset:{8192*i}")
    A("s_movk_i32 s13, 0x1000")
    A("s_cmp_lg_u32 s3, 0")
    A("s_cbranch_scc0 POLL2_GO")
    A(f"buffer_store_dwordx4 v[200:203], v{GA+3}, s[52:55], 0 offen")
    A(f"buffer_store_dwordx4 v[204:207], v{GA+3}, s[52:55], s13 offen")
    A("s_branch POLL2_DONE")
    A("POLL2_GO:")
    poll(A, 'POLL2', SRD_WS, 's7', 32, 2, 3, 50)
    A(f"buffer_store_dwordx4 v[200:203], v{GA+3}, s[52:55], 0 offen")
    A(f"buffer_store_dwordx4 v[204:207], v{GA+3}, s[52:55], s13 offen")
    A("POLL2_DONE:")
    A("s_waitcnt lgkmcnt(0)")
    stamp(A, 10)
    A("s_barrier")
    for i in range(32):
        A(f"buffer_load_dwordx4 {v(OFR+4*i,4)}, v1, {WS}, s12 offen offset:{(i%4)*1024}{SC}")
        if i % 4 == 3 and i < 31:
            A("s_add_u32 s12, s12, 4096")

    def reads3(step):
        b = step & 1
        out = []
        base, rel = (12, step) if step < 24 else (14, step - 24)
        for nt in range(2):
            for j in range(2):
                out.append(f"ds_read_b64_tr_b16 {v(WF[b]+4*nt+2*j,2)}, v{base+nt} offset:{(16*rel+8*j)*128}")
        return out

    for x in reads3(0):
        A(x)
    for step in range(32):
        nxt = reads3(step + 1) if step < 31 else []
        for x in nxt:
            A(x)
        A(f"s_waitcnt vmcnt({31-step}) lgkmcnt({len(nxt)})")
        b = step & 1
        for nt in range(2):
            c = '0' if step == 0 else ACC + 16 * nt
            A(mfma32(ACC + 16 * nt, WF[b] + 4 * nt, OFR + 4 * step, c))
    A("s_nop 7")
    A("s_nop 3")
    for i in range(4):
        A(f"ds_write_b128 v6, {v(ACC+16+4*i,4)} offset:{1024*i}")
    A("s_waitcnt lgkmcnt(0)")
    A("s_barrier")
    for i in range(4):
        A(f"ds_read_b128 {v(OFR+4*i,4)}, v7 offset:{1024*i}")
    for i in range(4):
        A(f"s_waitcnt lgkmcnt({3-i})")
        for r in range(4):
            A(f"v_add_f32 v{ACC+4*i+r}, v{ACC+4*i+r}, v{OFR+4*i+r}")
    for r in range(8):
        A(f"v_cvt_pk_bf16_f32 v{16+r}, v{ACC+2*r}, v{ACC+2*r+1}")
    A("buffer_store_dwordx4 v[16:19], v5, s[52:55], s14 offen")
    A("buffer_store_dwordx4 v[20:23], v5, s[52:55], s14 offen offset:16")
    stamp(A, 11)
    dump_stamps(A, 12, 8)
    A("K_END:")
    A("s_endpgm")

    A("P2_SLOW:")
    A("v_mov_b32 v12, 0xff7fffff")
    A("s_mov_b32 s50, s6")
    A("s_mov_b32 s49, 0")
    A("P2_SLOW1:")
    A(f"buffer_load_dwordx4 {v(KF[0],4)}, v1, {WS}, s50 offen{SC}")
    A(f"buffer_load_dwordx4 {v(KF[0]+4,4)}, v1, {WS}, s50 offen offset:1024{SC}")
    A("s_waitcnt vmcnt(0)")
    A(mfma32(s1, KF[0], Q, '0'))
    A(mfma32(s1, KF[0] + 4, Q + 4, s1))
    A("s_nop 7")
    A("s_nop 3")
    for r in range(0, 16, 2):
        A(f"v_max3_f32 v12, v12, v{s1+r}, v{s1+r+1}")
    A("s_add_u32 s50, s50, 4096")
    A("s_add_u32 s49, s49, 1")
    A("s_cmp_lt_u32 s49, 64")
    A("s_cbranch_scc1 P2_SLOW1")
    A("v_mov_b32 v13, v12")
    A("s_nop 1")
    A("v_permlane32_swap_b32 v12, v13")
    A("v_max_f32 v12, v12, v13")
    for r in range(16):
        A(f"v_xor_b32 v{NM+r}, 0x80000000, v12")
        A(f"v_mov_b32 v{O+r}, 0")
    for r in range(4):
        A(f"v_mov_b32 v{L+r}, 0")
    A("s_mov_b32 s50, s6")
    A("s_mov_b32 s49, 0")
    A("P2_SLOW2:")
    A(f"buffer_load_dwordx4 {v(KF[0],4)}, v1, {WS}, s50 offen{SC}")
    A(f"buffer_load_dwordx4 {v(KF[0]+4,4)}, v1, {WS}, s50 offen offset:1024{SC}")
    A(f"buffer_load_dwordx4 {v(VF[0],4)}, v1, {WS}, s50 offen offset:2048{SC}")
    A(f"buffer_load_dwordx4 {v(VF[0]+4,4)}, v1, {WS}, s50 offen offset:3072{SC}")
    A("s_waitcnt vmcnt(0)")
    A(mfma32(s1, KF[0], Q, NM))
    A(mfma32(s1, KF[0] + 4, Q + 4, s1))
    A("s_nop 7")
    A("s_nop 3")
    for r in range(16):
        A(f"v_exp_f32 v{s1+r}, v{s1+r}")
    A("s_nop 0")
    for r in range(8):
        A(f"v_cvt_pk_bf16_f32 v{P+r}, v{s1+2*r}, v{s1+2*r+1}")
    A("s_nop 1")
    A(mfma32(O, VF[0], P, O))
    A(mfma32(O, VF[0] + 4, P + 4, O))
    A(SM)
    A("s_add_u32 s50, s50, 4096")
    A("s_add_u32 s49, s49, 1")
    A("s_cmp_lt_u32 s49, 64")
    A("s_cbranch_scc1 P2_SLOW2")
    A("s_nop 7")
    A("s_nop 3")
    A(f"v_add_f32 v{L}, v{L}, v{L+1}")
    A(f"v_rcp_f32 v12, v{L}")
    A("s_nop 0")
    A("s_branch P2_FIN")
    return kd(NAME, 224, 100)


def build(path):
    hdr = open('concat_heads__ssm_conv_h3__mha_block__prompt.s.ref').read().split('\n')
    hdr = [l for l in hdr if l.startswith(';') and '@launch' not in l]
    A = Asm()
    k = gen(A)
    A.check()
    out = '\n'.join(hdr) + '\n' + f"; @launch grid=(256,1,1) block=(512,1,1) lds={LDS}\n"
    out += '.amdgcn_target "amdgcn-amd-amdhsa--gfx950"\n.text\n' + A.text()
    out += '.section .rodata,"a"\n' + k
    open(path, 'w').write(out)
    ok = {x: True for x in ('POLLU_OK', 'POLL1_OK', 'POLLZ_OK', 'POLL2_OK', 'INITP_OK')}
    loop = {'P2_LOOP': lambda c: c < 1, }
    nos = {x: True for x in ('NOINIT', 'NOSIGU', 'NOSIG1', 'NOSIGZ', 'NOSIG2')}
    skb = {f'SKB_{g}_{t}': True for g in ('first','mid','last') for t in range(16)}
    ska = {f'SKA_{g}_{t}': True for g in ('first','mid','last') for t in range(16)}
    A.check_trace(NAME, {**ok, **loop, **skb, 'P1_COMPUTE': True, 'POLL2_GO': True, 'NOZT': True}, 'compute sig')
    A.check_trace(NAME, {**ok, **loop, **nos, **skb, 'P1_COMPUTE': True, 'NOZT': True}, 'compute nosig')
    A.check_trace(NAME, {**ok, **loop, **ska, 'P2_NOW': True}, 'loader sig late')
    A.check_trace(NAME, {**ok, **loop, **nos, **ska, 'U_EARLY': True, 'P2_NOW': True}, 'loader nosig early')
    A.check_trace(NAME, {**ok, **loop, **nos, **ska, 'P2_NOW': True, 'P2_SLOW': True, 'P2_SLOW1': lambda c: c < 2,
                         'P2_SLOW2': lambda c: c < 2}, 'slow')
    return A


if __name__ == '__main__':
    build(sys.argv[1] if len(sys.argv) > 1 else 'f.s')
```

```python
import sys, struct, math, os
sys.path.insert(0, 'dev')
from asmlib import *

OPT = set(os.environ.get('OPT', '').split(','))
PROF = 'prof' in OPT
NAME = 'concat_heads__ssm_conv_h3__mha_block__prompt_kernel'
LA = int(os.environ.get('LA', 2))
SLP = int(os.environ.get('SLP', 2))
SLP3 = int(os.environ.get('SLP3', 3))

MB = 1 << 20
WS_QF = 0
WS_KV = 4 * MB
WS_OF = 12 * MB
WS_UT = 16 * MB
WS_ZT = 20 * MB
WS_SYNC = 24 * MB
F1 = WS_SYNC
FU = WS_SYNC + 32768
FZ = WS_SYNC + 65536
F2 = WS_SYNC + 98304
CNT_LDS = 4 * (4 * 4160 + 64) + 4 * 4608
WS_SIZE = 24 * MB + 131072
WS_PROF = 32 * MB

P_Q, P_K, P_V, P_SH, P_SSMK, P_D, P_X, P_W, P_WO, P_OUT, P_DBG, P_WS = [16 + 2 * i for i in range(12)]
SRD_WS = 8
WS = f"s[{SRD_WS}:{SRD_WS+3}]"


def f32bits(x):
    return struct.unpack('<I', struct.pack('<f', x))[0]


QSCALE = f32bits(math.log2(math.e) / math.sqrt(32.0))
L_THR = f32bits(2.0 ** 60)

SLOT = 40960
LDS = 163840
HCS = 4160
HC_STRIDE = 4 * HCS + 64
U_BASE = 4 * HC_STRIDE
U_SZ = 4608
RING = 98304
SC = ' sc1'
NT = ' nt'
OM = ' ' + os.environ.get('OM', 'sc1')
GC = int(os.environ.get('GC', 3))
MT = 's_memrealtime' if 'rt' in OPT else 's_memtime'
MK = "s[100:101]"


def srd(A, d, p, size):
    A(f"s_mov_b32 s{d}, s{p}")
    A(f"s_and_b32 s{d+1}, s{p+1}, 0xffff")
    A(f"s_mov_b32 s{d+2}, {size}")
    A(f"s_mov_b32 s{d+3}, 0x00020000")


def mfma32(d, a, b, c):
    cs = c if isinstance(c, str) else v(c, 16)
    return f"v_mfma_f32_32x32x16_bf16 {v(d,16)}, {v(a,4)}, {v(b,4)}, {cs}"


def mfma16(d, a, b, c):
    cs = c if isinstance(c, str) else v(c, 4)
    return f"v_mfma_f32_16x16x32_bf16 {v(d,4)}, {v(a,4)}, {v(b,4)}, {cs}"


def stamp1(A, idx):
    if PROF and 'p1' in OPT:
        A(f"{MT} s[{70+2*idx}:{71+2*idx}]")


def stamp2(A, idx):
    if PROF and 'p2' in OPT:
        A(f"s_memrealtime s[{70+2*idx}:{71+2*idx}]")
        A(f"s_memtime s[{72+2*idx}:{73+2*idx}]")


def stamp3(A, idx):
    if PROF and 'p3' in OPT:
        A(f"s_memrealtime s[{70+2*idx}:{71+2*idx}]")
        A("s_waitcnt lgkmcnt(0)")


def stamp(A, idx):
    if PROF and ('p1' in OPT or 'p2' in OPT) and idx != 0:
        return
    if PROF and 'p3' in OPT:
        idx = {0: 0, 8: 1, 9: 3, 10: 4, 11: 11}.get(idx)
        if idx is None:
            return
    if PROF:
        A(f"{MT} s[{70+2*idx}:{71+2*idx}]")
        if idx == 0:
            A("s_memrealtime s[68:69]")
        else:
            A("s_waitcnt lgkmcnt(0)")


def dump_stamps(A, n, vt=2):
    if not PROF:
        return
    A("s_memrealtime s[62:63]")
    A("s_waitcnt lgkmcnt(0)")
    A(f"s_add_u32 s64, s{P_WS}, {WS_PROF}")
    A(f"s_addc_u32 s65, s{P_WS+1}, 0")
    A("s_and_b32 s65, s65, 0xffff")
    A(f"s_mov_b32 s66, {MB}")
    A("s_mov_b32 s67, 0x00020000")
    A("s_lshl_b32 s60, s2, 10")
    A("s_lshl_b32 s61, s3, 6")
    A("s_add_u32 s60, s60, s61")
    A(f"v_mov_b32 v{vt+1}, 0")
    for i in range(n):
        A(f"v_mov_b32 v{vt}, s{70+2*i}")
        A(f"buffer_store_dword v{vt}, v{vt+1}, s[64:67], s60 offen offset:{4*i}")
    A(f"v_mov_b32 v{vt}, s68")
    A(f"buffer_store_dword v{vt}, v{vt+1}, s[64:67], s60 offen offset:56")
    A(f"v_mov_b32 v{vt}, s62")
    A(f"buffer_store_dword v{vt}, v{vt+1}, s[64:67], s60 offen offset:60")
    A("s_waitcnt vmcnt(0)")


FA = 254


def all_set(A, vt, val=1):
    A(f"v_cmp_eq_u32 {MK}, {val}, v{vt}")
    A(f"s_cmp_eq_u64 {MK}, -1")


def poll(A, name, srds, va, soff, vt, val=1):
    A("s_mov_b32 s98, 0")
    A(f"{name}:")
    A(f"buffer_load_dword v{vt}, v{va}, {srds}, {soff} offen sc1")
    A("s_waitcnt vmcnt(0)")
    all_set(A, vt, val)
    A(f"s_cbranch_scc1 {name}_OK")
    A(f"s_sleep {SLP}")
    A("s_add_u32 s98, s98, 1")
    A("s_cmp_lt_u32 s98, 0x80000")
    A(f"s_cbranch_scc1 {name}")
    A(f"{name}_OK:")


def check_or_poll(A, name, srds, va, soff, vt, val=1):
    all_set(A, vt, val)
    A(f"s_cbranch_scc1 {name}_OK")
    poll(A, name, srds, va, soff, vt, val)


def setflag(A, soff, vt, srds=WS):
    A("s_mov_b64 exec, 1")
    A(f"v_mov_b32 v{vt}, 1")
    A(f"buffer_store_dword v{vt}, v2, {srds}, {soff} offen sc1")
    A("s_mov_b64 exec, -1")


def gen(A):
    A(f".globl {NAME}")
    A(".p2align 8")
    A(f".type {NAME},@function")
    A(f"{NAME}:")
    A("s_cmp_ge_u32 s2, 256")
    A("s_cbranch_scc1 K_END")
    A("s_load_dwordx16 s[16:31], s[0:1], 0")
    A("s_load_dwordx8 s[32:39], s[0:1], 64")
    A("v_lshrrev_b32 v1, 6, v0")
    A("v_and_b32 v0, 63, v0")
    A("v_readfirstlane_b32 s3, v1")
    stamp(A, 0)
    A("s_and_b32 s4, s2, 1")
    A("s_lshl_b32 s4, s4, 3")
    A("s_bfe_u32 s5, s2, 0x30003")
    A("s_or_b32 s4, s4, s5")
    A("s_bfe_u32 s5, s2, 0x20001")
    A("s_lshl_b32 s5, s5, 2")
    A("s_lshr_b32 s6, s2, 6")
    A("s_or_b32 s5, s5, s6")
    A("v_lshlrev_b32 v1, 4, v0")
    A("v_mov_b32 v2, 0")
    A(f"v_and_b32 v{FA}, 15, v0")
    A(f"v_lshlrev_b32 v{FA}, 7, v{FA}")
    A("s_cmp_lt_u32 s3, 4")
    A("s_cbranch_scc0 P1_LOADER")
    if 'nocp' not in OPT:
        A("s_and_b32 s6, s2, 0x30")
        A("s_cbranch_scc1 P1_COMPUTE")
        A("s_getpc_b64 s[40:41]")
        A("s_bfe_u32 s6, s2, 0x10003")
        A("s_lshl_b32 s6, s6, 2")
        A("s_add_u32 s6, s6, s3")
        A("s_min_u32 s6, s6, CODE_CHUNKS")
        A("s_lshl_b32 s6, s6, 13")
        A("v_lshl_add_u32 v3, v0, 7, s6")
        A("global_load_dword v255, v3, s[40:41]")
    A("s_branch P1_COMPUTE")

    A("P1_LOADER:")
    A("s_sub_u32 s6, s3, 4")
    A("v_lshrrev_b32 v3, 3, v0")
    A("v_and_b32 v4, 7, v0")
    A("v_lshrrev_b32 v11, 4, v0")
    A("v_xor_b32 v5, v4, v11")
    A("v_lshlrev_b32 v5, 4, v5")
    A("v_lshl_add_u32 v5, v3, 11, v5")
    A("v_xor_b32 v6, 64, v5")
    A(f"v_add_u32 v6, {15360}, v6")
    A(f"v_add_u32 v7, {2*15360}, v5")
    A(f"v_add_u32 v8, {2*15360}, v6")
    A("v_and_b32 v9, 1, v11")
    A("v_lshlrev_b32 v9, 2, v9")
    A("v_xor_b32 v9, v9, v4")
    A("v_lshlrev_b32 v9, 4, v9")
    A("v_mul_u32_u24 v10, 6144, v3")
    A("v_add_u32 v9, v9, v10")
    A(f"v_add_u32 v10, {49152-1024}, v9")
    A("s_lshl_b32 s12, s4, 18")
    A("s_lshl_b32 s13, s6, 16")
    A("s_add_u32 s96, s12, s13")
    A(f"s_mul_i32 s13, s6, {16*6144}")
    A("s_lshl_b32 s14, s5, 7")
    A("s_add_u32 s97, s13, s14")
    A("s_add_u32 s95, s4, s5")
    A("s_and_b32 s95, s95, 3")
    A("s_mul_i32 s15, s6, 10240")
    A("s_waitcnt lgkmcnt(0)")
    srd(A, 40, P_X, 4 * MB)
    srd(A, 44, P_W, 6 * MB)

    vm = []
    fill = []

    def F(n):
        for _ in range(n):
            if fill:
                A(fill.pop(0))

    def issue_stage(st, nf=0):
        slot = st % 4
        A(f"s_xor_b32 s14, s95, {st}")
        A("s_lshl_b32 s12, s14, 7")
        A(f"s_add_u32 m0, s15, {slot*SLOT}")
        A("s_add_u32 s12, s12, s96")
        for j in range(4):
            A(f"buffer_load_dwordx4 v{5+j}, s[40:43], s12 offen offset:{j*1024} lds")
            F(nf)
        A(f"s_mul_i32 s14, s14, {64*6144}")
        A(f"s_add_u32 m0, s15, {slot*SLOT+4096}")
        A("s_add_u32 s13, s14, s97")
        for t in range(4):
            A(f"buffer_load_dwordx4 v{9+(t&1)}, s[44:47], s13 offen offset:{t*1024} lds")
            F(nf)
        A(f"s_add_u32 m0, s15, {slot*SLOT+8192}")
        A("s_add_u32 s13, s13, 4096")
        for t in range(2):
            A(f"buffer_load_dwordx4 v{9+t}, s[44:47], s13 offen offset:{t*1024} lds")
            F(nf)
        vm.extend([('st', st)] * 10)

    def wait_tag(tag):
        last = max(i for i, t in enumerate(vm) if t == tag)
        A(f"s_waitcnt vmcnt({len(vm) - 1 - last})")
        del vm[:last + 1]

    issue_stage(0)
    issue_stage(1)

    KR, VR, WR, T, OUT = 20, 42, 60, 68, 104
    srd(A, 48, P_K, 4 * MB)
    srd(A, 52, P_V, 4 * MB)
    srd(A, 60, P_SH, 8192)
    A("s_lshr_b32 s7, s2, 4")
    A("s_lshl_b32 s7, s7, 7")
    A("s_lshl_b32 s64, s6, 5")
    A("s_add_u32 s7, s7, s64")
    A("s_and_b32 s64, s2, 15")
    A("s_lshl_b32 s64, s64, 6")
    A("v_lshl_add_u32 v11, v11, 3, s7")
    A("v_and_b32 v12, 15, v0")
    A("v_lshl_add_u32 v12, v12, 2, s64")
    A("v_lshlrev_b32 v13, 1, v12")
    A("v_lshl_add_u32 v15, v11, 11, v13")
    A("v_subrev_u32 v13, 6144, v15")
    A("v_subrev_u32 v14, 2048, v15")
    A("v_lshlrev_b32 v17, 3, v12")
    A("s_movk_i32 s64, 0x1000")
    A("s_movk_i32 s65, 0x2000")
    A("s_movk_i32 s66, 0x3000")
    so4 = ['0', 's64', 's65', 's66']
    rows = [(13, '0', 0), (13, '0', 2048), (14, '0', 0)] + [(15, so4[i // 2], 2048 * (i & 1)) for i in range(8)]

    def prep_loads():
        for i in range(2):
            A(f"buffer_load_dwordx4 {v(WR+4*i,4)}, v17, s[60:63], 0 offen offset:{16*i}")
        for i, (a, so, o) in enumerate(rows):
            A(f"buffer_load_dwordx2 {v(KR+2*i,2)}, v{a}, s[48:51], {so} offen offset:{o}{NT}")
        for i, (a, so, o) in enumerate(rows[3:]):
            A(f"buffer_load_dwordx2 {v(VR+2*i,2)}, v{a}, s[52:55], {so} offen offset:{o}{NT}")
        vm.extend(['prep'] * 21)
    ST_PL = int(os.environ.get('ST_PL', -1))
    if ST_PL < 0:
        prep_loads()
    A("v_sub_u32 v18, 2040, v11")
    A("v_lshlrev_b32 v18, 1, v18")
    A("v_lshl_add_u32 v18, v12, 12, v18")
    A(f"v_add_u32 v18, {WS_UT}, v18")
    srd(A, SRD_WS, P_WS, WS_SIZE)
    srd(A, 56, P_DBG, 256)

    prep = []
    for j in range(4):
        dw, hi = j // 2, j & 1

        def unp(dst, src):
            return f"v_and_b32 v{dst}, 0xffff0000, v{src}" if hi else f"v_lshlrev_b32 v{dst}, 16, v{src}"
        for i in range(11):
            prep.append(unp(T + i, KR + 2 * i + dw))
        prep.append(f"v_lshlrev_b32 v{T+11}, 16, v{WR+2*j}")
        prep.append(f"v_and_b32 v{T+12}, 0xffff0000, v{WR+2*j}")
        prep.append(f"v_lshlrev_b32 v{T+13}, 16, v{WR+2*j+1}")
        prep.append(f"v_and_b32 v{T+14}, 0xffff0000, v{WR+2*j+1}")
        for i in range(8):
            prep.append(f"v_mul_f32 v{T+15+i}, v{T+i}, v{T+14}")
        for t in (2, 1, 0):
            for i in range(8):
                prep.append(f"v_fmac_f32 v{T+15+i}, v{T+3+i-t}, v{T+11+t}")
        for i in range(8):
            prep.append(unp(T + i, VR + 2 * i + dw))
        for i in range(8):
            prep.append(f"v_mul_f32 v{T+15+i}, v{T+15+i}, v{T+i}")
        for i in range(4):
            prep.append(f"v_cvt_pk_bf16_f32 v{OUT+4*j+i}, v{T+15+7-2*i}, v{T+15+6-2*i}")

    def h_loads():
        A("s_lshl_b32 s7, s2, 2")
        A("s_add_u32 s7, s7, s6")
        A("s_lshl_b32 s64, s7, 12")
        A(f"s_mul_i32 s65, s6, {HCS}")
        A(f"s_mul_i32 s66, s6, {U_SZ}")
        A(f"s_add_u32 s66, s66, {U_BASE}")
        srd(A, 48, P_SSMK, 4 * MB)
        srd(A, 52, P_D, 2048)
        HN = NT if 'hnt' in OPT else ''
        for j in range(4):
            A(f"buffer_load_dwordx4 {v(HD+8*j,4)}, v1, s[48:51], s64 offen offset:{1024*j}{HN}")
        for j in range(4):
            A(f"buffer_load_dwordx2 {v(HD+8*j+4,2)}, v1, s[48:51], s64 offen offset:{1024*j+16}{HN}")
        A("buffer_load_dwordx2 v[200:201], v2, s[48:51], s64 offen")
        A("s_lshl_b32 s7, s7, 1")
        A("buffer_load_ushort v202, v2, s[52:55], s7 offen")
        A("v_add_u32 v205, s65, v1")
        vm.extend(['h'] * 10)

    HD = 120

    def h_write(c):
        if c & 1:
            for j in range(4):
                d = HD + 8 * j + (c >> 1)
                o = 208 + 4 * (j & 1)
                for i in range(4):
                    A(f"v_alignbit_b32 v{o+i}, v{d+i+1}, v{d+i}, 16")
                A(f"ds_write_b128 v205, {v(o,4)} offset:{(c-1)*HC_STRIDE+32+1024*j}")
                A("s_nop 7")
            return
        A(f"s_add_u32 s7, s64, {2*c}")
        A(f"s_add_u32 m0, s65, {(c-1)*HC_STRIDE+32}")
        A("s_nop 0")
        for j in range(4):
            A(f"buffer_load_dwordx4 v1, s[48:51], s7 offen offset:{j*1024} lds")
        vm.extend(['cv'] * 4)

    FR, UR, YR = [32, 96], [64, 128], 160
    csetup = [
        "v_lshrrev_b32 v221, 1, v0",
        f"v_mul_u32_u24 v221, {HC_STRIDE}, v221",
        "v_and_b32 v222, 1, v0",
        "v_lshl_add_u32 v221, v222, 4, v221",
        "v_add_u32 v221, s65, v221",
        "v_subrev_u32 v222, 8, v0",
        "v_min_u32 v222, 31, v222",
        "v_lshlrev_b32 v222, 4, v222",
        "v_add_u32 v222, 4096, v222",
        "v_add_u32 v222, s66, v222",
        "v_cmp_gt_u32 vcc, 8, v0"] + [f"v_mov_b32 v{YR+r}, 0" for r in range(32)] + [
        "v_cndmask_b32 v221, v222, v221, vcc",
        "v_and_b32 v222, 3, v0",
        f"v_mul_u32_u24 v223, {HC_STRIDE}, v222",
        "v_lshlrev_b32 v222, 1, v222",
        "v_sub_u32 v222, v223, v222",
        "v_add_u32 v222, 30, v222",
        "v_add_u32 v222, s65, v222",
        "v_lshrrev_b32 v224, 4, v0",
        "v_lshl_add_u32 v223, v224, 4, v223",
        "v_bfe_u32 v225, v0, 2, 2",
        "v_lshl_add_u32 v223, v225, 3, v223",
        "v_add_u32 v223, s65, v223",
        "v_and_b32 v225, 15, v0",
        "v_lshlrev_b32 v226, 5, v225",
        "v_lshlrev_b32 v227, 4, v224",
        "v_sub_u32 v227, v227, v226",
        "v_lshl_add_u32 v226, v224, 3, v226",
        "v_add_u32 v227, 480, v227",
        "v_add_u32 v224, s66, v227",
        f"v_sub_u32 v225, {4088-3584}, v226",
        "v_add_u32 v225, s66, v225",
        f"v_mov_b32 v227, {CNT_LDS}",
    ]
    ST_H = int(os.environ.get('ST_H', 0))
    ST_PC = ST_PL + LA + 1
    NF = int(os.environ.get('NF', 9))
    ST_UT = ST_PC + (268 + 10 * NF - 1) // (10 * NF) - 1
    ST_SIG = ST_UT + LA + 1
    ST_CU = int(os.environ.get('ST_CU', 10))
    ST_UCHK = int(os.environ.get('ST_UCHK', 13))
    assert ST_UCHK >= ST_CU + LA + 1
    assert ST_UT >= ST_H >= ST_PL and ST_SIG < ST_CU and ST_CU + LA + 1 <= 15
    for st in range(16):
        wait_tag(('st', st))
        A("s_barrier")
        if st == ST_PC:
            assert 'prep' not in vm
            fill.extend(prep)
        if st == 0:
            for k in range(2, LA + 1):
                issue_stage(k)
        elif st + LA < 16:
            issue_stage(st + LA, NF)
        if st == ST_PL:
            prep_loads()
        if st == ST_H:
            h_loads()
        if st == ST_UT:
            A("buffer_load_dword v19, v2, s[56:59], 0 offen sc1")
            vm.append('if')
            F(len(fill))
            A("s_movk_i32 s7, 0x1000")
            A("s_movk_i32 s12, 0x2000")
            A("s_movk_i32 s13, 0x3000")
            for j, so in enumerate(['0', 's7', 's12', 's13']):
                A(f"buffer_store_dwordx4 {v(OUT+4*j,4)}, v18, {WS}, {so} offen{SC}")
                vm.append('ut')
        if st == ST_SIG:
            assert 'ut' not in vm and 'if' not in vm
            check_or_poll(A, 'INITP', 's[56:59]', 2, '0', 19, 16)
            A("s_cmp_lg_u32 s6, 0")
            A("s_cbranch_scc1 NOSIGU")
            A("s_and_b32 s7, s2, 15")
            A("s_lshl_b32 s7, s7, 4")
            A("s_lshr_b32 s12, s2, 4")
            A("s_add_u32 s7, s7, s12")
            A("s_lshl_b32 s7, s7, 7")
            A(f"s_add_u32 s7, s7, {FU}")
            setflag(A, 's7', 11)
            A("NOSIGU:")
        if st == ST_CU:
            A("s_lshr_b32 s7, s2, 4")
            A("s_lshl_b32 s7, s7, 11")
            A(f"s_add_u32 s67, s7, {FU}")
            A(f"buffer_load_dword v19, v{FA}, {WS}, s67 offen sc1")
            vm.append('cu')
        if st == ST_UCHK:
            assert 'cu' not in vm
            all_set(A, 19)
            A("s_cbranch_scc0 NOUT")
            A(f"s_add_u32 s12, s64, {WS_UT}")
            A("v_min_u32 v203, 31, v0")
            A("v_lshlrev_b32 v203, 7, v203")
            A(f"buffer_load_dword v204, v203, {WS}, s12 offen sc1")
            A("NOUT:")
        if st == ST_UT + 1:
            fill.extend(csetup)
        if st == 14:
            A(f"buffer_load_dword v19, v{FA}, {WS}, s67 offen sc1")
            vm.append('cu2')
            F(len(fill))
            h_write(2)
            h_write(4)
            h_write(1)
            h_write(3)
    A(f"ds_write_b128 v221, {v(YR,4)}")
    A("ds_write_b32 v227, v2")
    A("v_lshlrev_b32 v220, 16, v202")
    A(f"s_add_u32 s12, s64, {WS_UT}")
    A("s_mov_b32 m0, s66")
    wait_tag('cu2')
    all_set(A, 19)
    A("s_cbranch_scc1 U_EARLY")
    A("s_waitcnt lgkmcnt(0)")
    A("s_barrier")
    poll(A, 'POLLU', WS, FA, 's67', 19)
    for j in range(4):
        A(f"buffer_load_dwordx4 v1, {WS}, s12 offen offset:{j*1024}{SC} lds")
    A("s_branch U_JOIN")
    A("U_EARLY:")
    for j in range(4):
        A(f"buffer_load_dwordx4 v1, {WS}, s12 offen offset:{j*1024}{SC} lds")
    A("s_waitcnt lgkmcnt(0)")
    A("s_barrier")
    A("U_JOIN:")
    stamp(A, 1)
    A("s_waitcnt vmcnt(4)")
    A("ds_write_b64 v222, v[200:201]")
    A(f"s_add_u32 s7, s64, {WS_ZT}")
    A("v_add_u32 v216, s7, v226")
    pairs = [(a, b) for a in range(8) for b in range(8) if a + b <= 7]

    def cF(rho):
        o = []
        for a in range(8):
            o.append(f"ds_read_b64 {v(FR[rho&1]+4*a,2)}, v223 offset:{512*a+64*rho}")
            o.append(f"ds_read_b64 {v(FR[rho&1]+4*a+2,2)}, v223 offset:{512*a+64*rho+8}")
        return o

    def cU(rho):
        return [f"ds_read_b128 {v(UR[rho&1]+4*b,4)}, v224 offset:{512*(7-b)+64*rho}" for b in range(8)]

    for x in cF(0):
        A(x)
    A("s_waitcnt vmcnt(0)")
    for x in cU(0):
        A(x)
    stamp(A, 2)
    A("s_mov_b32 s7, 0")
    A("CONV_LOOP:")
    for rho in range(2):
        A("s_waitcnt lgkmcnt(0)")
        nxt = cU(rho + 1) + cF(rho + 1)
        if rho == 1:
            nxt += ["v_add_u32 v223, 128, v223", "v_add_u32 v224, 128, v224", "s_add_u32 s7, s7, 1", "s_cmp_lt_u32 s7, 4"]
        for i, (a, b) in enumerate(pairs):
            G = a + b
            A(mfma16(YR + 4 * G, FR[rho] + 4 * a, UR[rho] + 4 * b, YR + 4 * G))
            if i < len(nxt):
                A(nxt[i])
    A("s_cbranch_scc1 CONV_LOOP")
    for G in range(8):
        A(f"ds_read_b64 {v(FR[1]+2*G,2)}, v225 offset:{512*(7-G)}")
    A("s_waitcnt lgkmcnt(0)")
    for G in range(8):
        y = YR + 4 * G
        t = UR[1]
        f = FR[1]
        A(f"v_and_b32 v{t}, 0xffff0000, v{f+2*G+1}")
        A(f"v_lshlrev_b32 v{t+1}, 16, v{f+2*G+1}")
        A(f"v_and_b32 v{t+2}, 0xffff0000, v{f+2*G}")
        A(f"v_lshlrev_b32 v{t+3}, 16, v{f+2*G}")
        for r in range(4):
            A(f"v_fmac_f32 v{y+r}, v{t+r}, v220")
        A(f"v_cvt_pk_bf16_f32 v{200+2*G}, v{y}, v{y+1}")
        A(f"v_cvt_pk_bf16_f32 v{201+2*G}, v{y+2}, v{y+3}")
    stamp(A, 3)
    A("s_branch P2_JOIN")

    A("P1_COMPUTE:")
    ACC = 64
    XF = [16, 40, 176, 200]
    WF = [24, 48, 184, 208]
    XA = 160
    WA = 168
    A("s_lshr_b32 s6, s3, 1")
    A("s_and_b32 s7, s3, 1")
    A("v_and_b32 v6, 31, v0")
    A("v_lshrrev_b32 v3, 5, v0")
    A("v_bfe_u32 v4, v0, 1, 3")
    A("v_xor_b32 v4, v4, v3")
    A("v_lshlrev_b32 v4, 4, v4")
    A("v_lshl_add_u32 v4, v6, 7, v4")
    A("s_mul_i32 s12, s6, 20480")
    A("v_add_u32 v4, s12, v4")
    for ks in range(4):
        if ks == 0:
            A(f"v_mov_b32 v{XA}, v4")
        else:
            A(f"v_xor_b32 v{XA+ks}, {32*ks}, v4")
        A(f"v_add_u32 v{XA+4+ks}, {2*SLOT}, v{XA+ks}")
    A("v_bfe_u32 v5, v0, 2, 2")
    A("v_lshlrev_b32 v6, 7, v5")
    A("v_lshl_add_u32 v6, v3, 10, v6")
    A("v_bfe_u32 v7, v0, 3, 1")
    A("v_xor_b32 v7, s7, v7")
    A("v_lshl_add_u32 v6, v7, 6, v6")
    A("v_bfe_u32 v7, v0, 4, 1")
    A("v_lshl_add_u32 v6, v7, 5, v6")
    A("v_and_b32 v7, 3, v0")
    A(f"v_lshl_add_u32 v{WA}, v7, 3, v6")
    for sl in range(1, 4):
        A(f"v_add_u32 v{WA+sl}, {sl*SLOT}, v{WA}")
    A("s_lshl_b32 s12, s5, 1")
    A("s_add_u32 s12, s12, s7")
    A("s_lshl_b32 s7, s5, 4")
    A("s_add_u32 s7, s7, s4")
    A("s_lshl_b32 s7, s7, 7")
    A(f"s_add_u32 s7, s7, {F1}")
    A("s_lshl_b32 s12, s12, 6")
    A("s_lshl_b32 s13, s4, 2")
    A("s_add_u32 s12, s12, s13")
    A("s_lshl_b32 s13, s6, 1")
    A("s_add_u32 s12, s12, s13")
    A("s_lshl_b32 s13, s12, 11")
    A("s_lshl_b32 s14, s12, 12")
    A(f"s_add_u32 s14, s14, {WS_KV}")
    A("s_add_u32 s15, s14, 4096")
    A(f"s_mov_b32 s12, {QSCALE:#x}")
    A("s_waitcnt lgkmcnt(0)")
    srd(A, SRD_WS, P_WS, WS_SIZE)
    A("s_lshl_b32 s42, s3, 4")
    A("s_or_b32 s42, s42, s2")
    A("s_cmp_ge_u32 s42, 16")
    A("s_cbranch_scc1 NOINIT")
    srd(A, 56, P_DBG, 256)
    A("v_lshlrev_b32 v8, 7, v0")
    A("s_lshl_b32 s42, s2, 13")
    A(f"s_add_u32 s42, s42, {WS_SYNC}")
    A(f"buffer_store_dword v2, v8, {WS}, s42 offen sc1")
    A("v_mov_b32 v9, 1")
    A("s_waitcnt vmcnt(0)")
    A("s_mov_b64 exec, 1")
    A("buffer_atomic_add v9, v2, s[56:59], 0 offen")
    A("s_mov_b64 exec, -1")
    A("NOINIT:")

    def bufof(step):
        return step & 1 if step < 60 else {60: 0, 61: 2, 62: 3, 63: 1}[step]

    def reads(step):
        st, ks = divmod(step, 4)
        slot = st % 4
        b = bufof(step)
        out = []
        xa = XA + 4 * (slot >> 1) + ks
        out.append(f"ds_read_b128 {v(XF[b],4)}, v{xa} offset:{(slot&1)*SLOT}")
        for seg in range(3):
            for j in range(2):
                out.append(f"ds_read_b64_tr_b16 {v(WF[b]+4*seg+2*j,2)}, v{WA+slot} offset:{ks*10240+4096+seg*2048+j*512}")
            if seg == 0:
                out.append(f"ds_read_b128 {v(XF[b]+4,4)}, v{xa} offset:{(slot&1)*SLOT+10240}")
        return out

    def mf(step, seg, rt):
        b = bufof(step)
        d = ACC + 16 * (3 * rt + seg)
        c = d
        if seg < 2:
            return mfma32(d, WF[b] + 4 * seg, XF[b] + 4 * rt, c)
        return mfma32(d, XF[b] + 4 * rt, WF[b] + 4 * seg, c)

    def epi(seg, rt):
        d = ACC + 16 * (3 * rt + seg)
        out = []
        if seg == 0:
            for r in range(16):
                out.append(f"v_mul_f32 v{d+r}, s12, v{d+r}")
        for r in range(8):
            out.append(f"v_cvt_pk_bf16_f32 v{d+r}, v{d+2*r}, v{d+2*r+1}")
        so, off = [('s13', rt * 2048), (('s14', 's15')[rt], 0), (('s14', 's15')[rt], 2048)][seg]
        out.append(f"buffer_store_dwordx4 {v(d,4)}, v1, {WS}, {so} offen offset:{off}{SC}")
        out.append(f"buffer_store_dwordx4 {v(d+4,4)}, v1, {WS}, {so} offen offset:{off+1024}{SC}")
        return out

    for r in range(96):
        A(f"v_mov_b32 v{ACC+r}, 0")
    A("s_mov_b32 s6, 0")
    A("s_barrier")
    stamp(A, 1)
    stamp1(A, 1)
    for r in reads(0):
        A(r)

    def gstep(step):
        m = [mf(step, seg, rt) for seg in range(3) for rt in range(2)]
        nxt = reads(step + 1)
        A("s_waitcnt lgkmcnt(0)")
        A(m[0])
        if (step + 1) % 4 == 0:
            A("s_barrier")
            bs = (step + 1) // 4
            P1S = (2, 4, 6, 8, 9, 10, 11, 12, 14)
            if bs in P1S:
                stamp1(A, 2 + P1S.index(bs))
        if step == 59:
            nxt = reads(60) + reads(61) + reads(62)
            gaps = [nxt[0:4], nxt[4:8], nxt[8:12], nxt[12:16], nxt[16:20], nxt[20:24]]
        else:
            gaps = [nxt[0:3], nxt[3:5], nxt[5:7], nxt[7:8], [], []]
        if step == 15 and 'p1' not in OPT:
            gaps[4] = ["s_add_u32 s6, s6, 1", "s_cmp_lt_u32 s6, 3"]
        for x in gaps[0]:
            A(x)
        for k in range(1, 6):
            A(m[k])
            for x in gaps[k]:
                A(x)

    if 'p1' in OPT:
        for step in range(48):
            gstep(step)
    else:
        A("P1_LOOP:")
        for step in range(16):
            gstep(step)
        A("s_cbranch_scc1 P1_LOOP")
    for step in range(48, 60):
        gstep(step)
    for x in reads(63):
        A(x)
    order = [(1, 0), (1, 1), (2, 0), (2, 1), (0, 0), (0, 1)]
    pend = []
    A("s_waitcnt lgkmcnt(8)" if 'p1' not in OPT else "s_waitcnt lgkmcnt(0)")
    for ti, (seg, rt) in enumerate(order):
        if ti >= 2:
            pend = epi(*order[ti - 2])
        for k, step in enumerate(range(60, 64)):
            if ti == 0 and k == 3:
                A("s_waitcnt lgkmcnt(0)")
            A(mf(step, seg, rt))
            if ti == 0 and k == 3:
                A("s_barrier")
                stamp1(A, 11)
            if ti == 1 and k in (1, 2):
                A("s_nop 3")
            n = (len(pend) + (3 - k)) // (4 - k)
            for x in pend[:n]:
                A(x)
            pend = pend[n:]
    stamp(A, 2)
    A("v_mov_b32 v216, 0x7fff0000")
    for x in epi(*order[4]) + epi(*order[5]):
        A(x)
    A("s_and_b32 s4, s2, 7")
    A("s_lshl_b32 s4, s4, 2")
    A("s_lshr_b32 s5, s2, 6")
    A("s_or_b32 s4, s4, s5")
    A("s_lshr_b32 s42, s4, 1")
    A("s_lshl_b32 s42, s42, 11")
    A(f"s_add_u32 s42, s42, {F1}")
    A("s_lshl_b32 s12, s4, 18")
    A("s_lshl_b32 s13, s3, 12")
    A("s_add_u32 s12, s12, s13")
    A(f"s_add_u32 s12, s12, {WS_KV}")
    A("s_bfe_u32 s5, s2, 0x30003")
    A("s_lshl_b32 s14, s4, 17")
    A("s_lshl_b32 s15, s5, 14")
    A("s_add_u32 s14, s14, s15")
    A("s_add_u32 s14, s14, s13")
    A("s_waitcnt vmcnt(0)")
    A(f"v_mov_b32 v3, {CNT_LDS}")
    A("v_mov_b32 v4, 1")
    A("s_mov_b64 exec, 1")
    A("ds_add_rtn_u32 v5, v3, v4")
    A("s_waitcnt lgkmcnt(0)")
    A("v_readfirstlane_b32 s6, v5")
    A("s_mov_b64 exec, -1")
    stamp(A, 3)
    A("s_cmp_lg_u32 s6, 3")
    A("s_cbranch_scc1 NOPOLL1")
    setflag(A, 's7', 4)
    poll(A, 'POLL1', WS, FA, 's42', 5)
    A("v_mov_b32 v4, 64")
    A("ds_write_b32 v3, v4")
    A("s_branch GO1")
    A("NOPOLL1:")
    A("s_mov_b32 s98, 0")
    A("LW1:")
    A("s_sleep 1")
    A("ds_read_b32 v5, v3")
    A("s_add_u32 s98, s98, 1")
    A("s_cmp_ge_u32 s98, 0x800000")
    A("s_cbranch_scc1 GO1")
    A("s_waitcnt lgkmcnt(0)")
    A("v_readfirstlane_b32 s6, v5")
    A("s_cmp_lg_u32 s6, 64")
    A("s_cbranch_scc1 LW1")
    A("GO1:")
    A("s_waitcnt lgkmcnt(0)")
    stamp(A, 4)
    A(f"s_add_u32 m0, s13, {RING}")
    A("s_nop 0")
    for j in range(4):
        A(f"buffer_load_dwordx4 v1, {WS}, s12 offen offset:{j*1024}{SC} lds")
    A(f"s_add_u32 m0, s13, {RING+3*16384}")
    A("s_add_u32 s12, s12, 16384")
    for j in range(4):
        A(f"buffer_load_dwordx4 v1, {WS}, s14 offen offset:{j*1024}{SC} lds")
    A(f"s_add_u32 m0, s13, {RING+16384}")
    A("s_nop 0")
    for j in range(4):
        A(f"buffer_load_dwordx4 v1, {WS}, s12 offen offset:{j*1024}{SC} lds")

    A("P2_JOIN:")
    Q, NM, S, P, O, L, KF, VF, ON = 4, 16, [32, 48], 64, 72, 88, [92, 100], [108, 116], 124
    RB, WOA, IDX = 128, 129, 15
    GA = 130
    ZR, QR, WL, OS = 136, 144, 152, 168
    SM = f"v_smfmac_f32_16x16x64_bf16 {v(L,4)}, {v(ON,4)}, {v(P,8)}, v{IDX}"
    A("s_and_b32 s4, s2, 7")
    A("s_lshl_b32 s4, s4, 2")
    A("s_lshr_b32 s5, s2, 6")
    A("s_or_b32 s4, s4, s5")
    A("s_bfe_u32 s5, s2, 0x30003")
    A("s_lshl_b32 s6, s4, 18")
    A(f"s_add_u32 s6, s6, {WS_KV}")
    A("s_lshl_b32 s13, s3, 11")
    A("s_add_u32 s12, s6, s13")
    A("s_add_u32 s12, s12, 32768")
    A(f"s_add_u32 s13, s13, {RING}")
    A("s_lshl_b32 s14, s5, 3")
    A("s_add_u32 s14, s14, s3")
    A("s_lshl_b32 s15, s14, 5")
    A("s_add_u32 s15, s15, s4")
    A("s_lshl_b32 s58, s5, 5")
    A("s_add_u32 s58, s58, s4")
    A("s_lshl_b32 s58, s58, 7")
    A(f"s_add_u32 s58, s58, {F2}")
    A("s_lshl_b32 s57, s2, 7")
    A(f"s_add_u32 s57, s57, {FZ}")
    A("s_cmp_eq_u32 s3, 4")
    A("s_cselect_b32 s57, s57, 0x7fff0000")
    A("s_cselect_b32 s58, s58, 0x7fff0000")
    A("s_lshl_b32 s15, s15, 11")
    A(f"s_add_u32 s15, s15, {WS_OF}")
    A(f"v_add_u32 v{RB}, {RING}, v1")
    A(f"v_add_u32 v3, s13, v1")
    A("s_bfe_u32 s40, s2, 0x20001")
    A("s_lshl_b32 s40, s40, 2")
    A("s_bfe_u32 s41, s2, 0x20003")
    A("s_or_b32 s40, s40, s41")
    A("s_and_b32 s41, s2, 1")
    A("s_lshl_b32 s41, s41, 3")
    A("s_lshr_b32 s42, s2, 5")
    A("s_or_b32 s41, s41, s42")
    srd(A, 44, P_WO, 2 * MB)
    srd(A, 52, P_Q, 4 * MB)
    A("v_lshrrev_b32 v5, 3, v0")
    A("v_and_b32 v6, 7, v0")
    A("v_bfe_u32 v7, v0, 4, 1")
    A("v_lshlrev_b32 v7, 2, v7")
    A("v_xor_b32 v7, v7, v6")
    A("v_lshlrev_b32 v7, 4, v7")
    A(f"v_lshl_add_u32 v{WOA}, v5, 11, v7")
    A("s_lshl_b32 s48, s3, 14")
    A("s_lshl_b32 s49, s41, 7")
    A("s_add_u32 s48, s48, s49")
    A("s_lshl_b32 s49, s3, 10")
    A("s_mov_b32 s43, s49")
    A("s_and_b32 s59, s3, 3")
    A("s_lshl_b32 s50, s40, 2")
    A("s_add_u32 s59, s59, s50")
    A("s_lshl_b32 s59, s59, 1")
    A("s_lshr_b32 s50, s3, 2")
    A("s_add_u32 s59, s59, s50")
    A("s_lshl_b32 s60, s59, 15")
    A(f"s_add_u32 s60, s60, {WS_OF}")
    A("s_lshr_b32 s59, s40, 1")
    A("s_lshl_b32 s59, s59, 1")
    A("s_add_u32 s59, s59, s50")
    A("s_lshl_b32 s59, s59, 11")
    A(f"s_add_u32 s59, s59, {F2}")
    A("s_lshr_b32 s50, s2, 4")
    A("s_lshl_b32 s50, s50, 7")
    A("s_lshl_b32 s51, s3, 4")
    A("s_add_u32 s50, s50, s51")
    A("s_and_b32 s51, s2, 15")
    A("s_lshl_b32 s56, s51, 11")
    A(f"s_add_u32 s56, s56, {FZ}")
    A("s_lshl_b32 s51, s51, 6")
    A(f"v_lshl_add_u32 v5, v5, 1, s50")
    A(f"v_lshl_add_u32 v6, v6, 3, s51")
    A(f"v_lshlrev_b32 v{GA+2}, 1, v5")
    A(f"v_lshl_add_u32 v{GA+2}, v6, 12, v{GA+2}")
    A(f"v_lshlrev_b32 v{GA+3}, 1, v6")
    A(f"v_lshl_add_u32 v{GA+4}, v5, 11, v{GA+3}")
    A(f"v_lshl_add_u32 v{GA+3}, v5, 12, v{GA+3}")
    A("s_and_b32 s61, s41, 3" if 'norot3' not in OPT else "s_mov_b32 s61, 0")
    A("s_lshl_b32 s61, s61, 2")
    A(f"v_add_u32 v{GA+1}, s61, v0")
    A(f"v_and_b32 v{GA+1}, 15, v{GA+1}")
    A(f"v_lshlrev_b32 v{GA+1}, 7, v{GA+1}")
    A(f"v_add_u32 v{GA}, s43, v{RB}")
    A("s_lshr_b32 s63, 0x00110011, s61")
    A("s_and_b32 s63, s63, 0x1111")
    A("s_cmp_lt_u32 s3, 4")
    A("s_cselect_b32 s63, 0x1111, s63")
    A("s_mov_b32 s27, 0x7fff0000")
    A("s_mov_b32 s28, 0x7fff0000")
    A("v_bfe_u32 v5, v0, 2, 1")
    A("v_cmp_eq_u32 vcc, 0, v5")
    A("v_mov_b32 v6, 0x3f803f80")
    A("v_and_b32 v5, 1, v0")
    A(f"v_cndmask_b32 v{ON}, 0, v6, vcc")
    A(f"v_xor_b32 v{ON+2}, v6, v{ON}")
    A(f"v_mov_b32 v{ON+1}, v{ON}")
    A(f"v_mov_b32 v{ON+3}, v{ON+2}")
    A(f"v_mul_u32_u24 v{IDX}, 0xaaaa, v5")
    A(f"v_add_u32 v{IDX}, 0x4444, v{IDX}")
    for r in range(16):
        A(f"v_mov_b32 v{O+r}, 0")
    for r in range(4):
        A(f"v_mov_b32 v{L+r}, 0")
    for r in range(8):
        A(f"v_mov_b32 v{P+r}, 0")
        A(f"v_mov_b32 v{VF[1]+r}, 0")

    def rdK(t):
        b = t & 1
        o = (t % 16) * 4096
        return [f"ds_read_b128 {v(KF[b],4)}, v{RB} offset:{o}", f"ds_read_b128 {v(KF[b]+4,4)}, v{RB} offset:{o+1024}"]

    def rdV(t):
        b = t & 1
        o = (t % 16) * 4096 + 2048
        return [f"ds_read_b128 {v(VF[b],4)}, v{RB} offset:{o}", f"ds_read_b128 {v(VF[b]+4,4)}, v{RB} offset:{o+1024}"]

    A("s_cmp_lt_u32 s3, 4")
    A("s_cselect_b64 vcc, -1, 0")
    A("s_waitcnt vmcnt(4)")
    stamp(A, 5)
    A("s_barrier")
    stamp(A, 6)
    A(f"ds_read_b128 {v(Q,4)}, v3 offset:{3*16384}")
    A(f"ds_read_b128 {v(Q+4,4)}, v3 offset:{3*16384+1024}")
    for x in rdK(0) + rdK(1) + rdV(0):
        A(x)
    A(f"s_add_u32 m0, s13, {2*16384}")
    A("s_mov_b32 s14, 0")
    A(f"buffer_load_dwordx4 v1, {WS}, s12 offen{SC} lds")
    A(f"buffer_load_dwordx4 v1, {WS}, s12 offen offset:1024{SC} lds")
    A("s_add_u32 s12, s12, 16384")
    A("s_waitcnt lgkmcnt(4)")
    A(mfma32(S[1], KF[0], Q, '0'))
    A(mfma32(S[1], KF[0] + 4, Q + 4, S[1]))
    A("s_nop 7")
    A("s_nop 3")
    s1 = S[1]
    A(f"v_max3_f32 v12, v{s1}, v{s1+1}, v{s1+2}")
    for r in range(3, 15, 2):
        A(f"v_max3_f32 v12, v12, v{s1+r}, v{s1+r+1}")
    A(f"v_max_f32 v12, v12, v{s1+15}")
    A("v_mov_b32 v13, v12")
    A("s_nop 1")
    A("v_permlane32_swap_b32 v12, v13")
    A("v_max_f32 v12, v12, v13")
    for r in range(16):
        A(f"v_sub_f32 v{S[0]+r}, v{s1+r}, v12")
    for r in range(16):
        A(f"v_xor_b32 v{NM+r}, 0x80000000, v12")
    stamp(A, 7)

    vq = [('kv', 1)] * 4 + [('kv', 2)] * 2

    def vwait(tag):
        if tag not in vq:
            return "s_nop 0"
        lastp = max(i for i, x in enumerate(vq) if x == tag)
        n_ = len(vq) - 1 - lastp
        del vq[:lastp + 1]
        return f"s_waitcnt vmcnt({n_})"

    def ofr(i):
        return 176 + 4 * i if i < 16 else (64 + 4 * (i - 16) if i < 28 else 240 + 4 * (i - 28))

    def avail(B=A):
        B(f"v_cmp_eq_u32 {MK}, 1, v{GA+5}")
        B("s_lshr_b32 s25, s100, 1")
        B("s_and_b32 s25, s25, s100")
        B("s_lshr_b32 s26, s25, 2")
        if FIXED:
            B("s_and_b32 s29, s25, s26")
            nextbit(B)
        else:
            B("s_and_b32 s25, s25, s26")
            B("s_and_b32 s25, s25, s24")

    FIXED = 'dyn' not in OPT

    def nextbit(B):
        B("s_sub_u32 s25, 0, s24")
        B("s_and_b32 s25, s25, s24")
        B("s_and_b32 s25, s25, s29")

    def pick(r, B=A):
        B("s_ff1_i32_b32 s26, s25")
        B("s_bitset0_b32 s24, s26")
        if FIXED:
            nextbit(B)
        else:
            B("s_bitset0_b32 s25, s26")
        B("s_add_u32 s26, s26, s61")
        B("s_and_b32 s26, s26, 15")
        B("s_lshl_b32 s27, s26, 11")
        B("s_add_u32 s27, s27, s60")
        B("s_add_u32 s28, s27, 4096")
        B(f"s_lshl_b32 s{16+r}, s26, 12")

    def oload(r, i):
        return f"buffer_load_dwordx4 {v(ofr(8*r+i),4)}, v1, {WS}, s{27+i//4} offen offset:{(i%4)*1024}{SC}"

    def zload(j2):
        vq.append('z')
        return [f"s_mov_b32 s51, {WS_ZT+4096*j2}", f"buffer_load_dword v{ZR+j2}, v{GA+2}, {WS}, s51 offen sc1"]

    fl = f"buffer_load_dword v{GA+5}, v{GA+1}, {WS}, s59 offen sc1"

    def slot_a(T):
        j = (T + 2) // 4 + 2
        if T % 4 == 2 and j <= 15:
            vq.append(('kv', j))
            return [f"s_add_u32 m0, s13, {(j%4)*16384}", "s_nop 0", f"buffer_load_dwordx4 v1, {WS}, s12 offen{SC} lds"]
        if T % 4 == 3 and (T + 1) // 4 + 2 <= 15:
            vq.append(('kv', (T + 1) // 4 + 2))
            return [f"buffer_load_dwordx4 v1, {WS}, s12 offen offset:1024{SC} lds", "s_add_u32 s12, s12, 16384"]
        if T % 4 == 0 and 4 <= T <= 48:
            vq.append('wo')
            return ["s_mov_b32 m0, s49", "s_add_u32 s49, s49, 8192",
                    f"buffer_load_dwordx4 v{WOA}, s[44:47], s48 offen lds", f"s_add_u32 s48, s48, {64*2048}"]
        if T == 49:
            vq.append('cz')
            return [f"buffer_load_dword v{GA+5}, v{FA}, {WS}, s56 offen sc1"]
        if 52 <= T <= 55:
            vq.append('wl')
            return [f"buffer_load_dwordx4 {v(WL+4*(T-52),4)}, v{WOA}, s[44:47], s48 offen",
                    f"s_add_u32 s48, s48, {64*2048}"]
        if T in (56, 57):
            return zload(4 + 2 * (T - 56))
        if T == 58:
            vq.append('f2')
            return [fl]
        if T >= 60:
            vq.append('e')
            return [oload(0, 2 * (T - 60))]
        return []

    def slot_e(T):
        if 2 <= T <= 9:
            G = T - 2
            vq.append('zt')
            return [f"buffer_store_dwordx2 {v(200+2*G,2)}, v216, {WS}, 0 offen offset:{512*G}{SC}"]
        if T in (48, 49):
            i = T - 48
            vq.append('q')
            return [f"buffer_load_dwordx4 {v(QR+4*i,4)}, v{GA+4}, s[52:55], 0 offen offset:{2048*i}{NT}"]
        if 52 <= T <= 55:
            return zload(T - 52)
        if T in (56, 57):
            return zload(5 + 2 * (T - 56))
        if T >= 60:
            vq.append('e')
            return [oload(0, 2 * (T - 60) + 1)] + ([fl] if T == 63 else [])
        return []

    def tile(B, T, grp):
        t = T % 16
        c, n = S[t & 1], S[(t + 1) & 1]
        kb, vp = KF[(t + 1) & 1], VF[(t + 1) & 1]
        do_qk = T < 63
        rk = rdK(t + 2) if T < 62 else []
        rv = rdV(t + 1) if T < 63 else []
        E = lambda r: f"v_exp_f32 v{c+r}, v{c+r}"
        C = lambda r: f"v_cvt_pk_bf16_f32 v{P+r}, v{c+2*r}, v{c+2*r+1}"
        B("s_setprio 0")
        if T in (0, 48, 56):
            stamp2(B, {0: 1, 48: 5, 56: 7}[T])
        B("s_waitcnt lgkmcnt(0)")
        if do_qk:
            B(mfma32(n, kb, Q, NM))
        if T == 52:
            B(vwait('cz'))
            check_or_poll(B, 'POLLZ', WS, FA, 's56', GA + 5)
        if T == 60:
            B(vwait('f2'))
            B("s_movk_i32 s24, 0x1111")
            avail(B)
            B("s_and_b32 s25, s25, s63")
            B("s_cselect_b32 s62, 1, 0")
            B("s_cbranch_scc0 NOE")
            pick(0, B)
            B("NOE:")
        for x in slot_a(T):
            B(x)
        B(mfma32(O, vp, P, O))
        B(mfma32(O, vp + 4, P + 4, O))
        for x in rk:
            B(x)
        if do_qk:
            B(mfma32(n, kb + 4, Q + 4, n))
        for x in rv:
            B(x)
        B(SM)
        for x in slot_e(T):
            B(x)
        if T == 13:
            B(vwait('zt'))
        if T == 15:
            setflag(B, 's57', 12)
            vq.append('fl')
        nb = t % 4 == 1 and T + 1 < 62
        if nb:
            w = vwait(('kv', (T + 3) // 4))
            if grp == 'mid':
                w = "s_waitcnt vmcnt(4)"
            B(f"s_cbranch_vccnz SKB_{grp}_{t}")
            B(w)
            B("s_barrier")
            B(f"SKB_{grp}_{t}:")
        for r in range(8):
            B(E(2 * r)); B(E(2 * r + 1))
            if 1 <= r < 7:
                B(C(r - 1))
            if r == 1:
                B("s_setprio 2")
        B(C(6))
        B(C(7))
        if nb:
            B(f"s_cbranch_vccz SKA_{grp}_{t}")
            B(w)
            B("s_barrier")
            B(f"SKA_{grp}_{t}:")

    for T in range(16):
        tile(A, T, 'first')
    stamp2(A, 3)
    A("P2_LOOP:")
    n0 = len(A.ins)
    for T in range(16, 32):
        tile(A, T, 'mid')
    body = [i.text for i in A.ins[n0:]]
    B2 = Asm()
    for T in range(32, 48):
        tile(B2, T, 'mid')
    assert body == [i.text for i in B2.ins]
    A("s_add_u32 s14, s14, 1")
    A("s_cmp_lt_u32 s14, 2")
    A("s_cbranch_scc1 P2_LOOP")
    for T in range(48, 64):
        tile(A, T, 'last')
    A("s_setprio 0")
    A("s_waitcnt lgkmcnt(0)")
    A(mfma32(O, VF[1], P, O))
    A(mfma32(O, VF[1] + 4, P + 4, O))
    A(SM)
    stamp2(A, 9)
    stamp(A, 8)
    srd(A, 52, P_OUT, 8 * MB)
    A(f"s_mov_b32 s50, {L_THR:#x}")
    A("s_lshr_b32 s5, s3, 2")
    A("s_and_b32 s4, s3, 3")
    A("s_nop 0")
    A(f"v_add_f32 v{L}, v{L}, v{L+1}")
    A(f"v_cmp_nge_f32 vcc, s50, v{L}")
    A(f"v_rcp_f32 v12, v{L}")
    A("s_nop 1")
    A("s_cbranch_vccnz P2_SLOW")
    A("P2_FIN:")
    for r in range(16):
        A(f"v_mul_f32 v{O+r}, v{O+r}, v12")
    for r in range(8):
        A(f"v_cvt_pk_bf16_f32 v{OS+r}, v{O+2*r}, v{O+2*r+1}")
    A(f"buffer_store_dwordx4 {v(OS,4)}, v1, {WS}, s15 offen{SC}")
    A(f"buffer_store_dwordx4 {v(OS+4,4)}, v1, {WS}, s15 offen offset:1024{SC}")

    ACC = 32
    WF = [16, 24]

    def issue3(r):
        pick(r)
        for i in range(8):
            A(oload(r, i))

    A("s_barrier")
    for i in range(4):
        A(f"ds_write_b128 v{GA}, {v(WL+4*i,4)} offset:{8192*i}")
    A("v_lshrrev_b32 v4, 5, v0")
    A("v_bfe_u32 v5, v0, 2, 2")
    A("v_lshl_add_u32 v5, v4, 2, v5")
    A("v_lshlrev_b32 v5, 7, v5")
    A("v_and_b32 v6, 1, v0")
    A("v_lshl_add_u32 v5, v6, 5, v5")
    A("v_bfe_u32 v6, v0, 4, 1")
    A("v_lshl_add_u32 v5, v6, 4, v5")
    A("v_bfe_u32 v6, v0, 1, 1")
    A("v_lshl_add_u32 v5, v6, 3, v5")
    A("v_bfe_u32 v6, v0, 3, 1")
    A("v_xor_b32 v6, s5, v6")
    A("v_lshl_add_u32 v5, v6, 6, v5")
    A("s_lshl_b32 s13, s5, 16")
    A("v_add_u32 v12, s13, v5")
    A("v_xor_b32 v13, 64, v12")
    A("s_lshl_b32 s13, s3, 12")
    A(f"s_add_u32 s13, s13, {RING+32768}")
    A("v_add_u32 v6, s13, v1")
    A("v_xor_b32 v7, 0x4000, v6")
    A("v_bfe_u32 v8, v0, 1, 2")
    A("v_lshlrev_b32 v4, 1, v4")
    A("v_xor_b32 v8, v8, v4")
    A("v_lshlrev_b32 v8, 4, v8")
    A("v_and_b32 v4, 31, v0")
    A("v_lshl_add_u32 v8, v4, 6, v8")
    A("s_xor_b32 s13, s13, 0x4000")
    A("v_add_u32 v8, s13, v8")
    A("v_xor_b32 v9, 16, v8")
    A("v_bfe_u32 v4, v0, 3, 2")
    A("v_and_b32 v5, 3, v0")
    A("v_xor_b32 v4, v4, v5")
    A("v_lshlrev_b32 v4, 4, v4")
    A("v_lshrrev_b32 v5, 2, v0")
    A("v_lshl_add_u32 v5, v5, 12, v4")
    A("s_lshl_b32 s14, s40, 19")
    A("s_lshl_b32 s13, s4, 17")
    A("s_add_u32 s14, s14, s13")
    A("s_lshl_b32 s13, s41, 7")
    A("s_add_u32 s14, s14, s13")
    A("s_lshl_b32 s13, s5, 6")
    A("s_add_u32 s14, s14, s13")
    A("s_add_u32 s14, s14, 2048")
    A("s_add_u32 s15, s14, 65536")
    A("s_movk_i32 s13, 0x1000")
    A("s_mov_b32 s98, 0")

    def reads3(step):
        b = step & 1
        return [f"ds_read_b64_tr_b16 {v(WF[b]+4*nt+2*j,2)}, v{14+nt} offset:{(16*step+8*j)*128}"
                for nt in range(2) for j in range(2)]

    T = 112
    gat = []
    for i in range(2):
        for dw in range(4):
            for hi in range(2):
                zr = ZR + 2 * dw + hi
                gat.append(f"v_and_b32 v{T+hi}, 0xffff0000, v{zr}" if i else f"v_lshlrev_b32 v{T+hi}, 16, v{zr}")
            gat.append(f"v_lshlrev_b32 v{T+2}, 16, v{QR+4*i+dw}")
            gat.append(f"v_and_b32 v{T+3}, 0xffff0000, v{QR+4*i+dw}")
            gat.append(f"v_mul_f32 v{T}, v{T}, v{T+2}")
            gat.append(f"v_mul_f32 v{T+1}, v{T+1}, v{T+3}")
            gat.append(f"v_cvt_pk_bf16_f32 v{QR+4*i+dw}, v{T}, v{T+1}")

    def consume(c, y):
        stamp3(A, 5 + c)
        A(f"v_add_u32 v14, s{16+c}, v12")
        A(f"v_add_u32 v15, s{16+c}, v13")
        for x in reads3(0):
            A(x)
        for step in range(8):
            nxt = reads3(step + 1) if step < 7 else []
            for x in nxt:
                A(x)
            A((f"s_waitcnt vmcnt({y+7-step}) " if y is not None else "s_waitcnt ") + f"lgkmcnt({len(nxt)})")
            for nt in range(2):
                A(mfma32(ACC + 16 * nt, WF[step & 1] + 4 * nt, ofr(8 * c + step),
                         '0' if (c == 0 and step == 0) else ACC + 16 * nt))
                if c == GC:
                    for x in gat[7 * step + 4 * nt:7 * step + 4 + 3 * nt]:
                        A(x)
        if c == GC:
            A(f"buffer_store_dwordx4 {v(QR,4)}, v{GA+3}, s[52:55], 0 offen{OM}")
            A(f"buffer_store_dwordx4 {v(QR+4,4)}, v{GA+3}, s[52:55], s13 offen{OM}")

    A("s_waitcnt vmcnt(2)")
    avail()
    stamp3(A, 2)
    A("s_cmp_eq_u32 s62, 0")
    A("s_cbranch_scc1 P3_W0")
    A("s_cmp_eq_u32 s25, 0")
    A("s_cbranch_scc1 P3_E1")
    issue3(1)
    A("s_mov_b32 s62, 2")
    A("P3_E1:")
    consume(0, None)
    A("s_cmp_eq_u32 s62, 2")
    A("s_cbranch_scc1 P3_E2")
    A("s_waitcnt vmcnt(0)")
    A("P3_E2:")
    A("s_waitcnt vmcnt(8)")
    A("s_barrier")
    setflag(A, 's58', 10)
    stamp(A, 9)
    A("s_cmp_eq_u32 s62, 2")
    A("s_cbranch_scc1 TRY_1_2")
    A("s_branch TRY_1_1")
    A("P3_W0:")
    A("s_waitcnt vmcnt(0) lgkmcnt(0)")
    A("s_barrier")
    setflag(A, 's58', 10)
    stamp(A, 9)

    LK = int(os.environ.get('LK', 2))

    def state(c, n):
        A(f"TRY_{c}_{n}:")
        can = n < 4 and n - c < LK
        if can:
            A("s_cmp_lg_u32 s25, 0")
            A(f"s_cbranch_scc1 ISS_{c}_{n}")
            if c == n:
                A(f"POL_{c}:")
                A(fl)
                A("s_waitcnt vmcnt(0)")
                avail()
                A(f"s_cbranch_scc1 ISS_{c}_{n}")
                A(f"s_sleep {SLP3}")
                A("s_add_u32 s98, s98, 1")
                A("s_cmp_lt_u32 s98, 0x80000")
                A(f"s_cbranch_scc1 POL_{c}")
                A("s_branch P3_RED")
        if c < n:
            y = 8 * (n - 1 - c)
            if n < 4:
                A(fl)
                y += 1
            consume(c, y)
            if n < 4:
                A("s_cmp_lg_u32 s25, 0")
                A(f"s_cbranch_scc1 ISS_{c+1}_{n}")
                A("s_waitcnt vmcnt(0)")
                avail()
            if (c + 1, n) != (4, 4):
                if not (n == 4):
                    A(f"s_branch TRY_{c+1}_{n}")
        if can:
            A(f"ISS_{c}_{n}:")
            issue3(n)
            A(f"s_branch TRY_{c}_{n+1}")

    for n in range(4):
        for c in range(n + 1):
            if n - c <= LK:
                state(c, n)
    for c in range(4):
        if 4 - c <= LK:
            state(c, 4)
    A("P3_RED:")
    stamp3(A, 9)
    A("s_nop 7")
    A("s_nop 3")
    for i in range(4):
        A(f"ds_write_b128 v6, {v(ACC+16+4*i,4)} offset:{1024*i}")
    A("s_waitcnt lgkmcnt(0)")
    A("s_barrier")
    stamp3(A, 10)
    for i in range(4):
        A(f"ds_read_b128 {v(64+4*i,4)}, v7 offset:{1024*i}")
    for i in range(4):
        A(f"s_waitcnt lgkmcnt({3-i})")
        for r in range(4):
            A(f"v_add_f32 v{ACC+4*i+r}, v{ACC+4*i+r}, v{64+4*i+r}")
    for r in range(8):
        A(f"v_cvt_pk_bf16_f32 v{16+r}, v{ACC+2*r}, v{ACC+2*r+1}")
    A("ds_write_b128 v8, v[16:19]")
    A("ds_write_b128 v9, v[20:23]")
    A("ds_read_b128 v[24:27], v7")
    A("ds_read_b128 v[28:31], v7 offset:1024")
    A("s_waitcnt lgkmcnt(1)")
    A(f"buffer_store_dwordx4 v[24:27], v5, s[52:55], s14 offen{OM}")
    A("s_waitcnt lgkmcnt(0)")
    A(f"buffer_store_dwordx4 v[28:31], v5, s[52:55], s15 offen{OM}")
    stamp(A, 11)
    dump_stamps(A, 12, 8)
    A("K_END:")
    A("s_endpgm")

    A("P2_SLOW:")
    A("v_mov_b32 v12, 0xff7fffff")
    A("s_mov_b32 s50, s6")
    A("s_mov_b32 s49, 0")
    A("P2_SLOW1:")
    A(f"buffer_load_dwordx4 {v(KF[0],4)}, v1, {WS}, s50 offen{SC}")
    A(f"buffer_load_dwordx4 {v(KF[0]+4,4)}, v1, {WS}, s50 offen offset:1024{SC}")
    A("s_waitcnt vmcnt(0)")
    A(mfma32(s1, KF[0], Q, '0'))
    A(mfma32(s1, KF[0] + 4, Q + 4, s1))
    A("s_nop 7")
    A("s_nop 3")
    for r in range(0, 16, 2):
        A(f"v_max3_f32 v12, v12, v{s1+r}, v{s1+r+1}")
    A("s_add_u32 s50, s50, 4096")
    A("s_add_u32 s49, s49, 1")
    A("s_cmp_lt_u32 s49, 64")
    A("s_cbranch_scc1 P2_SLOW1")
    A("v_mov_b32 v13, v12")
    A("s_nop 1")
    A("v_permlane32_swap_b32 v12, v13")
    A("v_max_f32 v12, v12, v13")
    for r in range(16):
        A(f"v_xor_b32 v{NM+r}, 0x80000000, v12")
        A(f"v_mov_b32 v{O+r}, 0")
    for r in range(4):
        A(f"v_mov_b32 v{L+r}, 0")
    A("s_mov_b32 s50, s6")
    A("s_mov_b32 s49, 0")
    A("P2_SLOW2:")
    A(f"buffer_load_dwordx4 {v(KF[0],4)}, v1, {WS}, s50 offen{SC}")
    A(f"buffer_load_dwordx4 {v(KF[0]+4,4)}, v1, {WS}, s50 offen offset:1024{SC}")
    A(f"buffer_load_dwordx4 {v(VF[0],4)}, v1, {WS}, s50 offen offset:2048{SC}")
    A(f"buffer_load_dwordx4 {v(VF[0]+4,4)}, v1, {WS}, s50 offen offset:3072{SC}")
    A("s_waitcnt vmcnt(0)")
    A(mfma32(s1, KF[0], Q, NM))
    A(mfma32(s1, KF[0] + 4, Q + 4, s1))
    A("s_nop 7")
    A("s_nop 3")
    for r in range(16):
        A(f"v_exp_f32 v{s1+r}, v{s1+r}")
    A("s_nop 0")
    for r in range(8):
        A(f"v_cvt_pk_bf16_f32 v{P+r}, v{s1+2*r}, v{s1+2*r+1}")
    A("s_nop 1")
    A(mfma32(O, VF[0], P, O))
    A(mfma32(O, VF[0] + 4, P + 4, O))
    A(SM)
    A("s_add_u32 s50, s50, 4096")
    A("s_add_u32 s49, s49, 1")
    A("s_cmp_lt_u32 s49, 64")
    A("s_cbranch_scc1 P2_SLOW2")
    A("s_nop 7")
    A("s_nop 3")
    A(f"v_add_f32 v{L}, v{L}, v{L+1}")
    A(f"v_rcp_f32 v12, v{L}")
    A("s_nop 0")
    A("s_branch P2_FIN")
    A("K_LAST:")
    return kd(NAME, 256, 102)


def build(path):
    hdr = open('concat_heads__ssm_conv_h3__mha_block__prompt.s.ref').read().split('\n')
    hdr = [l for l in hdr if l.startswith(';') and '@launch' not in l]
    A = Asm()
    k = gen(A)
    A.check()
    out = '\n'.join(hdr) + '\n' + f"; @launch grid=(256,1,1) block=(512,1,1) lds={LDS}\n"
    out += '.amdgcn_target "amdgcn-amd-amdhsa--gfx950"\n.text\n' + A.text()
    out += '.section .rodata,"a"\n' + k
    import subprocess
    open(path, 'w').write(out.replace('CODE_CHUNKS', '0'))
    subprocess.run(['clang', '-x', 'assembler', '-target', 'amdgcn-amd-amdhsa', '-mcpu=gfx950', '-c',
                    path, '-o', '_sz.o'], check=True)
    sz = int([l for l in subprocess.run(['llvm-objdump', '-h', '_sz.o'], capture_output=True,
                                        text=True).stdout.split('\n') if '.text' in l][0].split()[2], 16)
    pad = (-(sz - 256)) % 8192
    chunks = (sz - 256 + pad) // 8192
    out = out.replace('CODE_CHUNKS', str(chunks - 1))
    out = out.replace('K_LAST:\n', f'K_LAST:\n.fill {pad//4+64}, 4, 0xbf810000\n')
    open(path, 'w').write(out)
    print('code bytes', sz, 'chunks', chunks)
    ok = {x: True for x in ('POLLU_OK', 'POLL1_OK', 'POLLZ_OK', 'INITP_OK')}
    loop = {'P2_LOOP': lambda c: c < 1, 'P1_LOOP': lambda c: c < 2, 'CONV_LOOP': lambda c: c < 3}
    skb = {f'SKB_{g}_{t}': True for g in ('first', 'mid', 'last') for t in range(16)}
    ska = {f'SKA_{g}_{t}': True for g in ('first', 'mid', 'last') for t in range(16)}
    iss_all = {f'ISS_{c}_{n}': True for c in range(4) for n in range(4)}
    iss_late = {f'ISS_{c}_{c}': True for c in range(4)}
    e2 = {'P3_E2': True, 'TRY_1_2': True}
    A.check_trace(NAME, {**ok, **loop, **skb, **iss_all, **e2}, 'compute init, all ready')
    A.check_trace(NAME, {**ok, **loop, **skb, **iss_late, 'NOINIT': True, 'P1_COMPUTE': True, 'NOPOLL1': True,
                         'NOE': True, 'P3_W0': True}, 'compute one by one')
    A.check_trace(NAME, {**ok, **loop, **ska, 'P1_LOADER': True, 'NOUT': True, 'NOSIGU': True, 'NOE': True, 'P3_W0': True,
                         'ISS_0_0': True, 'ISS_0_1': True, 'ISS_2_2': True, 'ISS_2_3': True}, 'loader late, 2+2')
    A.check_trace(NAME, {**ok, **loop, **ska, 'P1_LOADER': True, 'U_EARLY': True, 'P3_E1': True, 'ISS_1_1': True,
                         'ISS_1_2': True, 'ISS_3_3': True}, 'loader early')
    A.check_trace(NAME, {**ok, **loop, **ska, **iss_all, **e2, 'P1_LOADER': True, 'P2_SLOW': True,
                         'P2_SLOW1': lambda c: c < 2, 'P2_SLOW2': lambda c: c < 2}, 'slow')
    return A


if __name__ == '__main__':
    build(sys.argv[1] if len(sys.argv) > 1 else 'f.s')
```

```python
import sys, struct, math, os
sys.path.insert(0, 'dev')
from asmlib import *

OPT = set(os.environ.get('OPT', '').split(','))
PROF = 'prof' in OPT
NAME = 'concat_heads__ssm_conv_h3__mha_block__prompt_kernel'
LA = int(os.environ.get('LA', 2))
SLP = int(os.environ.get('SLP', 2))
SLP3 = int(os.environ.get('SLP3', 3))

MB = 1 << 20
WS_QF = 0
WS_KV = 4 * MB
WS_OF = 12 * MB
WS_UT = 16 * MB
WS_ZT = 20 * MB
WS_SYNC = 24 * MB
F1 = WS_SYNC
FU = WS_SYNC + 32768
FZ = WS_SYNC + 65536
F2 = WS_SYNC + 98304
CNT_LDS = 4 * (4 * 4160 + 64) + 4 * 4608
WS_SIZE = 24 * MB + 131072
WS_PROF = 32 * MB

P_Q, P_K, P_V, P_SH, P_SSMK, P_D, P_X, P_W, P_WO, P_OUT, P_DBG, P_WS = [16 + 2 * i for i in range(12)]
SRD_WS = 8
WS = f"s[{SRD_WS}:{SRD_WS+3}]"


def f32bits(x):
    return struct.unpack('<I', struct.pack('<f', x))[0]


QSCALE = f32bits(math.log2(math.e) / math.sqrt(32.0))
L_THR = f32bits(2.0 ** 60)

SLOT = 40960
LDS = 163840
HCS = 4160
HC_STRIDE = 4 * HCS + 64
U_BASE = 4 * HC_STRIDE
U_SZ = 4608
RING = 98304
SC = ' sc1'
NT = ' nt'
OM = ' ' + os.environ.get('OM', 'sc1')
GC = int(os.environ.get('GC', 3))
MT = 's_memrealtime' if 'rt' in OPT else 's_memtime'
MK = "s[100:101]"


def srd(A, d, p, size):
    A(f"s_mov_b32 s{d}, s{p}")
    A(f"s_and_b32 s{d+1}, s{p+1}, 0xffff")
    A(f"s_mov_b32 s{d+2}, {size}")
    A(f"s_mov_b32 s{d+3}, 0x00020000")


def mfma32(d, a, b, c):
    cs = c if isinstance(c, str) else v(c, 16)
    return f"v_mfma_f32_32x32x16_bf16 {v(d,16)}, {v(a,4)}, {v(b,4)}, {cs}"


def mfma16(d, a, b, c):
    cs = c if isinstance(c, str) else v(c, 4)
    return f"v_mfma_f32_16x16x32_bf16 {v(d,4)}, {v(a,4)}, {v(b,4)}, {cs}"


def stamp1(A, idx):
    if PROF and 'p1' in OPT:
        A(f"{MT} s[{70+2*idx}:{71+2*idx}]")


def stamp2(A, idx):
    if PROF and 'p2' in OPT:
        A(f"s_memrealtime s[{70+2*idx}:{71+2*idx}]")
        A(f"s_memtime s[{72+2*idx}:{73+2*idx}]")


def stamp3(A, idx):
    if PROF and 'p3' in OPT:
        A(f"s_memrealtime s[{70+2*idx}:{71+2*idx}]")
        A("s_waitcnt lgkmcnt(0)")


def stamp(A, idx):
    if PROF and ('p1' in OPT or 'p2' in OPT) and idx != 0:
        return
    if PROF and 'p3' in OPT:
        idx = {0: 0, 8: 1, 9: 3, 10: 4, 11: 11}.get(idx)
        if idx is None:
            return
    if PROF:
        A(f"{MT} s[{70+2*idx}:{71+2*idx}]")
        if idx == 0:
            A("s_memrealtime s[68:69]")
        else:
            A("s_waitcnt lgkmcnt(0)")


def dump_stamps(A, n, vt=2):
    if not PROF:
        return
    A("s_memrealtime s[62:63]")
    A("s_waitcnt lgkmcnt(0)")
    A(f"s_add_u32 s64, s{P_WS}, {WS_PROF}")
    A(f"s_addc_u32 s65, s{P_WS+1}, 0")
    A("s_and_b32 s65, s65, 0xffff")
    A(f"s_mov_b32 s66, {MB}")
    A("s_mov_b32 s67, 0x00020000")
    A("s_lshl_b32 s60, s2, 10")
    A("s_lshl_b32 s61, s3, 6")
    A("s_add_u32 s60, s60, s61")
    A(f"v_mov_b32 v{vt+1}, 0")
    for i in range(n):
        A(f"v_mov_b32 v{vt}, s{70+2*i}")
        A(f"buffer_store_dword v{vt}, v{vt+1}, s[64:67], s60 offen offset:{4*i}")
    A(f"v_mov_b32 v{vt}, s68")
    A(f"buffer_store_dword v{vt}, v{vt+1}, s[64:67], s60 offen offset:56")
    A(f"v_mov_b32 v{vt}, s62")
    A(f"buffer_store_dword v{vt}, v{vt+1}, s[64:67], s60 offen offset:60")
    A("s_waitcnt vmcnt(0)")


FA = 254


def all_set(A, vt, val=1):
    A(f"v_cmp_eq_u32 {MK}, {val}, v{vt}")
    A(f"s_cmp_eq_u64 {MK}, -1")


def poll(A, name, srds, va, soff, vt, val=1):
    A("s_mov_b32 s98, 0")
    A(f"{name}:")
    A(f"buffer_load_dword v{vt}, v{va}, {srds}, {soff} offen sc1")
    A("s_waitcnt vmcnt(0)")
    all_set(A, vt, val)
    A(f"s_cbranch_scc1 {name}_OK")
    A(f"s_sleep {SLP}")
    A("s_add_u32 s98, s98, 1")
    A("s_cmp_lt_u32 s98, 0x80000")
    A(f"s_cbranch_scc1 {name}")
    A(f"{name}_OK:")


def check_or_poll(A, name, srds, va, soff, vt, val=1):
    all_set(A, vt, val)
    A(f"s_cbranch_scc1 {name}_OK")
    poll(A, name, srds, va, soff, vt, val)


def setflag(A, soff, vt, srds=WS):
    A("s_mov_b64 exec, 1")
    A(f"v_mov_b32 v{vt}, 1")
    A(f"buffer_store_dword v{vt}, v2, {srds}, {soff} offen sc1")
    A("s_mov_b64 exec, -1")


def gen(A):
    A(f".globl {NAME}")
    A(".p2align 8")
    A(f".type {NAME},@function")
    A(f"{NAME}:")
    A("s_cmp_ge_u32 s2, 256")
    A("s_cbranch_scc1 K_END")
    A("s_load_dwordx16 s[16:31], s[0:1], 0")
    A("s_load_dwordx8 s[32:39], s[0:1], 64")
    A("v_lshrrev_b32 v1, 6, v0")
    A("v_and_b32 v0, 63, v0")
    A("v_readfirstlane_b32 s3, v1")
    stamp(A, 0)
    A("s_and_b32 s4, s2, 1")
    A("s_lshl_b32 s4, s4, 3")
    A("s_bfe_u32 s5, s2, 0x30003")
    A("s_or_b32 s4, s4, s5")
    A("s_bfe_u32 s5, s2, 0x20001")
    A("s_lshl_b32 s5, s5, 2")
    A("s_lshr_b32 s6, s2, 6")
    A("s_or_b32 s5, s5, s6")
    A("v_lshlrev_b32 v1, 4, v0")
    A("v_mov_b32 v2, 0")
    A(f"v_and_b32 v{FA}, 15, v0")
    A(f"v_lshlrev_b32 v{FA}, 7, v{FA}")
    A("s_cmp_lt_u32 s3, 4")
    A("s_cbranch_scc0 P1_LOADER")
    if 'nocp' not in OPT:
        A("s_and_b32 s6, s2, 0x30")
        A("s_cbranch_scc1 P1_COMPUTE")
        A("s_getpc_b64 s[40:41]")
        A("s_bfe_u32 s6, s2, 0x10003")
        A("s_lshl_b32 s6, s6, 2")
        A("s_add_u32 s6, s6, s3")
        A("s_min_u32 s6, s6, CODE_CHUNKS")
        A("s_lshl_b32 s6, s6, 13")
        A("v_lshl_add_u32 v3, v0, 7, s6")
        A("global_load_dword v255, v3, s[40:41]")
    A("s_branch P1_COMPUTE")

    A("P1_LOADER:")
    A("s_sub_u32 s6, s3, 4")
    A("v_lshrrev_b32 v3, 3, v0")
    A("v_and_b32 v4, 7, v0")
    A("v_lshrrev_b32 v11, 4, v0")
    A("v_xor_b32 v5, v4, v11")
    A("v_lshlrev_b32 v5, 4, v5")
    A("v_lshl_add_u32 v5, v3, 11, v5")
    A("v_xor_b32 v6, 64, v5")
    A(f"v_add_u32 v6, {15360}, v6")
    A(f"v_add_u32 v7, {2*15360}, v5")
    A(f"v_add_u32 v8, {2*15360}, v6")
    A("v_and_b32 v9, 1, v11")
    A("v_lshlrev_b32 v9, 2, v9")
    A("v_xor_b32 v9, v9, v4")
    A("v_lshlrev_b32 v9, 4, v9")
    A("v_mul_u32_u24 v10, 6144, v3")
    A("v_add_u32 v9, v9, v10")
    A(f"v_add_u32 v10, {49152-1024}, v9")
    A("s_lshl_b32 s12, s4, 18")
    A("s_lshl_b32 s13, s6, 16")
    A("s_add_u32 s96, s12, s13")
    A(f"s_mul_i32 s13, s6, {16*6144}")
    A("s_lshl_b32 s14, s5, 7")
    A("s_add_u32 s97, s13, s14")
    A("s_add_u32 s95, s4, s5")
    A("s_and_b32 s95, s95, 3")
    A("s_mul_i32 s15, s6, 10240")
    A("s_waitcnt lgkmcnt(0)")
    srd(A, 40, P_X, 4 * MB)
    srd(A, 44, P_W, 6 * MB)

    vm = []
    fill = []

    def F(n):
        for _ in range(n):
            if fill:
                A(fill.pop(0))

    def issue_stage(st, nf=0):
        slot = st % 4
        A(f"s_xor_b32 s14, s95, {st}")
        A("s_lshl_b32 s12, s14, 7")
        A(f"s_add_u32 m0, s15, {slot*SLOT}")
        A("s_add_u32 s12, s12, s96")
        for j in range(4):
            A(f"buffer_load_dwordx4 v{5+j}, s[40:43], s12 offen offset:{j*1024} lds")
            F(nf)
        A(f"s_mul_i32 s14, s14, {64*6144}")
        A(f"s_add_u32 m0, s15, {slot*SLOT+4096}")
        A("s_add_u32 s13, s14, s97")
        for t in range(4):
            A(f"buffer_load_dwordx4 v{9+(t&1)}, s[44:47], s13 offen offset:{t*1024} lds")
            F(nf)
        A(f"s_add_u32 m0, s15, {slot*SLOT+8192}")
        A("s_add_u32 s13, s13, 4096")
        for t in range(2):
            A(f"buffer_load_dwordx4 v{9+t}, s[44:47], s13 offen offset:{t*1024} lds")
            F(nf)
        vm.extend([('st', st)] * 10)

    def wait_tag(tag):
        last = max(i for i, t in enumerate(vm) if t == tag)
        A(f"s_waitcnt vmcnt({len(vm) - 1 - last})")
        del vm[:last + 1]

    issue_stage(0)
    issue_stage(1)

    KR, VR, WR, T, OUT = 20, 42, 60, 68, 104
    srd(A, 48, P_K, 4 * MB)
    srd(A, 52, P_V, 4 * MB)
    srd(A, 60, P_SH, 8192)
    A("s_lshr_b32 s7, s2, 4")
    A("s_lshl_b32 s7, s7, 7")
    A("s_lshl_b32 s64, s6, 5")
    A("s_add_u32 s7, s7, s64")
    A("s_and_b32 s64, s2, 15")
    A("s_lshl_b32 s64, s64, 6")
    A("v_lshl_add_u32 v11, v11, 3, s7")
    A("v_and_b32 v12, 15, v0")
    A("v_lshl_add_u32 v12, v12, 2, s64")
    A("v_lshlrev_b32 v13, 1, v12")
    A("v_lshl_add_u32 v15, v11, 11, v13")
    A("v_subrev_u32 v13, 6144, v15")
    A("v_subrev_u32 v14, 2048, v15")
    A("v_lshlrev_b32 v17, 3, v12")
    A("s_movk_i32 s64, 0x1000")
    A("s_movk_i32 s65, 0x2000")
    A("s_movk_i32 s66, 0x3000")
    so4 = ['0', 's64', 's65', 's66']
    rows = [(13, '0', 0), (13, '0', 2048), (14, '0', 0)] + [(15, so4[i // 2], 2048 * (i & 1)) for i in range(8)]

    def prep_loads():
        for i in range(2):
            A(f"buffer_load_dwordx4 {v(WR+4*i,4)}, v17, s[60:63], 0 offen offset:{16*i}")
        for i, (a, so, o) in enumerate(rows):
            A(f"buffer_load_dwordx2 {v(KR+2*i,2)}, v{a}, s[48:51], {so} offen offset:{o}{NT}")
        for i, (a, so, o) in enumerate(rows[3:]):
            A(f"buffer_load_dwordx2 {v(VR+2*i,2)}, v{a}, s[52:55], {so} offen offset:{o}{NT}")
        vm.extend(['prep'] * 21)
    ST_PL = int(os.environ.get('ST_PL', -1))
    if ST_PL < 0:
        prep_loads()
    A("v_sub_u32 v18, 2040, v11")
    A("v_lshlrev_b32 v18, 1, v18")
    A("v_lshl_add_u32 v18, v12, 12, v18")
    A(f"v_add_u32 v18, {WS_UT}, v18")
    srd(A, SRD_WS, P_WS, WS_SIZE)
    srd(A, 56, P_DBG, 256)

    prep = []
    for j in range(4):
        dw, hi = j // 2, j & 1

        def unp(dst, src):
            return f"v_and_b32 v{dst}, 0xffff0000, v{src}" if hi else f"v_lshlrev_b32 v{dst}, 16, v{src}"
        for i in range(11):
            prep.append(unp(T + i, KR + 2 * i + dw))
        prep.append(f"v_lshlrev_b32 v{T+11}, 16, v{WR+2*j}")
        prep.append(f"v_and_b32 v{T+12}, 0xffff0000, v{WR+2*j}")
        prep.append(f"v_lshlrev_b32 v{T+13}, 16, v{WR+2*j+1}")
        prep.append(f"v_and_b32 v{T+14}, 0xffff0000, v{WR+2*j+1}")
        for i in range(8):
            prep.append(f"v_mul_f32 v{T+15+i}, v{T+i}, v{T+14}")
        for t in (2, 1, 0):
            for i in range(8):
                prep.append(f"v_fmac_f32 v{T+15+i}, v{T+3+i-t}, v{T+11+t}")
        for i in range(8):
            prep.append(unp(T + i, VR + 2 * i + dw))
        for i in range(8):
            prep.append(f"v_mul_f32 v{T+15+i}, v{T+15+i}, v{T+i}")
        for i in range(4):
            prep.append(f"v_cvt_pk_bf16_f32 v{OUT+4*j+i}, v{T+15+7-2*i}, v{T+15+6-2*i}")

    def h_loads():
        A("s_lshl_b32 s7, s2, 2")
        A("s_add_u32 s7, s7, s6")
        A("s_lshl_b32 s64, s7, 12")
        A(f"s_mul_i32 s65, s6, {HCS}")
        A(f"s_mul_i32 s66, s6, {U_SZ}")
        A(f"s_add_u32 s66, s66, {U_BASE}")
        srd(A, 48, P_SSMK, 4 * MB)
        srd(A, 52, P_D, 2048)
        HN = NT if 'hnt' in OPT else ''
        for j in range(4):
            A(f"buffer_load_dwordx4 {v(HD+8*j,4)}, v1, s[48:51], s64 offen offset:{1024*j}{HN}")
        for j in range(4):
            A(f"buffer_load_dwordx2 {v(HD+8*j+4,2)}, v1, s[48:51], s64 offen offset:{1024*j+16}{HN}")
        A("buffer_load_dwordx2 v[200:201], v2, s[48:51], s64 offen")
        A("s_lshl_b32 s7, s7, 1")
        A("buffer_load_ushort v202, v2, s[52:55], s7 offen")
        A("v_add_u32 v205, s65, v1")
        vm.extend(['h'] * 10)

    HD = 120

    def h_write(c):
        if c & 1:
            for j in range(4):
                d = HD + 8 * j + (c >> 1)
                o = 208 + 4 * (j & 1)
                for i in range(4):
                    A(f"v_alignbit_b32 v{o+i}, v{d+i+1}, v{d+i}, 16")
                A(f"ds_write_b128 v205, {v(o,4)} offset:{(c-1)*HC_STRIDE+32+1024*j}")
                A("s_nop 7")
            return
        A(f"s_add_u32 s7, s64, {2*c}")
        A(f"s_add_u32 m0, s65, {(c-1)*HC_STRIDE+32}")
        A("s_nop 0")
        for j in range(4):
            A(f"buffer_load_dwordx4 v1, s[48:51], s7 offen offset:{j*1024} lds")
        vm.extend(['cv'] * 4)

    FR, UR, YR = [32, 96], [64, 128], 160
    csetup = [
        "v_lshrrev_b32 v221, 1, v0",
        f"v_mul_u32_u24 v221, {HC_STRIDE}, v221",
        "v_and_b32 v222, 1, v0",
        "v_lshl_add_u32 v221, v222, 4, v221",
        "v_add_u32 v221, s65, v221",
        "v_subrev_u32 v222, 8, v0",
        "v_min_u32 v222, 31, v222",
        "v_lshlrev_b32 v222, 4, v222",
        "v_add_u32 v222, 4096, v222",
        "v_add_u32 v222, s66, v222",
        "v_cmp_gt_u32 vcc, 8, v0"] + [f"v_mov_b32 v{YR+r}, 0" for r in range(32)] + [
        "v_cndmask_b32 v221, v222, v221, vcc",
        "v_and_b32 v222, 3, v0",
        f"v_mul_u32_u24 v223, {HC_STRIDE}, v222",
        "v_lshlrev_b32 v222, 1, v222",
        "v_sub_u32 v222, v223, v222",
        "v_add_u32 v222, 30, v222",
        "v_add_u32 v222, s65, v222",
        "v_lshrrev_b32 v224, 4, v0",
        "v_lshl_add_u32 v223, v224, 4, v223",
        "v_bfe_u32 v225, v0, 2, 2",
        "v_lshl_add_u32 v223, v225, 3, v223",
        "v_add_u32 v223, s65, v223",
        "v_and_b32 v225, 15, v0",
        "v_lshlrev_b32 v226, 5, v225",
        "v_lshlrev_b32 v227, 4, v224",
        "v_sub_u32 v227, v227, v226",
        "v_lshl_add_u32 v226, v224, 3, v226",
        "v_add_u32 v227, 480, v227",
        "v_add_u32 v224, s66, v227",
        f"v_sub_u32 v225, {4088-3584}, v226",
        "v_add_u32 v225, s66, v225",
        f"v_mov_b32 v227, {CNT_LDS}",
    ]
    ST_H = int(os.environ.get('ST_H', 0))
    ST_PC = ST_PL + LA + 1
    NF = int(os.environ.get('NF', 9))
    ST_UT = ST_PC + (268 + 10 * NF - 1) // (10 * NF) - 1
    ST_SIG = ST_UT + LA + 1
    ST_CU = int(os.environ.get('ST_CU', 10))
    ST_UCHK = int(os.environ.get('ST_UCHK', 13))
    assert ST_UCHK >= ST_CU + LA + 1
    assert ST_UT >= ST_H >= ST_PL and ST_SIG < ST_CU and ST_CU + LA + 1 <= 15
    for st in range(16):
        wait_tag(('st', st))
        A("s_barrier")
        if st == ST_PC:
            assert 'prep' not in vm
            fill.extend(prep)
        if st == 0:
            for k in range(2, LA + 1):
                issue_stage(k)
        elif st + LA < 16:
            issue_stage(st + LA, NF)
        if st == ST_PL:
            prep_loads()
        if st == ST_H:
            h_loads()
        if st == ST_UT:
            A("buffer_load_dword v19, v2, s[56:59], 0 offen sc1")
            vm.append('if')
            F(len(fill))
            A("s_movk_i32 s7, 0x1000")
            A("s_movk_i32 s12, 0x2000")
            A("s_movk_i32 s13, 0x3000")
            for j, so in enumerate(['0', 's7', 's12', 's13']):
                A(f"buffer_store_dwordx4 {v(OUT+4*j,4)}, v18, {WS}, {so} offen{SC}")
                vm.append('ut')
        if st == ST_SIG:
            assert 'ut' not in vm and 'if' not in vm
            check_or_poll(A, 'INITP', 's[56:59]', 2, '0', 19, 16)
            A("s_cmp_lg_u32 s6, 0")
            A("s_cbranch_scc1 NOSIGU")
            A("s_and_b32 s7, s2, 15")
            A("s_lshl_b32 s7, s7, 4")
            A("s_lshr_b32 s12, s2, 4")
            A("s_add_u32 s7, s7, s12")
            A("s_lshl_b32 s7, s7, 7")
            A(f"s_add_u32 s7, s7, {FU}")
            setflag(A, 's7', 11)
            A("NOSIGU:")
        if st == ST_CU:
            A("s_lshr_b32 s7, s2, 4")
            A("s_lshl_b32 s7, s7, 11")
            A(f"s_add_u32 s67, s7, {FU}")
            A(f"buffer_load_dword v19, v{FA}, {WS}, s67 offen sc1")
            vm.append('cu')
        if st == ST_UCHK:
            assert 'cu' not in vm
            all_set(A, 19)
            A("s_cbranch_scc0 NOUT")
            A(f"s_add_u32 s12, s64, {WS_UT}")
            A("v_min_u32 v203, 31, v0")
            A("v_lshlrev_b32 v203, 7, v203")
            A(f"buffer_load_dword v204, v203, {WS}, s12 offen sc1")
            A("NOUT:")
        if st == ST_UT + 1:
            fill.extend(csetup)
        if st == 14:
            A(f"buffer_load_dword v19, v{FA}, {WS}, s67 offen sc1")
            vm.append('cu2')
            F(len(fill))
            h_write(2)
            h_write(4)
            h_write(1)
            h_write(3)
    A(f"ds_write_b128 v221, {v(YR,4)}")
    A("ds_write_b32 v227, v2")
    A("v_lshlrev_b32 v220, 16, v202")
    A(f"s_add_u32 s12, s64, {WS_UT}")
    A("s_mov_b32 m0, s66")
    wait_tag('cu2')
    all_set(A, 19)
    A("s_cbranch_scc1 U_EARLY")
    A("s_waitcnt lgkmcnt(0)")
    A("s_barrier")
    poll(A, 'POLLU', WS, FA, 's67', 19)
    for j in range(4):
        A(f"buffer_load_dwordx4 v1, {WS}, s12 offen offset:{j*1024}{SC} lds")
    A("s_branch U_JOIN")
    A("U_EARLY:")
    for j in range(4):
        A(f"buffer_load_dwordx4 v1, {WS}, s12 offen offset:{j*1024}{SC} lds")
    A("s_waitcnt lgkmcnt(0)")
    A("s_barrier")
    A("U_JOIN:")
    stamp(A, 1)
    A("s_waitcnt vmcnt(4)")
    A("ds_write_b64 v222, v[200:201]")
    A(f"s_add_u32 s7, s64, {WS_ZT}")
    A("v_add_u32 v216, s7, v226")
    pairs = [(a, b) for a in range(8) for b in range(8) if a + b <= 7]

    def cF(rho):
        o = []
        for a in range(8):
            o.append(f"ds_read_b64 {v(FR[rho&1]+4*a,2)}, v223 offset:{512*a+64*rho}")
            o.append(f"ds_read_b64 {v(FR[rho&1]+4*a+2,2)}, v223 offset:{512*a+64*rho+8}")
        return o

    def cU(rho):
        return [f"ds_read_b128 {v(UR[rho&1]+4*b,4)}, v224 offset:{512*(7-b)+64*rho}" for b in range(8)]

    for x in cF(0):
        A(x)
    A("s_waitcnt vmcnt(0)")
    for x in cU(0):
        A(x)
    stamp(A, 2)
    A("s_mov_b32 s7, 0")
    A("CONV_LOOP:")
    for rho in range(2):
        A("s_waitcnt lgkmcnt(0)")
        nxt = cU(rho + 1) + cF(rho + 1)
        if rho == 1:
            nxt += ["v_add_u32 v223, 128, v223", "v_add_u32 v224, 128, v224", "s_add_u32 s7, s7, 1", "s_cmp_lt_u32 s7, 4"]
        for i, (a, b) in enumerate(pairs):
            G = a + b
            A(mfma16(YR + 4 * G, FR[rho] + 4 * a, UR[rho] + 4 * b, YR + 4 * G))
            if i < len(nxt):
                A(nxt[i])
    A("s_cbranch_scc1 CONV_LOOP")
    for G in range(8):
        A(f"ds_read_b64 {v(FR[1]+2*G,2)}, v225 offset:{512*(7-G)}")
    A("s_waitcnt lgkmcnt(0)")
    for G in range(8):
        y = YR + 4 * G
        t = UR[1]
        f = FR[1]
        A(f"v_and_b32 v{t}, 0xffff0000, v{f+2*G+1}")
        A(f"v_lshlrev_b32 v{t+1}, 16, v{f+2*G+1}")
        A(f"v_and_b32 v{t+2}, 0xffff0000, v{f+2*G}")
        A(f"v_lshlrev_b32 v{t+3}, 16, v{f+2*G}")
        for r in range(4):
            A(f"v_fmac_f32 v{y+r}, v{t+r}, v220")
        A(f"v_cvt_pk_bf16_f32 v{200+2*G}, v{y}, v{y+1}")
        A(f"v_cvt_pk_bf16_f32 v{201+2*G}, v{y+2}, v{y+3}")
    stamp(A, 3)
    A("s_branch P2_JOIN")

    A("P1_COMPUTE:")
    ACC = 64
    XF = [16, 40, 176, 200]
    WF = [24, 48, 184, 208]
    XA = 160
    WA = 168
    A("s_lshr_b32 s6, s3, 1")
    A("s_and_b32 s7, s3, 1")
    A("v_and_b32 v6, 31, v0")
    A("v_lshrrev_b32 v3, 5, v0")
    A("v_bfe_u32 v4, v0, 1, 3")
    A("v_xor_b32 v4, v4, v3")
    A("v_lshlrev_b32 v4, 4, v4")
    A("v_lshl_add_u32 v4, v6, 7, v4")
    A("s_mul_i32 s12, s6, 20480")
    A("v_add_u32 v4, s12, v4")
    for ks in range(4):
        if ks == 0:
            A(f"v_mov_b32 v{XA}, v4")
        else:
            A(f"v_xor_b32 v{XA+ks}, {32*ks}, v4")
        A(f"v_add_u32 v{XA+4+ks}, {2*SLOT}, v{XA+ks}")
    A("v_bfe_u32 v5, v0, 2, 2")
    A("v_lshlrev_b32 v6, 7, v5")
    A("v_lshl_add_u32 v6, v3, 10, v6")
    A("v_bfe_u32 v7, v0, 3, 1")
    A("v_xor_b32 v7, s7, v7")
    A("v_lshl_add_u32 v6, v7, 6, v6")
    A("v_bfe_u32 v7, v0, 4, 1")
    A("v_lshl_add_u32 v6, v7, 5, v6")
    A("v_and_b32 v7, 3, v0")
    A(f"v_lshl_add_u32 v{WA}, v7, 3, v6")
    for sl in range(1, 4):
        A(f"v_add_u32 v{WA+sl}, {sl*SLOT}, v{WA}")
    A("s_lshl_b32 s12, s5, 1")
    A("s_add_u32 s12, s12, s7")
    A("s_lshl_b32 s7, s5, 4")
    A("s_add_u32 s7, s7, s4")
    A("s_lshl_b32 s7, s7, 7")
    A(f"s_add_u32 s7, s7, {F1}")
    A("s_lshl_b32 s12, s12, 6")
    A("s_lshl_b32 s13, s4, 2")
    A("s_add_u32 s12, s12, s13")
    A("s_lshl_b32 s13, s6, 1")
    A("s_add_u32 s12, s12, s13")
    A("s_lshl_b32 s13, s12, 11")
    A("s_lshl_b32 s14, s12, 12")
    A(f"s_add_u32 s14, s14, {WS_KV}")
    A("s_add_u32 s15, s14, 4096")
    A(f"s_mov_b32 s12, {QSCALE:#x}")
    A("s_waitcnt lgkmcnt(0)")
    srd(A, SRD_WS, P_WS, WS_SIZE)
    A("s_lshl_b32 s42, s3, 4")
    A("s_or_b32 s42, s42, s2")
    A("s_cmp_ge_u32 s42, 16")
    A("s_cbranch_scc1 NOINIT")
    srd(A, 56, P_DBG, 256)
    A("v_lshlrev_b32 v8, 7, v0")
    A("s_lshl_b32 s42, s2, 13")
    A(f"s_add_u32 s42, s42, {WS_SYNC}")
    A(f"buffer_store_dword v2, v8, {WS}, s42 offen sc1")
    A("v_mov_b32 v9, 1")
    A("s_waitcnt vmcnt(0)")
    A("s_mov_b64 exec, 1")
    A("buffer_atomic_add v9, v2, s[56:59], 0 offen")
    A("s_mov_b64 exec, -1")
    A("NOINIT:")

    def bufof(step):
        return step & 1 if step < 60 else {60: 0, 61: 2, 62: 3, 63: 1}[step]

    def reads(step):
        st, ks = divmod(step, 4)
        slot = st % 4
        b = bufof(step)
        out = []
        xa = XA + 4 * (slot >> 1) + ks
        out.append(f"ds_read_b128 {v(XF[b],4)}, v{xa} offset:{(slot&1)*SLOT}")
        for seg in range(3):
            for j in range(2):
                out.append(f"ds_read_b64_tr_b16 {v(WF[b]+4*seg+2*j,2)}, v{WA+slot} offset:{ks*10240+4096+seg*2048+j*512}")
            if seg == 0:
                out.append(f"ds_read_b128 {v(XF[b]+4,4)}, v{xa} offset:{(slot&1)*SLOT+10240}")
        return out

    def mf(step, seg, rt):
        b = bufof(step)
        d = ACC + 16 * (3 * rt + seg)
        c = d
        if seg < 2:
            return mfma32(d, WF[b] + 4 * seg, XF[b] + 4 * rt, c)
        return mfma32(d, XF[b] + 4 * rt, WF[b] + 4 * seg, c)

    def epi(seg, rt):
        d = ACC + 16 * (3 * rt + seg)
        out = []
        if seg == 0:
            for r in range(16):
                out.append(f"v_mul_f32 v{d+r}, s12, v{d+r}")
        for r in range(8):
            out.append(f"v_cvt_pk_bf16_f32 v{d+r}, v{d+2*r}, v{d+2*r+1}")
        so, off = [('s13', rt * 2048), (('s14', 's15')[rt], 0), (('s14', 's15')[rt], 2048)][seg]
        out.append(f"buffer_store_dwordx4 {v(d,4)}, v1, {WS}, {so} offen offset:{off}{SC}")
        out.append(f"buffer_store_dwordx4 {v(d+4,4)}, v1, {WS}, {so} offen offset:{off+1024}{SC}")
        return out

    for r in range(96):
        A(f"v_mov_b32 v{ACC+r}, 0")
    A("s_mov_b32 s6, 0")
    A("s_barrier")
    stamp(A, 1)
    stamp1(A, 1)
    for r in reads(0):
        A(r)

    def gstep(step):
        m = [mf(step, seg, rt) for seg in range(3) for rt in range(2)]
        nxt = reads(step + 1)
        A("s_waitcnt lgkmcnt(0)")
        A(m[0])
        if (step + 1) % 4 == 0:
            A("s_barrier")
            bs = (step + 1) // 4
            P1S = (2, 4, 6, 8, 9, 10, 11, 12, 14)
            if bs in P1S:
                stamp1(A, 2 + P1S.index(bs))
        if step == 59:
            nxt = reads(60) + reads(61) + reads(62)
            gaps = [nxt[0:4], nxt[4:8], nxt[8:12], nxt[12:16], nxt[16:20], nxt[20:24]]
        else:
            gaps = [nxt[0:3], nxt[3:5], nxt[5:7], nxt[7:8], [], []]
        if step == 15 and 'p1' not in OPT:
            gaps[4] = ["s_add_u32 s6, s6, 1", "s_cmp_lt_u32 s6, 3"]
        for x in gaps[0]:
            A(x)
        for k in range(1, 6):
            A(m[k])
            for x in gaps[k]:
                A(x)

    if 'p1' in OPT:
        for step in range(48):
            gstep(step)
    else:
        A("P1_LOOP:")
        for step in range(16):
            gstep(step)
        A("s_cbranch_scc1 P1_LOOP")
    for step in range(48, 60):
        gstep(step)
    for x in reads(63):
        A(x)
    order = [(1, 0), (1, 1), (2, 0), (2, 1), (0, 0), (0, 1)]
    pend = []
    A("s_waitcnt lgkmcnt(8)" if 'p1' not in OPT else "s_waitcnt lgkmcnt(0)")
    for ti, (seg, rt) in enumerate(order):
        if ti >= 2:
            pend = epi(*order[ti - 2])
        for k, step in enumerate(range(60, 64)):
            if ti == 0 and k == 3:
                A("s_waitcnt lgkmcnt(0)")
            A(mf(step, seg, rt))
            if ti == 0 and k == 3:
                A("s_barrier")
                stamp1(A, 11)
            if ti == 1 and k in (1, 2):
                A("s_nop 3")
            n = (len(pend) + (3 - k)) // (4 - k)
            for x in pend[:n]:
                A(x)
            pend = pend[n:]
    stamp(A, 2)
    A("v_mov_b32 v216, 0x7fff0000")
    for x in epi(*order[4]) + epi(*order[5]):
        A(x)
    A("s_and_b32 s4, s2, 7")
    A("s_lshl_b32 s4, s4, 2")
    A("s_lshr_b32 s5, s2, 6")
    A("s_or_b32 s4, s4, s5")
    A("s_lshr_b32 s42, s4, 1")
    A("s_lshl_b32 s42, s42, 11")
    A(f"s_add_u32 s42, s42, {F1}")
    A("s_lshl_b32 s12, s4, 18")
    A("s_lshl_b32 s13, s3, 12")
    A("s_add_u32 s12, s12, s13")
    A(f"s_add_u32 s12, s12, {WS_KV}")
    A("s_bfe_u32 s5, s2, 0x30003")
    A("s_lshl_b32 s14, s4, 17")
    A("s_lshl_b32 s15, s5, 14")
    A("s_add_u32 s14, s14, s15")
    A("s_add_u32 s14, s14, s13")
    A("s_waitcnt vmcnt(0)")
    A(f"v_mov_b32 v3, {CNT_LDS}")
    A("v_mov_b32 v4, 1")
    A("s_mov_b64 exec, 1")
    A("ds_add_rtn_u32 v5, v3, v4")
    A("s_waitcnt lgkmcnt(0)")
    A("v_readfirstlane_b32 s6, v5")
    A("s_mov_b64 exec, -1")
    stamp(A, 3)
    A("s_cmp_lg_u32 s6, 3")
    A("s_cbranch_scc1 NOPOLL1")
    setflag(A, 's7', 4)
    poll(A, 'POLL1', WS, FA, 's42', 5)
    A("v_mov_b32 v4, 64")
    A("ds_write_b32 v3, v4")
    A("s_branch GO1")
    A("NOPOLL1:")
    A("s_mov_b32 s98, 0")
    A("LW1:")
    A("s_sleep 1")
    A("ds_read_b32 v5, v3")
    A("s_add_u32 s98, s98, 1")
    A("s_cmp_ge_u32 s98, 0x800000")
    A("s_cbranch_scc1 GO1")
    A("s_waitcnt lgkmcnt(0)")
    A("v_readfirstlane_b32 s6, v5")
    A("s_cmp_lg_u32 s6, 64")
    A("s_cbranch_scc1 LW1")
    A("GO1:")
    A("s_waitcnt lgkmcnt(0)")
    stamp(A, 4)
    A(f"s_add_u32 m0, s13, {RING}")
    A("s_nop 0")
    for j in range(4):
        A(f"buffer_load_dwordx4 v1, {WS}, s12 offen offset:{j*1024}{SC} lds")
    A(f"s_add_u32 m0, s13, {RING+3*16384}")
    A("s_add_u32 s12, s12, 16384")
    for j in range(4):
        A(f"buffer_load_dwordx4 v1, {WS}, s14 offen offset:{j*1024}{SC} lds")
    A(f"s_add_u32 m0, s13, {RING+16384}")
    A("s_nop 0")
    for j in range(4):
        A(f"buffer_load_dwordx4 v1, {WS}, s12 offen offset:{j*1024}{SC} lds")

    A("P2_JOIN:")
    Q, NM, S, P, O, L, KF, VF, ON = 4, 16, [32, 48], 64, 72, 88, [92, 100], [108, 116], 124
    RB, WOA, IDX = 128, 129, 15
    GA = 130
    ZR, QR, WL, OS = 136, 144, 152, 168
    SM = f"v_smfmac_f32_16x16x64_bf16 {v(L,4)}, {v(ON,4)}, {v(P,8)}, v{IDX}"
    A("s_and_b32 s4, s2, 7")
    A("s_lshl_b32 s4, s4, 2")
    A("s_lshr_b32 s5, s2, 6")
    A("s_or_b32 s4, s4, s5")
    A("s_bfe_u32 s5, s2, 0x30003")
    A("s_lshl_b32 s6, s4, 18")
    A(f"s_add_u32 s6, s6, {WS_KV}")
    A("s_lshl_b32 s13, s3, 11")
    A("s_add_u32 s12, s6, s13")
    A("s_add_u32 s12, s12, 32768")
    A(f"s_add_u32 s13, s13, {RING}")
    A("s_lshl_b32 s14, s5, 3")
    A("s_add_u32 s14, s14, s3")
    A("s_lshl_b32 s15, s14, 5")
    A("s_add_u32 s15, s15, s4")
    A("s_lshl_b32 s58, s5, 5")
    A("s_add_u32 s58, s58, s4")
    A("s_lshl_b32 s58, s58, 7")
    A(f"s_add_u32 s58, s58, {F2}")
    A("s_lshl_b32 s57, s2, 7")
    A(f"s_add_u32 s57, s57, {FZ}")
    A("s_cmp_eq_u32 s3, 4")
    A("s_cselect_b32 s57, s57, 0x7fff0000")
    A("s_cselect_b32 s58, s58, 0x7fff0000")
    A("s_lshl_b32 s15, s15, 11")
    A(f"s_add_u32 s15, s15, {WS_OF}")
    A(f"v_add_u32 v{RB}, {RING}, v1")
    A(f"v_add_u32 v3, s13, v1")
    A("s_bfe_u32 s40, s2, 0x20001")
    A("s_lshl_b32 s40, s40, 2")
    A("s_bfe_u32 s41, s2, 0x20003")
    A("s_or_b32 s40, s40, s41")
    A("s_and_b32 s41, s2, 1")
    A("s_lshl_b32 s41, s41, 3")
    A("s_lshr_b32 s42, s2, 5")
    A("s_or_b32 s41, s41, s42")
    srd(A, 44, P_WO, 2 * MB)
    srd(A, 52, P_Q, 4 * MB)
    A("v_lshrrev_b32 v5, 3, v0")
    A("v_and_b32 v6, 7, v0")
    A("v_bfe_u32 v7, v0, 4, 1")
    A("v_lshlrev_b32 v7, 2, v7")
    A("v_xor_b32 v7, v7, v6")
    A("v_lshlrev_b32 v7, 4, v7")
    A(f"v_lshl_add_u32 v{WOA}, v5, 11, v7")
    A("s_lshl_b32 s48, s3, 14")
    A("s_lshl_b32 s49, s41, 7")
    A("s_add_u32 s48, s48, s49")
    A("s_lshl_b32 s49, s3, 10")
    A("s_mov_b32 s43, s49")
    A("s_and_b32 s59, s3, 3")
    A("s_lshl_b32 s50, s40, 2")
    A("s_add_u32 s59, s59, s50")
    A("s_lshl_b32 s59, s59, 1")
    A("s_lshr_b32 s50, s3, 2")
    A("s_add_u32 s59, s59, s50")
    A("s_lshl_b32 s60, s59, 15")
    A(f"s_add_u32 s60, s60, {WS_OF}")
    A("s_lshr_b32 s59, s40, 1")
    A("s_lshl_b32 s59, s59, 1")
    A("s_add_u32 s59, s59, s50")
    A("s_lshl_b32 s59, s59, 11")
    A(f"s_add_u32 s59, s59, {F2}")
    A("s_lshr_b32 s50, s2, 4")
    A("s_lshl_b32 s50, s50, 7")
    A("s_lshl_b32 s51, s3, 4")
    A("s_add_u32 s50, s50, s51")
    A("s_and_b32 s51, s2, 15")
    A("s_lshl_b32 s56, s51, 11")
    A(f"s_add_u32 s56, s56, {FZ}")
    A("s_lshl_b32 s51, s51, 6")
    A(f"v_lshl_add_u32 v5, v5, 1, s50")
    A(f"v_lshl_add_u32 v6, v6, 3, s51")
    A(f"v_lshlrev_b32 v{GA+2}, 1, v5")
    A(f"v_lshl_add_u32 v{GA+2}, v6, 12, v{GA+2}")
    A(f"v_lshlrev_b32 v{GA+3}, 1, v6")
    A(f"v_lshl_add_u32 v{GA+4}, v5, 11, v{GA+3}")
    A(f"v_lshl_add_u32 v{GA+3}, v5, 12, v{GA+3}")
    A("s_and_b32 s61, s41, 3" if 'norot3' not in OPT else "s_mov_b32 s61, 0")
    A("s_lshl_b32 s61, s61, 2")
    A(f"v_add_u32 v{GA+1}, s61, v0")
    A(f"v_and_b32 v{GA+1}, 15, v{GA+1}")
    A(f"v_lshlrev_b32 v{GA+1}, 7, v{GA+1}")
    A(f"v_add_u32 v{GA}, s43, v{RB}")
    A("s_lshr_b32 s63, 0x00110011, s61")
    A("s_and_b32 s63, s63, 0x1111")
    A("s_cmp_lt_u32 s3, 4")
    A("s_cselect_b32 s63, 0x1111, s63")
    A("s_mov_b32 s27, 0x7fff0000")
    A("s_mov_b32 s28, 0x7fff0000")
    A("v_bfe_u32 v5, v0, 2, 1")
    A("v_cmp_eq_u32 vcc, 0, v5")
    A("v_mov_b32 v6, 0x3f803f80")
    A("v_and_b32 v5, 1, v0")
    A(f"v_cndmask_b32 v{ON}, 0, v6, vcc")
    A(f"v_xor_b32 v{ON+2}, v6, v{ON}")
    A(f"v_mov_b32 v{ON+1}, v{ON}")
    A(f"v_mov_b32 v{ON+3}, v{ON+2}")
    A(f"v_mul_u32_u24 v{IDX}, 0xaaaa, v5")
    A(f"v_add_u32 v{IDX}, 0x4444, v{IDX}")
    for r in range(16):
        A(f"v_mov_b32 v{O+r}, 0")
    for r in range(4):
        A(f"v_mov_b32 v{L+r}, 0")
    for r in range(8):
        A(f"v_mov_b32 v{P+r}, 0")
        A(f"v_mov_b32 v{VF[1]+r}, 0")

    def rdK(t):
        b = t & 1
        o = (t % 16) * 4096
        return [f"ds_read_b128 {v(KF[b],4)}, v{RB} offset:{o}", f"ds_read_b128 {v(KF[b]+4,4)}, v{RB} offset:{o+1024}"]

    def rdV(t):
        b = t & 1
        o = (t % 16) * 4096 + 2048
        return [f"ds_read_b128 {v(VF[b],4)}, v{RB} offset:{o}", f"ds_read_b128 {v(VF[b]+4,4)}, v{RB} offset:{o+1024}"]

    A("s_cmp_lt_u32 s3, 4")
    A("s_cselect_b64 vcc, -1, 0")
    A("s_waitcnt vmcnt(4)")
    stamp(A, 5)
    A("s_barrier")
    stamp(A, 6)
    A(f"ds_read_b128 {v(Q,4)}, v3 offset:{3*16384}")
    A(f"ds_read_b128 {v(Q+4,4)}, v3 offset:{3*16384+1024}")
    for x in rdK(0) + rdK(1) + rdV(0):
        A(x)
    A(f"s_add_u32 m0, s13, {2*16384}")
    A("s_mov_b32 s14, 0")
    A(f"buffer_load_dwordx4 v1, {WS}, s12 offen{SC} lds")
    A(f"buffer_load_dwordx4 v1, {WS}, s12 offen offset:1024{SC} lds")
    A("s_add_u32 s12, s12, 16384")
    A("s_waitcnt lgkmcnt(4)")
    A(mfma32(S[1], KF[0], Q, '0'))
    A(mfma32(S[1], KF[0] + 4, Q + 4, S[1]))
    A("s_nop 7")
    A("s_nop 3")
    s1 = S[1]
    A(f"v_max3_f32 v12, v{s1}, v{s1+1}, v{s1+2}")
    for r in range(3, 15, 2):
        A(f"v_max3_f32 v12, v12, v{s1+r}, v{s1+r+1}")
    A(f"v_max_f32 v12, v12, v{s1+15}")
    A("v_mov_b32 v13, v12")
    A("s_nop 1")
    A("v_permlane32_swap_b32 v12, v13")
    A("v_max_f32 v12, v12, v13")
    for r in range(16):
        A(f"v_sub_f32 v{S[0]+r}, v{s1+r}, v12")
    for r in range(16):
        A(f"v_xor_b32 v{NM+r}, 0x80000000, v12")
    stamp(A, 7)

    vq = [('kv', 1)] * 4 + [('kv', 2)] * 2

    def vwait(tag):
        if tag not in vq:
            return "s_nop 0"
        lastp = max(i for i, x in enumerate(vq) if x == tag)
        n_ = len(vq) - 1 - lastp
        del vq[:lastp + 1]
        return f"s_waitcnt vmcnt({n_})"

    def ofr(i):
        return 176 + 4 * i if i < 16 else (64 + 4 * (i - 16) if i < 28 else 240 + 4 * (i - 28))

    def avail(B=A):
        B(f"v_cmp_eq_u32 {MK}, 1, v{GA+5}")
        B("s_lshr_b32 s25, s100, 1")
        B("s_and_b32 s25, s25, s100")
        B("s_lshr_b32 s26, s25, 2")
        B("s_and_b32 s25, s25, s26")
        B("s_and_b32 s25, s25, s24")

    def pick(r, B=A):
        B("s_ff1_i32_b32 s26, s25")
        B("s_bitset0_b32 s25, s26")
        B("s_bitset0_b32 s24, s26")
        B("s_add_u32 s26, s26, s61")
        B("s_and_b32 s26, s26, 15")
        B("s_lshl_b32 s27, s26, 11")
        B("s_add_u32 s27, s27, s60")
        B("s_add_u32 s28, s27, 4096")
        B(f"s_lshl_b32 s{16+r}, s26, 12")

    def oload(r, i):
        return f"buffer_load_dwordx4 {v(ofr(8*r+i),4)}, v1, {WS}, s{27+i//4} offen offset:{(i%4)*1024}{SC}"

    def zload(j2):
        vq.append('z')
        return [f"s_mov_b32 s51, {WS_ZT+4096*j2}", f"buffer_load_dword v{ZR+j2}, v{GA+2}, {WS}, s51 offen sc1"]

    fl = f"buffer_load_dword v{GA+5}, v{GA+1}, {WS}, s59 offen sc1"

    def slot_a(T):
        j = (T + 2) // 4 + 2
        if T % 4 == 2 and j <= 15:
            vq.append(('kv', j))
            return [f"s_add_u32 m0, s13, {(j%4)*16384}", "s_nop 0", f"buffer_load_dwordx4 v1, {WS}, s12 offen{SC} lds"]
        if T % 4 == 3 and (T + 1) // 4 + 2 <= 15:
            vq.append(('kv', (T + 1) // 4 + 2))
            return [f"buffer_load_dwordx4 v1, {WS}, s12 offen offset:1024{SC} lds", "s_add_u32 s12, s12, 16384"]
        if T % 4 == 0 and 4 <= T <= 48:
            vq.append('wo')
            return ["s_mov_b32 m0, s49", "s_add_u32 s49, s49, 8192",
                    f"buffer_load_dwordx4 v{WOA}, s[44:47], s48 offen lds", f"s_add_u32 s48, s48, {64*2048}"]
        if T == 49:
            vq.append('cz')
            return [f"buffer_load_dword v{GA+5}, v{FA}, {WS}, s56 offen sc1"]
        if 52 <= T <= 55:
            vq.append('wl')
            return [f"buffer_load_dwordx4 {v(WL+4*(T-52),4)}, v{WOA}, s[44:47], s48 offen",
                    f"s_add_u32 s48, s48, {64*2048}"]
        if T in (56, 57):
            return zload(4 + 2 * (T - 56))
        if T == 58:
            vq.append('f2')
            return [fl]
        if T >= 60:
            vq.append('e')
            return [oload(0, 2 * (T - 60))]
        return []

    def slot_e(T):
        if 2 <= T <= 9:
            G = T - 2
            vq.append('zt')
            return [f"buffer_store_dwordx2 {v(200+2*G,2)}, v216, {WS}, 0 offen offset:{512*G}{SC}"]
        if T in (48, 49):
            i = T - 48
            vq.append('q')
            return [f"buffer_load_dwordx4 {v(QR+4*i,4)}, v{GA+4}, s[52:55], 0 offen offset:{2048*i}{NT}"]
        if 52 <= T <= 55:
            return zload(T - 52)
        if T in (56, 57):
            return zload(5 + 2 * (T - 56))
        if T >= 60:
            vq.append('e')
            return [oload(0, 2 * (T - 60) + 1)] + ([fl] if T == 63 else [])
        return []

    def tile(B, T, grp):
        t = T % 16
        c, n = S[t & 1], S[(t + 1) & 1]
        kb, vp = KF[(t + 1) & 1], VF[(t + 1) & 1]
        do_qk = T < 63
        rk = rdK(t + 2) if T < 62 else []
        rv = rdV(t + 1) if T < 63 else []
        E = lambda r: f"v_exp_f32 v{c+r}, v{c+r}"
        C = lambda r: f"v_cvt_pk_bf16_f32 v{P+r}, v{c+2*r}, v{c+2*r+1}"
        B("s_setprio 0")
        if T in (0, 48, 56):
            stamp2(B, {0: 1, 48: 5, 56: 7}[T])
        B("s_waitcnt lgkmcnt(0)")
        if do_qk:
            B(mfma32(n, kb, Q, NM))
        if T == 52:
            B(vwait('cz'))
            check_or_poll(B, 'POLLZ', WS, FA, 's56', GA + 5)
        if T == 60:
            B(vwait('f2'))
            B("s_mov_b32 s24, s63")
            avail(B)
            B("s_cselect_b32 s62, 1, 0")
            B("s_movk_i32 s24, 0x1111")
            B("s_cbranch_scc0 NOE")
            pick(0, B)
            B("NOE:")
        for x in slot_a(T):
            B(x)
        B(mfma32(O, vp, P, O))
        B(mfma32(O, vp + 4, P + 4, O))
        for x in rk:
            B(x)
        if do_qk:
            B(mfma32(n, kb + 4, Q + 4, n))
        for x in rv:
            B(x)
        B(SM)
        for x in slot_e(T):
            B(x)
        if T == 13:
            B(vwait('zt'))
        if T == 15:
            setflag(B, 's57', 12)
            vq.append('fl')
        nb = t % 4 == 1 and T + 1 < 62
        if nb:
            w = vwait(('kv', (T + 3) // 4))
            if grp == 'mid':
                w = "s_waitcnt vmcnt(4)"
            B(f"s_cbranch_vccnz SKB_{grp}_{t}")
            B(w)
            B("s_barrier")
            B(f"SKB_{grp}_{t}:")
        for r in range(8):
            B(E(2 * r)); B(E(2 * r + 1))
            if 1 <= r < 7:
                B(C(r - 1))
            if r == 1:
                B("s_setprio 2")
        B(C(6))
        B(C(7))
        if nb:
            B(f"s_cbranch_vccz SKA_{grp}_{t}")
            B(w)
            B("s_barrier")
            B(f"SKA_{grp}_{t}:")

    for T in range(16):
        tile(A, T, 'first')
    stamp2(A, 3)
    A("P2_LOOP:")
    n0 = len(A.ins)
    for T in range(16, 32):
        tile(A, T, 'mid')
    body = [i.text for i in A.ins[n0:]]
    B2 = Asm()
    for T in range(32, 48):
        tile(B2, T, 'mid')
    assert body == [i.text for i in B2.ins]
    A("s_add_u32 s14, s14, 1")
    A("s_cmp_lt_u32 s14, 2")
    A("s_cbranch_scc1 P2_LOOP")
    for T in range(48, 64):
        tile(A, T, 'last')
    A("s_setprio 0")
    A("s_waitcnt lgkmcnt(0)")
    A(mfma32(O, VF[1], P, O))
    A(mfma32(O, VF[1] + 4, P + 4, O))
    A(SM)
    stamp2(A, 9)
    stamp(A, 8)
    srd(A, 52, P_OUT, 8 * MB)
    A(f"s_mov_b32 s50, {L_THR:#x}")
    A("s_lshr_b32 s5, s3, 2")
    A("s_and_b32 s4, s3, 3")
    A("s_nop 0")
    A(f"v_add_f32 v{L}, v{L}, v{L+1}")
    A(f"v_cmp_nge_f32 vcc, s50, v{L}")
    A(f"v_rcp_f32 v12, v{L}")
    A("s_nop 1")
    A("s_cbranch_vccnz P2_SLOW")
    A("P2_FIN:")
    for r in range(16):
        A(f"v_mul_f32 v{O+r}, v{O+r}, v12")
    for r in range(8):
        A(f"v_cvt_pk_bf16_f32 v{OS+r}, v{O+2*r}, v{O+2*r+1}")
    A(f"buffer_store_dwordx4 {v(OS,4)}, v1, {WS}, s15 offen{SC}")
    A(f"buffer_store_dwordx4 {v(OS+4,4)}, v1, {WS}, s15 offen offset:1024{SC}")

    ACC = 32
    WF = [16, 24]

    def issue3(r):
        pick(r)
        for i in range(8):
            A(oload(r, i))

    A("s_barrier")
    for i in range(4):
        A(f"ds_write_b128 v{GA}, {v(WL+4*i,4)} offset:{8192*i}")
    A("v_lshrrev_b32 v4, 5, v0")
    A("v_bfe_u32 v5, v0, 2, 2")
    A("v_lshl_add_u32 v5, v4, 2, v5")
    A("v_lshlrev_b32 v5, 7, v5")
    A("v_and_b32 v6, 1, v0")
    A("v_lshl_add_u32 v5, v6, 5, v5")
    A("v_bfe_u32 v6, v0, 4, 1")
    A("v_lshl_add_u32 v5, v6, 4, v5")
    A("v_bfe_u32 v6, v0, 1, 1")
    A("v_lshl_add_u32 v5, v6, 3, v5")
    A("v_bfe_u32 v6, v0, 3, 1")
    A("v_xor_b32 v6, s5, v6")
    A("v_lshl_add_u32 v5, v6, 6, v5")
    A("s_lshl_b32 s13, s5, 16")
    A("v_add_u32 v12, s13, v5")
    A("v_xor_b32 v13, 64, v12")
    A("s_lshl_b32 s13, s3, 12")
    A(f"s_add_u32 s13, s13, {RING+32768}")
    A("v_add_u32 v6, s13, v1")
    A("v_xor_b32 v7, 0x4000, v6")
    A("v_bfe_u32 v8, v0, 1, 2")
    A("v_lshlrev_b32 v4, 1, v4")
    A("v_xor_b32 v8, v8, v4")
    A("v_lshlrev_b32 v8, 4, v8")
    A("v_and_b32 v4, 31, v0")
    A("v_lshl_add_u32 v8, v4, 6, v8")
    A("s_xor_b32 s13, s13, 0x4000")
    A("v_add_u32 v8, s13, v8")
    A("v_xor_b32 v9, 16, v8")
    A("v_bfe_u32 v4, v0, 3, 2")
    A("v_and_b32 v5, 3, v0")
    A("v_xor_b32 v4, v4, v5")
    A("v_lshlrev_b32 v4, 4, v4")
    A("v_lshrrev_b32 v5, 2, v0")
    A("v_lshl_add_u32 v5, v5, 12, v4")
    A("s_lshl_b32 s14, s40, 19")
    A("s_lshl_b32 s13, s4, 17")
    A("s_add_u32 s14, s14, s13")
    A("s_lshl_b32 s13, s41, 7")
    A("s_add_u32 s14, s14, s13")
    A("s_lshl_b32 s13, s5, 6")
    A("s_add_u32 s14, s14, s13")
    A("s_add_u32 s14, s14, 2048")
    A("s_add_u32 s15, s14, 65536")
    A("s_movk_i32 s13, 0x1000")
    A("s_mov_b32 s98, 0")

    def reads3(step):
        b = step & 1
        return [f"ds_read_b64_tr_b16 {v(WF[b]+4*nt+2*j,2)}, v{14+nt} offset:{(16*step+8*j)*128}"
                for nt in range(2) for j in range(2)]

    T = 112
    gat = []
    for i in range(2):
        for dw in range(4):
            for hi in range(2):
                zr = ZR + 2 * dw + hi
                gat.append(f"v_and_b32 v{T+hi}, 0xffff0000, v{zr}" if i else f"v_lshlrev_b32 v{T+hi}, 16, v{zr}")
            gat.append(f"v_lshlrev_b32 v{T+2}, 16, v{QR+4*i+dw}")
            gat.append(f"v_and_b32 v{T+3}, 0xffff0000, v{QR+4*i+dw}")
            gat.append(f"v_mul_f32 v{T}, v{T}, v{T+2}")
            gat.append(f"v_mul_f32 v{T+1}, v{T+1}, v{T+3}")
            gat.append(f"v_cvt_pk_bf16_f32 v{QR+4*i+dw}, v{T}, v{T+1}")

    def consume(c, y):
        stamp3(A, 5 + c)
        A(f"v_add_u32 v14, s{16+c}, v12")
        A(f"v_add_u32 v15, s{16+c}, v13")
        for x in reads3(0):
            A(x)
        for step in range(8):
            nxt = reads3(step + 1) if step < 7 else []
            for x in nxt:
                A(x)
            A((f"s_waitcnt vmcnt({y+7-step}) " if y is not None else "s_waitcnt ") + f"lgkmcnt({len(nxt)})")
            for nt in range(2):
                A(mfma32(ACC + 16 * nt, WF[step & 1] + 4 * nt, ofr(8 * c + step),
                         '0' if (c == 0 and step == 0) else ACC + 16 * nt))
                if c == GC:
                    for x in gat[7 * step + 4 * nt:7 * step + 4 + 3 * nt]:
                        A(x)
        if c == GC:
            A(f"buffer_store_dwordx4 {v(QR,4)}, v{GA+3}, s[52:55], 0 offen{OM}")
            A(f"buffer_store_dwordx4 {v(QR+4,4)}, v{GA+3}, s[52:55], s13 offen{OM}")

    A("s_waitcnt vmcnt(2)")
    avail()
    stamp3(A, 2)
    A("s_cmp_eq_u32 s62, 0")
    A("s_cbranch_scc1 P3_W0")
    A("s_cmp_eq_u32 s25, 0")
    A("s_cbranch_scc1 P3_E1")
    issue3(1)
    A("s_mov_b32 s62, 2")
    A("P3_E1:")
    consume(0, None)
    A("s_cmp_eq_u32 s62, 2")
    A("s_cbranch_scc1 P3_E2")
    A("s_waitcnt vmcnt(0)")
    A("P3_E2:")
    A("s_waitcnt vmcnt(8)")
    A("s_barrier")
    setflag(A, 's58', 10)
    stamp(A, 9)
    A("s_cmp_eq_u32 s62, 2")
    A("s_cbranch_scc1 TRY_1_2")
    A("s_branch TRY_1_1")
    A("P3_W0:")
    A("s_waitcnt vmcnt(0) lgkmcnt(0)")
    A("s_barrier")
    setflag(A, 's58', 10)
    stamp(A, 9)

    LK = int(os.environ.get('LK', 2))

    def state(c, n):
        A(f"TRY_{c}_{n}:")
        can = n < 4 and n - c < LK
        if can:
            A("s_cmp_lg_u32 s25, 0")
            A(f"s_cbranch_scc1 ISS_{c}_{n}")
            if c == n:
                A(f"POL_{c}:")
                A(fl)
                A("s_waitcnt vmcnt(0)")
                avail()
                A(f"s_cbranch_scc1 ISS_{c}_{n}")
                A(f"s_sleep {SLP3}")
                A("s_add_u32 s98, s98, 1")
                A("s_cmp_lt_u32 s98, 0x80000")
                A(f"s_cbranch_scc1 POL_{c}")
                A("s_branch P3_RED")
        if c < n:
            y = 8 * (n - 1 - c)
            if n < 4:
                A(fl)
                y += 1
            consume(c, y)
            if n < 4:
                A("s_cmp_lg_u32 s25, 0")
                A(f"s_cbranch_scc1 ISS_{c+1}_{n}")
                A("s_waitcnt vmcnt(0)")
                avail()
            if (c + 1, n) != (4, 4):
                if not (n == 4):
                    A(f"s_branch TRY_{c+1}_{n}")
        if can:
            A(f"ISS_{c}_{n}:")
            issue3(n)
            A(f"s_branch TRY_{c}_{n+1}")

    for n in range(4):
        for c in range(n + 1):
            if n - c <= LK:
                state(c, n)
    for c in range(4):
        if 4 - c <= LK:
            state(c, 4)
    A("P3_RED:")
    stamp3(A, 9)
    A("s_nop 7")
    A("s_nop 3")
    for i in range(4):
        A(f"ds_write_b128 v6, {v(ACC+16+4*i,4)} offset:{1024*i}")
    A("s_waitcnt lgkmcnt(0)")
    A("s_barrier")
    stamp3(A, 10)
    for i in range(4):
        A(f"ds_read_b128 {v(64+4*i,4)}, v7 offset:{1024*i}")
    for i in range(4):
        A(f"s_waitcnt lgkmcnt({3-i})")
        for r in range(4):
            A(f"v_add_f32 v{ACC+4*i+r}, v{ACC+4*i+r}, v{64+4*i+r}")
    for r in range(8):
        A(f"v_cvt_pk_bf16_f32 v{16+r}, v{ACC+2*r}, v{ACC+2*r+1}")
    A("ds_write_b128 v8, v[16:19]")
    A("ds_write_b128 v9, v[20:23]")
    A("ds_read_b128 v[24:27], v7")
    A("ds_read_b128 v[28:31], v7 offset:1024")
    A("s_waitcnt lgkmcnt(1)")
    A(f"buffer_store_dwordx4 v[24:27], v5, s[52:55], s14 offen{OM}")
    A("s_waitcnt lgkmcnt(0)")
    A(f"buffer_store_dwordx4 v[28:31], v5, s[52:55], s15 offen{OM}")
    stamp(A, 11)
    dump_stamps(A, 12, 8)
    A("K_END:")
    A("s_endpgm")

    A("P2_SLOW:")
    A("v_mov_b32 v12, 0xff7fffff")
    A("s_mov_b32 s50, s6")
    A("s_mov_b32 s49, 0")
    A("P2_SLOW1:")
    A(f"buffer_load_dwordx4 {v(KF[0],4)}, v1, {WS}, s50 offen{SC}")
    A(f"buffer_load_dwordx4 {v(KF[0]+4,4)}, v1, {WS}, s50 offen offset:1024{SC}")
    A("s_waitcnt vmcnt(0)")
    A(mfma32(s1, KF[0], Q, '0'))
    A(mfma32(s1, KF[0] + 4, Q + 4, s1))
    A("s_nop 7")
    A("s_nop 3")
    for r in range(0, 16, 2):
        A(f"v_max3_f32 v12, v12, v{s1+r}, v{s1+r+1}")
    A("s_add_u32 s50, s50, 4096")
    A("s_add_u32 s49, s49, 1")
    A("s_cmp_lt_u32 s49, 64")
    A("s_cbranch_scc1 P2_SLOW1")
    A("v_mov_b32 v13, v12")
    A("s_nop 1")
    A("v_permlane32_swap_b32 v12, v13")
    A("v_max_f32 v12, v12, v13")
    for r in range(16):
        A(f"v_xor_b32 v{NM+r}, 0x80000000, v12")
        A(f"v_mov_b32 v{O+r}, 0")
    for r in range(4):
        A(f"v_mov_b32 v{L+r}, 0")
    A("s_mov_b32 s50, s6")
    A("s_mov_b32 s49, 0")
    A("P2_SLOW2:")
    A(f"buffer_load_dwordx4 {v(KF[0],4)}, v1, {WS}, s50 offen{SC}")
    A(f"buffer_load_dwordx4 {v(KF[0]+4,4)}, v1, {WS}, s50 offen offset:1024{SC}")
    A(f"buffer_load_dwordx4 {v(VF[0],4)}, v1, {WS}, s50 offen offset:2048{SC}")
    A(f"buffer_load_dwordx4 {v(VF[0]+4,4)}, v1, {WS}, s50 offen offset:3072{SC}")
    A("s_waitcnt vmcnt(0)")
    A(mfma32(s1, KF[0], Q, NM))
    A(mfma32(s1, KF[0] + 4, Q + 4, s1))
    A("s_nop 7")
    A("s_nop 3")
    for r in range(16):
        A(f"v_exp_f32 v{s1+r}, v{s1+r}")
    A("s_nop 0")
    for r in range(8):
        A(f"v_cvt_pk_bf16_f32 v{P+r}, v{s1+2*r}, v{s1+2*r+1}")
    A("s_nop 1")
    A(mfma32(O, VF[0], P, O))
    A(mfma32(O, VF[0] + 4, P + 4, O))
    A(SM)
    A("s_add_u32 s50, s50, 4096")
    A("s_add_u32 s49, s49, 1")
    A("s_cmp_lt_u32 s49, 64")
    A("s_cbranch_scc1 P2_SLOW2")
    A("s_nop 7")
    A("s_nop 3")
    A(f"v_add_f32 v{L}, v{L}, v{L+1}")
    A(f"v_rcp_f32 v12, v{L}")
    A("s_nop 0")
    A("s_branch P2_FIN")
    A("K_LAST:")
    return kd(NAME, 256, 102)


def build(path):
    hdr = open('concat_heads__ssm_conv_h3__mha_block__prompt.s.ref').read().split('\n')
    hdr = [l for l in hdr if l.startswith(';') and '@launch' not in l]
    A = Asm()
    k = gen(A)
    A.check()
    out = '\n'.join(hdr) + '\n' + f"; @launch grid=(256,1,1) block=(512,1,1) lds={LDS}\n"
    out += '.amdgcn_target "amdgcn-amd-amdhsa--gfx950"\n.text\n' + A.text()
    out += '.section .rodata,"a"\n' + k
    import subprocess
    open(path, 'w').write(out.replace('CODE_CHUNKS', '0'))
    subprocess.run(['clang', '-x', 'assembler', '-target', 'amdgcn-amd-amdhsa', '-mcpu=gfx950', '-c',
                    path, '-o', '_sz.o'], check=True)
    sz = int([l for l in subprocess.run(['llvm-objdump', '-h', '_sz.o'], capture_output=True,
                                        text=True).stdout.split('\n') if '.text' in l][0].split()[2], 16)
    pad = (-(sz - 256)) % 8192
    chunks = (sz - 256 + pad) // 8192
    out = out.replace('CODE_CHUNKS', str(chunks - 1))
    out = out.replace('K_LAST:\n', f'K_LAST:\n.fill {pad//4+64}, 4, 0xbf810000\n')
    open(path, 'w').write(out)
    print('code bytes', sz, 'chunks', chunks)
    ok = {x: True for x in ('POLLU_OK', 'POLL1_OK', 'POLLZ_OK', 'INITP_OK')}
    loop = {'P2_LOOP': lambda c: c < 1, 'P1_LOOP': lambda c: c < 2, 'CONV_LOOP': lambda c: c < 3}
    skb = {f'SKB_{g}_{t}': True for g in ('first', 'mid', 'last') for t in range(16)}
    ska = {f'SKA_{g}_{t}': True for g in ('first', 'mid', 'last') for t in range(16)}
    iss_all = {f'ISS_{c}_{n}': True for c in range(4) for n in range(4)}
    iss_late = {f'ISS_{c}_{c}': True for c in range(4)}
    e2 = {'P3_E2': True, 'TRY_1_2': True}
    A.check_trace(NAME, {**ok, **loop, **skb, **iss_all, **e2}, 'compute init, all ready')
    A.check_trace(NAME, {**ok, **loop, **skb, **iss_late, 'NOINIT': True, 'P1_COMPUTE': True, 'NOPOLL1': True,
                         'NOE': True, 'P3_W0': True}, 'compute one by one')
    A.check_trace(NAME, {**ok, **loop, **ska, 'P1_LOADER': True, 'NOUT': True, 'NOSIGU': True, 'NOE': True, 'P3_W0': True,
                         'ISS_0_0': True, 'ISS_0_1': True, 'ISS_2_2': True, 'ISS_2_3': True}, 'loader late, 2+2')
    A.check_trace(NAME, {**ok, **loop, **ska, 'P1_LOADER': True, 'U_EARLY': True, 'P3_E1': True, 'ISS_1_1': True,
                         'ISS_1_2': True, 'ISS_3_3': True}, 'loader early')
    A.check_trace(NAME, {**ok, **loop, **ska, **iss_all, **e2, 'P1_LOADER': True, 'P2_SLOW': True,
                         'P2_SLOW1': lambda c: c < 2, 'P2_SLOW2': lambda c: c < 2}, 'slow')
    return A


if __name__ == '__main__':
    build(sys.argv[1] if len(sys.argv) > 1 else 'f.s')
```

```python
import sys, struct, math, os
sys.path.insert(0, 'dev')
from asmlib import *

OPT = set(os.environ.get('OPT', '').split(','))
PROF = 'prof' in OPT
NAME = 'concat_heads__ssm_conv_h3__mha_block__prompt_kernel'
LA = int(os.environ.get('LA', 2))
SLP = int(os.environ.get('SLP', 2))
SLP3 = int(os.environ.get('SLP3', 3))

MB = 1 << 20
WS_QF = 0
WS_KV = 4 * MB
WS_OF = 12 * MB
WS_UT = 16 * MB
WS_ZT = 20 * MB
WS_SYNC = 24 * MB
F1 = WS_SYNC
FU = WS_SYNC + 32768
FZ = WS_SYNC + 65536
F2 = WS_SYNC + 98304
CNT_LDS = 4 * (4 * 4160 + 64) + 4 * 4608
WS_SIZE = 24 * MB + 131072
WS_PROF = 32 * MB

P_Q, P_K, P_V, P_SH, P_SSMK, P_D, P_X, P_W, P_WO, P_OUT, P_DBG, P_WS = [16 + 2 * i for i in range(12)]
SRD_WS = 8
WS = f"s[{SRD_WS}:{SRD_WS+3}]"


def f32bits(x):
    return struct.unpack('<I', struct.pack('<f', x))[0]


QSCALE = f32bits(math.log2(math.e) / math.sqrt(32.0))
L_THR = f32bits(2.0 ** 60)

SLOT = 40960
LDS = 163840
HCS = 4160
HC_STRIDE = 4 * HCS + 64
U_BASE = 4 * HC_STRIDE
U_SZ = 4608
RING = 98304
SC = ' sc1'
NT = ' nt'
OM = ' ' + os.environ.get('OM', 'sc1')
GC = int(os.environ.get('GC', 3))
MT = 's_memrealtime' if 'rt' in OPT else 's_memtime'
MK = "s[100:101]"


def srd(A, d, p, size):
    A(f"s_mov_b32 s{d}, s{p}")
    A(f"s_and_b32 s{d+1}, s{p+1}, 0xffff")
    A(f"s_mov_b32 s{d+2}, {size}")
    A(f"s_mov_b32 s{d+3}, 0x00020000")


def mfma32(d, a, b, c):
    cs = c if isinstance(c, str) else v(c, 16)
    return f"v_mfma_f32_32x32x16_bf16 {v(d,16)}, {v(a,4)}, {v(b,4)}, {cs}"


def mfma16(d, a, b, c):
    cs = c if isinstance(c, str) else v(c, 4)
    return f"v_mfma_f32_16x16x32_bf16 {v(d,4)}, {v(a,4)}, {v(b,4)}, {cs}"


def stamp1(A, idx):
    if PROF and 'p1' in OPT:
        A(f"{MT} s[{70+2*idx}:{71+2*idx}]")


def stamp2(A, idx):
    if PROF and 'p2' in OPT:
        A(f"s_memrealtime s[{70+2*idx}:{71+2*idx}]")
        A(f"s_memtime s[{72+2*idx}:{73+2*idx}]")


def stamp3(A, idx):
    if PROF and 'p3' in OPT:
        A(f"s_memrealtime s[{70+2*idx}:{71+2*idx}]")
        A("s_waitcnt lgkmcnt(0)")


def stamp(A, idx):
    if PROF and ('p1' in OPT or 'p2' in OPT) and idx != 0:
        return
    if PROF and 'p3' in OPT:
        idx = {0: 0, 8: 1, 9: 3, 10: 4, 11: 11}.get(idx)
        if idx is None:
            return
    if PROF:
        A(f"{MT} s[{70+2*idx}:{71+2*idx}]")
        if idx == 0:
            A("s_memrealtime s[68:69]")
        else:
            A("s_waitcnt lgkmcnt(0)")


def dump_stamps(A, n, vt=2):
    if not PROF:
        return
    A("s_memrealtime s[62:63]")
    A("s_waitcnt lgkmcnt(0)")
    A(f"s_add_u32 s64, s{P_WS}, {WS_PROF}")
    A(f"s_addc_u32 s65, s{P_WS+1}, 0")
    A("s_and_b32 s65, s65, 0xffff")
    A(f"s_mov_b32 s66, {MB}")
    A("s_mov_b32 s67, 0x00020000")
    A("s_lshl_b32 s60, s2, 10")
    A("s_lshl_b32 s61, s3, 6")
    A("s_add_u32 s60, s60, s61")
    A(f"v_mov_b32 v{vt+1}, 0")
    for i in range(n):
        A(f"v_mov_b32 v{vt}, s{70+2*i}")
        A(f"buffer_store_dword v{vt}, v{vt+1}, s[64:67], s60 offen offset:{4*i}")
    A(f"v_mov_b32 v{vt}, s68")
    A(f"buffer_store_dword v{vt}, v{vt+1}, s[64:67], s60 offen offset:56")
    A(f"v_mov_b32 v{vt}, s62")
    A(f"buffer_store_dword v{vt}, v{vt+1}, s[64:67], s60 offen offset:60")
    A("s_waitcnt vmcnt(0)")


FA = 254


def all_set(A, vt, val=1):
    A(f"v_cmp_eq_u32 {MK}, 1, v{vt}" if val == 1 else f"v_cmp_le_u32 {MK}, {val}, v{vt}")
    A(f"s_cmp_eq_u64 {MK}, -1")


def poll(A, name, srds, va, soff, vt, val=1):
    A("s_mov_b32 s98, 0")
    A(f"{name}:")
    A(f"buffer_load_dword v{vt}, v{va}, {srds}, {soff} offen sc1")
    A("s_waitcnt vmcnt(0)")
    all_set(A, vt, val)
    A(f"s_cbranch_scc1 {name}_OK")
    A(f"s_sleep {SLP}")
    A("s_add_u32 s98, s98, 1")
    A("s_cmp_lt_u32 s98, 0x80000")
    A(f"s_cbranch_scc1 {name}")
    A(f"{name}_OK:")


def check_or_poll(A, name, srds, va, soff, vt, val=1):
    all_set(A, vt, val)
    A(f"s_cbranch_scc1 {name}_OK")
    poll(A, name, srds, va, soff, vt, val)


def setflag(A, soff, vt, srds=WS):
    A("s_mov_b64 exec, 1")
    A(f"v_mov_b32 v{vt}, 1")
    A(f"buffer_store_dword v{vt}, v2, {srds}, {soff} offen sc1")
    A("s_mov_b64 exec, -1")


def gen(A):
    A(f".globl {NAME}")
    A(".p2align 8")
    A(f".type {NAME},@function")
    A(f"{NAME}:")
    A("s_cmp_ge_u32 s2, 256")
    A("s_cbranch_scc1 K_END")
    A("s_load_dwordx16 s[16:31], s[0:1], 0")
    A("s_load_dwordx8 s[32:39], s[0:1], 64")
    A("v_lshrrev_b32 v1, 6, v0")
    A("v_and_b32 v0, 63, v0")
    A("v_readfirstlane_b32 s3, v1")
    stamp(A, 0)
    A("s_and_b32 s4, s2, 1")
    A("s_lshl_b32 s4, s4, 3")
    A("s_bfe_u32 s5, s2, 0x30003")
    A("s_or_b32 s4, s4, s5")
    A("s_bfe_u32 s5, s2, 0x20001")
    A("s_lshl_b32 s5, s5, 2")
    A("s_lshr_b32 s6, s2, 6")
    A("s_or_b32 s5, s5, s6")
    A("v_lshlrev_b32 v1, 4, v0")
    A("v_mov_b32 v2, 0")
    A(f"v_and_b32 v{FA}, 15, v0")
    A(f"v_lshlrev_b32 v{FA}, 7, v{FA}")
    A("s_cmp_lt_u32 s3, 4")
    A("s_cbranch_scc0 P1_LOADER")
    if 'nocp' not in OPT:
        A("s_and_b32 s6, s2, 0x30")
        A("s_cbranch_scc1 P1_COMPUTE")
        A("s_getpc_b64 s[40:41]")
        A("s_bfe_u32 s6, s2, 0x10003")
        A("s_lshl_b32 s6, s6, 2")
        A("s_add_u32 s6, s6, s3")
        A("s_min_u32 s6, s6, CODE_CHUNKS")
        A("s_lshl_b32 s6, s6, 13")
        A("v_lshl_add_u32 v3, v0, 7, s6")
        A("global_load_dword v255, v3, s[40:41]")
    A("s_branch P1_COMPUTE")

    A("P1_LOADER:")
    A("s_sub_u32 s6, s3, 4")
    A("v_lshrrev_b32 v3, 3, v0")
    A("v_and_b32 v4, 7, v0")
    A("v_lshrrev_b32 v11, 4, v0")
    A("v_xor_b32 v5, v4, v11")
    A("v_lshlrev_b32 v5, 4, v5")
    A("v_lshl_add_u32 v5, v3, 11, v5")
    A("v_xor_b32 v6, 64, v5")
    A(f"v_add_u32 v6, {15360}, v6")
    A(f"v_add_u32 v7, {2*15360}, v5")
    A(f"v_add_u32 v8, {2*15360}, v6")
    A("v_and_b32 v9, 1, v11")
    A("v_lshlrev_b32 v9, 2, v9")
    A("v_xor_b32 v9, v9, v4")
    A("v_lshlrev_b32 v9, 4, v9")
    A("v_mul_u32_u24 v10, 6144, v3")
    A("v_add_u32 v9, v9, v10")
    A(f"v_add_u32 v10, {49152-1024}, v9")
    A("s_lshl_b32 s12, s4, 18")
    A("s_lshl_b32 s13, s6, 16")
    A("s_add_u32 s96, s12, s13")
    A(f"s_mul_i32 s13, s6, {16*6144}")
    A("s_lshl_b32 s14, s5, 7")
    A("s_add_u32 s97, s13, s14")
    A("s_add_u32 s95, s4, s5")
    A("s_and_b32 s95, s95, 3")
    A("s_mul_i32 s15, s6, 10240")
    A("s_waitcnt lgkmcnt(0)")
    srd(A, 40, P_X, 4 * MB)
    srd(A, 44, P_W, 6 * MB)

    vm = []
    fill = []

    def F(n):
        for _ in range(n):
            if fill:
                A(fill.pop(0))

    def issue_stage(st, nf=0):
        slot = st % 4
        A(f"s_xor_b32 s14, s95, {st}")
        A("s_lshl_b32 s12, s14, 7")
        A(f"s_add_u32 m0, s15, {slot*SLOT}")
        A("s_add_u32 s12, s12, s96")
        for j in range(4):
            A(f"buffer_load_dwordx4 v{5+j}, s[40:43], s12 offen offset:{j*1024} lds")
            F(nf)
        A(f"s_mul_i32 s14, s14, {64*6144}")
        A(f"s_add_u32 m0, s15, {slot*SLOT+4096}")
        A("s_add_u32 s13, s14, s97")
        for t in range(4):
            A(f"buffer_load_dwordx4 v{9+(t&1)}, s[44:47], s13 offen offset:{t*1024} lds")
            F(nf)
        A(f"s_add_u32 m0, s15, {slot*SLOT+8192}")
        A("s_add_u32 s13, s13, 4096")
        for t in range(2):
            A(f"buffer_load_dwordx4 v{9+t}, s[44:47], s13 offen offset:{t*1024} lds")
            F(nf)
        vm.extend([('st', st)] * 10)

    def wait_tag(tag):
        last = max(i for i, t in enumerate(vm) if t == tag)
        A(f"s_waitcnt vmcnt({len(vm) - 1 - last})")
        del vm[:last + 1]

    issue_stage(0)
    issue_stage(1)

    KR, VR, WR, T, OUT = 20, 42, 60, 68, 104
    srd(A, 48, P_K, 4 * MB)
    srd(A, 52, P_V, 4 * MB)
    srd(A, 60, P_SH, 8192)
    A("s_lshr_b32 s7, s2, 4")
    A("s_lshl_b32 s7, s7, 7")
    A("s_lshl_b32 s64, s6, 5")
    A("s_add_u32 s7, s7, s64")
    A("s_and_b32 s64, s2, 15")
    A("s_lshl_b32 s64, s64, 6")
    A("v_lshl_add_u32 v11, v11, 3, s7")
    A("v_and_b32 v12, 15, v0")
    A("v_lshl_add_u32 v12, v12, 2, s64")
    A("v_lshlrev_b32 v13, 1, v12")
    A("v_lshl_add_u32 v15, v11, 11, v13")
    A("v_subrev_u32 v13, 6144, v15")
    A("v_subrev_u32 v14, 2048, v15")
    A("v_lshlrev_b32 v17, 3, v12")
    A("s_movk_i32 s64, 0x1000")
    A("s_movk_i32 s65, 0x2000")
    A("s_movk_i32 s66, 0x3000")
    so4 = ['0', 's64', 's65', 's66']
    rows = [(13, '0', 0), (13, '0', 2048), (14, '0', 0)] + [(15, so4[i // 2], 2048 * (i & 1)) for i in range(8)]

    def prep_loads():
        for i in range(2):
            A(f"buffer_load_dwordx4 {v(WR+4*i,4)}, v17, s[60:63], 0 offen offset:{16*i}")
        for i, (a, so, o) in enumerate(rows):
            A(f"buffer_load_dwordx2 {v(KR+2*i,2)}, v{a}, s[48:51], {so} offen offset:{o}{NT}")
        for i, (a, so, o) in enumerate(rows[3:]):
            A(f"buffer_load_dwordx2 {v(VR+2*i,2)}, v{a}, s[52:55], {so} offen offset:{o}{NT}")
        vm.extend(['prep'] * 21)
    ST_PL = int(os.environ.get('ST_PL', -1))
    if ST_PL < 0:
        prep_loads()
    A("v_sub_u32 v18, 2040, v11")
    A("v_lshlrev_b32 v18, 1, v18")
    A("v_lshl_add_u32 v18, v12, 12, v18")
    A(f"v_add_u32 v18, {WS_UT}, v18")
    srd(A, SRD_WS, P_WS, WS_SIZE)
    srd(A, 56, P_DBG, 256)

    prep = []
    for j in range(4):
        dw, hi = j // 2, j & 1

        def unp(dst, src):
            return f"v_and_b32 v{dst}, 0xffff0000, v{src}" if hi else f"v_lshlrev_b32 v{dst}, 16, v{src}"
        for i in range(11):
            prep.append(unp(T + i, KR + 2 * i + dw))
        prep.append(f"v_lshlrev_b32 v{T+11}, 16, v{WR+2*j}")
        prep.append(f"v_and_b32 v{T+12}, 0xffff0000, v{WR+2*j}")
        prep.append(f"v_lshlrev_b32 v{T+13}, 16, v{WR+2*j+1}")
        prep.append(f"v_and_b32 v{T+14}, 0xffff0000, v{WR+2*j+1}")
        for i in range(8):
            prep.append(f"v_mul_f32 v{T+15+i}, v{T+i}, v{T+14}")
        for t in (2, 1, 0):
            for i in range(8):
                prep.append(f"v_fmac_f32 v{T+15+i}, v{T+3+i-t}, v{T+11+t}")
        for i in range(8):
            prep.append(unp(T + i, VR + 2 * i + dw))
        for i in range(8):
            prep.append(f"v_mul_f32 v{T+15+i}, v{T+15+i}, v{T+i}")
        for i in range(4):
            prep.append(f"v_cvt_pk_bf16_f32 v{OUT+4*j+i}, v{T+15+7-2*i}, v{T+15+6-2*i}")

    def h_loads():
        A("s_lshl_b32 s7, s2, 2")
        A("s_add_u32 s7, s7, s6")
        A("s_lshl_b32 s64, s7, 12")
        A(f"s_mul_i32 s65, s6, {HCS}")
        A(f"s_mul_i32 s66, s6, {U_SZ}")
        A(f"s_add_u32 s66, s66, {U_BASE}")
        srd(A, 48, P_SSMK, 4 * MB)
        srd(A, 52, P_D, 2048)
        HN = NT if ('hnt' in OPT or 'hall' in OPT) else ''
        for j in range(4):
            A(f"buffer_load_dwordx4 {v(HD+8*j,4)}, v1, s[48:51], s64 offen offset:{1024*j}{HN}")
        for j in range(4):
            A(f"buffer_load_dwordx2 {v(HD+8*j+4,2)}, v1, s[48:51], s64 offen offset:{1024*j+16}{HN}")
        A("buffer_load_dwordx2 v[200:201], v2, s[48:51], s64 offen")
        A("s_lshl_b32 s7, s7, 1")
        A("buffer_load_ushort v202, v2, s[52:55], s7 offen")
        A("v_add_u32 v205, s65, v1")
        vm.extend(['h'] * 10)

    HD = 120

    def h_write(c):
        if 'hall' in OPT and not c & 1:
            for j in range(4):
                if c == 4:
                    src = HD + 8 * j + 2
                else:
                    src = 208 + 4 * (j & 1)
                    for i in range(4):
                        A(f"v_mov_b32 v{src+i}, v{HD+8*j+1+i}")
                A(f"ds_write_b128 v205, {v(src,4)} offset:{(c-1)*HC_STRIDE+32+1024*j}")
                A("s_nop 3")
            return
        if c & 1:
            for j in range(4):
                d = HD + 8 * j + (c >> 1)
                o = 208 + 4 * (j & 1)
                for i in range(4):
                    A(f"v_alignbit_b32 v{o+i}, v{d+i+1}, v{d+i}, 16")
                A(f"ds_write_b128 v205, {v(o,4)} offset:{(c-1)*HC_STRIDE+32+1024*j}")
                A("s_nop 7")
            return
        A(f"s_add_u32 s7, s64, {2*c}")
        A(f"s_add_u32 m0, s65, {(c-1)*HC_STRIDE+32}")
        A("s_nop 0")
        for j in range(4):
            A(f"buffer_load_dwordx4 v1, s[48:51], s7 offen offset:{j*1024} lds")
        vm.extend(['cv'] * 4)

    FR, UR, YR = [32, 96], [64, 128], 160
    csetup = [
        "v_lshrrev_b32 v221, 1, v0",
        f"v_mul_u32_u24 v221, {HC_STRIDE}, v221",
        "v_and_b32 v222, 1, v0",
        "v_lshl_add_u32 v221, v222, 4, v221",
        "v_add_u32 v221, s65, v221",
        "v_subrev_u32 v222, 8, v0",
        "v_min_u32 v222, 31, v222",
        "v_lshlrev_b32 v222, 4, v222",
        "v_add_u32 v222, 4096, v222",
        "v_add_u32 v222, s66, v222",
        "v_cmp_gt_u32 vcc, 8, v0"] + [f"v_mov_b32 v{YR+r}, 0" for r in range(32)] + [
        "v_cndmask_b32 v221, v222, v221, vcc",
        "v_and_b32 v222, 3, v0",
        f"v_mul_u32_u24 v223, {HC_STRIDE}, v222",
        "v_lshlrev_b32 v222, 1, v222",
        "v_sub_u32 v222, v223, v222",
        "v_add_u32 v222, 30, v222",
        "v_add_u32 v222, s65, v222",
        "v_lshrrev_b32 v224, 4, v0",
        "v_lshl_add_u32 v223, v224, 4, v223",
        "v_bfe_u32 v225, v0, 2, 2",
        "v_lshl_add_u32 v223, v225, 3, v223",
        "v_add_u32 v223, s65, v223",
        "v_and_b32 v225, 15, v0",
        "v_lshlrev_b32 v226, 5, v225",
        "v_lshlrev_b32 v227, 4, v224",
        "v_sub_u32 v227, v227, v226",
        "v_lshl_add_u32 v226, v224, 3, v226",
        "v_add_u32 v227, 480, v227",
        "v_add_u32 v224, s66, v227",
        f"v_sub_u32 v225, {4088-3584}, v226",
        "v_add_u32 v225, s66, v225",
        f"v_mov_b32 v227, {CNT_LDS}",
    ]
    ST_H = int(os.environ.get('ST_H', 0))
    ST_PC = ST_PL + LA + 1
    NF = int(os.environ.get('NF', 9))
    ST_UT = ST_PC + (268 + 10 * NF - 1) // (10 * NF) - 1
    ST_SIG = ST_UT + LA + 1
    ST_CU = int(os.environ.get('ST_CU', 10))
    ST_UCHK = int(os.environ.get('ST_UCHK', 13))
    assert ST_UCHK >= ST_CU + LA + 1
    assert ST_UT >= ST_H >= ST_PL and ST_SIG < ST_CU and ST_CU + LA + 1 <= 15
    for st in range(16):
        wait_tag(('st', st))
        A("s_barrier")
        if st == ST_PC:
            assert 'prep' not in vm
            fill.extend(prep)
        if st == 0:
            for k in range(2, LA + 1):
                issue_stage(k)
        elif st + LA < 16:
            issue_stage(st + LA, NF)
        if st == ST_PL:
            prep_loads()
        if st == ST_H:
            h_loads()
        if st == ST_UT:
            A("buffer_load_dword v19, v2, s[56:59], 0 offen sc1")
            vm.append('if')
            F(len(fill))
            A("s_movk_i32 s7, 0x1000")
            A("s_movk_i32 s12, 0x2000")
            A("s_movk_i32 s13, 0x3000")
            for j, so in enumerate(['0', 's7', 's12', 's13']):
                A(f"buffer_store_dwordx4 {v(OUT+4*j,4)}, v18, {WS}, {so} offen{SC}")
                vm.append('ut')
        if st == ST_SIG:
            assert 'ut' not in vm and 'if' not in vm
            check_or_poll(A, 'INITP', 's[56:59]', 2, '0', 19, 16)
            A("s_cmp_lg_u32 s6, 0")
            A("s_cbranch_scc1 NOSIGU")
            A("s_and_b32 s7, s2, 15")
            A("s_lshl_b32 s7, s7, 4")
            A("s_lshr_b32 s12, s2, 4")
            A("s_add_u32 s7, s7, s12")
            A("s_lshl_b32 s7, s7, 7")
            A(f"s_add_u32 s7, s7, {FU}")
            setflag(A, 's7', 11)
            A("NOSIGU:")
        if st == ST_CU:
            A("s_lshr_b32 s7, s2, 4")
            A("s_lshl_b32 s7, s7, 11")
            A(f"s_add_u32 s67, s7, {FU}")
            A(f"buffer_load_dword v19, v{FA}, {WS}, s67 offen sc1")
            vm.append('cu')
        if st == ST_UCHK:
            assert 'cu' not in vm
            all_set(A, 19)
            A("s_cbranch_scc0 NOUT")
            A(f"s_add_u32 s12, s64, {WS_UT}")
            A("v_min_u32 v203, 31, v0")
            A("v_lshlrev_b32 v203, 7, v203")
            A(f"buffer_load_dword v204, v203, {WS}, s12 offen sc1")
            A("NOUT:")
        if st == ST_UT + 1:
            fill.extend(csetup)
        if st == 14:
            A(f"buffer_load_dword v19, v{FA}, {WS}, s67 offen sc1")
            vm.append('cu2')
            F(len(fill))
            h_write(2)
            h_write(4)
            h_write(1)
            h_write(3)
    A(f"ds_write_b128 v221, {v(YR,4)}")
    A("ds_write_b32 v227, v2")
    A("v_lshlrev_b32 v220, 16, v202")
    A(f"s_add_u32 s12, s64, {WS_UT}")
    A("s_mov_b32 m0, s66")
    wait_tag('cu2')
    all_set(A, 19)
    A("s_cbranch_scc1 U_EARLY")
    A("s_waitcnt lgkmcnt(0)")
    A("s_barrier")
    poll(A, 'POLLU', WS, FA, 's67', 19)
    for j in range(4):
        A(f"buffer_load_dwordx4 v1, {WS}, s12 offen offset:{j*1024}{SC} lds")
    A("s_branch U_JOIN")
    A("U_EARLY:")
    for j in range(4):
        A(f"buffer_load_dwordx4 v1, {WS}, s12 offen offset:{j*1024}{SC} lds")
    A("s_waitcnt lgkmcnt(0)")
    A("s_barrier")
    A("U_JOIN:")
    stamp(A, 1)
    A("s_waitcnt vmcnt(4)")
    A("ds_write_b64 v222, v[200:201]")
    A(f"s_add_u32 s7, s64, {WS_ZT}")
    A("v_add_u32 v216, s7, v226")
    pairs = [(a, b) for a in range(8) for b in range(8) if a + b <= 7]

    def cF(rho):
        o = []
        for a in range(8):
            o.append(f"ds_read_b64 {v(FR[rho&1]+4*a,2)}, v223 offset:{512*a+64*rho}")
            o.append(f"ds_read_b64 {v(FR[rho&1]+4*a+2,2)}, v223 offset:{512*a+64*rho+8}")
        return o

    def cU(rho):
        return [f"ds_read_b128 {v(UR[rho&1]+4*b,4)}, v224 offset:{512*(7-b)+64*rho}" for b in range(8)]

    for x in cF(0):
        A(x)
    A("s_waitcnt vmcnt(0)")
    for x in cU(0):
        A(x)
    stamp(A, 2)
    A("s_mov_b32 s7, 0")
    A("CONV_LOOP:")
    for rho in range(2):
        A("s_waitcnt lgkmcnt(0)")
        nxt = cU(rho + 1) + cF(rho + 1)
        if rho == 1:
            nxt += ["v_add_u32 v223, 128, v223", "v_add_u32 v224, 128, v224", "s_add_u32 s7, s7, 1", "s_cmp_lt_u32 s7, 4"]
        for i, (a, b) in enumerate(pairs):
            G = a + b
            A(mfma16(YR + 4 * G, FR[rho] + 4 * a, UR[rho] + 4 * b, YR + 4 * G))
            if i < len(nxt):
                A(nxt[i])
    A("s_cbranch_scc1 CONV_LOOP")
    for G in range(8):
        A(f"ds_read_b64 {v(FR[1]+2*G,2)}, v225 offset:{512*(7-G)}")
    A("s_waitcnt lgkmcnt(0)")
    for G in range(8):
        y = YR + 4 * G
        t = UR[1]
        f = FR[1]
        A(f"v_and_b32 v{t}, 0xffff0000, v{f+2*G+1}")
        A(f"v_lshlrev_b32 v{t+1}, 16, v{f+2*G+1}")
        A(f"v_and_b32 v{t+2}, 0xffff0000, v{f+2*G}")
        A(f"v_lshlrev_b32 v{t+3}, 16, v{f+2*G}")
        for r in range(4):
            A(f"v_fmac_f32 v{y+r}, v{t+r}, v220")
        A(f"v_cvt_pk_bf16_f32 v{200+2*G}, v{y}, v{y+1}")
        A(f"v_cvt_pk_bf16_f32 v{201+2*G}, v{y+2}, v{y+3}")
    stamp(A, 3)
    A("s_branch P2_JOIN")

    A("P1_COMPUTE:")
    ACC = 64
    XF = [16, 40, 176, 200]
    WF = [24, 48, 184, 208]
    XA = 160
    WA = 168
    A("s_lshr_b32 s6, s3, 1")
    A("s_and_b32 s7, s3, 1")
    A("v_and_b32 v6, 31, v0")
    A("v_lshrrev_b32 v3, 5, v0")
    A("v_bfe_u32 v4, v0, 1, 3")
    A("v_xor_b32 v4, v4, v3")
    A("v_lshlrev_b32 v4, 4, v4")
    A("v_lshl_add_u32 v4, v6, 7, v4")
    A("s_mul_i32 s12, s6, 20480")
    A("v_add_u32 v4, s12, v4")
    for ks in range(4):
        if ks == 0:
            A(f"v_mov_b32 v{XA}, v4")
        else:
            A(f"v_xor_b32 v{XA+ks}, {32*ks}, v4")
        A(f"v_add_u32 v{XA+4+ks}, {2*SLOT}, v{XA+ks}")
    A("v_bfe_u32 v5, v0, 2, 2")
    A("v_lshlrev_b32 v6, 7, v5")
    A("v_lshl_add_u32 v6, v3, 10, v6")
    A("v_bfe_u32 v7, v0, 3, 1")
    A("v_xor_b32 v7, s7, v7")
    A("v_lshl_add_u32 v6, v7, 6, v6")
    A("v_bfe_u32 v7, v0, 4, 1")
    A("v_lshl_add_u32 v6, v7, 5, v6")
    A("v_and_b32 v7, 3, v0")
    A(f"v_lshl_add_u32 v{WA}, v7, 3, v6")
    for sl in range(1, 4):
        A(f"v_add_u32 v{WA+sl}, {sl*SLOT}, v{WA}")
    A("s_lshl_b32 s12, s5, 1")
    A("s_add_u32 s12, s12, s7")
    A("s_lshl_b32 s7, s5, 4")
    A("s_add_u32 s7, s7, s4")
    A("s_lshl_b32 s7, s7, 7")
    A(f"s_add_u32 s7, s7, {F1}")
    A("s_lshl_b32 s12, s12, 6")
    A("s_lshl_b32 s13, s4, 2")
    A("s_add_u32 s12, s12, s13")
    A("s_lshl_b32 s13, s6, 1")
    A("s_add_u32 s12, s12, s13")
    A("s_lshl_b32 s13, s12, 11")
    A("s_lshl_b32 s14, s12, 12")
    A(f"s_add_u32 s14, s14, {WS_KV}")
    A("s_add_u32 s15, s14, 4096")
    A(f"s_mov_b32 s12, {QSCALE:#x}")
    A("s_waitcnt lgkmcnt(0)")
    srd(A, SRD_WS, P_WS, WS_SIZE)
    A("s_lshl_b32 s42, s3, 4")
    A("s_or_b32 s42, s42, s2")
    A("s_cmp_ge_u32 s42, 16")
    A("s_cbranch_scc1 NOINIT")
    srd(A, 56, P_DBG, 256)
    A("v_lshlrev_b32 v8, 7, v0")
    A("s_lshl_b32 s42, s2, 13")
    A(f"s_add_u32 s42, s42, {WS_SYNC}")
    A(f"buffer_store_dword v2, v8, {WS}, s42 offen sc1")
    A("v_mov_b32 v9, 1")
    A("s_waitcnt vmcnt(0)")
    A("s_mov_b64 exec, 1")
    A("buffer_atomic_add v9, v2, s[56:59], 0 offen")
    A("s_mov_b64 exec, -1")
    A("NOINIT:")

    def bufof(step):
        return step & 1 if step < 60 else {60: 0, 61: 2, 62: 3, 63: 1}[step]

    def reads(step):
        st, ks = divmod(step, 4)
        slot = st % 4
        b = bufof(step)
        out = []
        xa = XA + 4 * (slot >> 1) + ks
        out.append(f"ds_read_b128 {v(XF[b],4)}, v{xa} offset:{(slot&1)*SLOT}")
        for seg in range(3):
            for j in range(2):
                out.append(f"ds_read_b64_tr_b16 {v(WF[b]+4*seg+2*j,2)}, v{WA+slot} offset:{ks*10240+4096+seg*2048+j*512}")
            if seg == 0:
                out.append(f"ds_read_b128 {v(XF[b]+4,4)}, v{xa} offset:{(slot&1)*SLOT+10240}")
        return out

    def mf(step, seg, rt):
        b = bufof(step)
        d = ACC + 16 * (3 * rt + seg)
        c = d
        if seg < 2:
            return mfma32(d, WF[b] + 4 * seg, XF[b] + 4 * rt, c)
        return mfma32(d, XF[b] + 4 * rt, WF[b] + 4 * seg, c)

    def epi(seg, rt):
        d = ACC + 16 * (3 * rt + seg)
        out = []
        if seg == 0:
            for r in range(16):
                out.append(f"v_mul_f32 v{d+r}, s12, v{d+r}")
        for r in range(8):
            out.append(f"v_cvt_pk_bf16_f32 v{d+r}, v{d+2*r}, v{d+2*r+1}")
        so, off = [('s13', rt * 2048), (('s14', 's15')[rt], 0), (('s14', 's15')[rt], 2048)][seg]
        out.append(f"buffer_store_dwordx4 {v(d,4)}, v1, {WS}, {so} offen offset:{off}{SC}")
        out.append(f"buffer_store_dwordx4 {v(d+4,4)}, v1, {WS}, {so} offen offset:{off+1024}{SC}")
        return out

    for r in range(96):
        A(f"v_mov_b32 v{ACC+r}, 0")
    A("s_mov_b32 s6, 0")
    A("s_barrier")
    stamp(A, 1)
    stamp1(A, 1)
    for r in reads(0):
        A(r)

    def gstep(step):
        m = [mf(step, seg, rt) for seg in range(3) for rt in range(2)]
        nxt = reads(step + 1)
        A("s_waitcnt lgkmcnt(0)")
        A(m[0])
        if (step + 1) % 4 == 0:
            A("s_barrier")
            bs = (step + 1) // 4
            P1S = (2, 4, 6, 8, 9, 10, 11, 12, 14)
            if bs in P1S:
                stamp1(A, 2 + P1S.index(bs))
        if step == 59:
            nxt = reads(60) + reads(61) + reads(62)
            gaps = [nxt[0:4], nxt[4:8], nxt[8:12], nxt[12:16], nxt[16:20], nxt[20:24]]
        else:
            gaps = [nxt[0:3], nxt[3:5], nxt[5:7], nxt[7:8], [], []]
        if step == 15 and 'p1' not in OPT:
            gaps[4] = ["s_add_u32 s6, s6, 1", "s_cmp_lt_u32 s6, 3"]
        for x in gaps[0]:
            A(x)
        for k in range(1, 6):
            A(m[k])
            for x in gaps[k]:
                A(x)

    if 'p1' in OPT:
        for step in range(48):
            gstep(step)
    else:
        A("P1_LOOP:")
        for step in range(16):
            gstep(step)
        A("s_cbranch_scc1 P1_LOOP")
    for step in range(48, 60):
        gstep(step)
    for x in reads(63):
        A(x)
    order = [(1, 0), (1, 1), (2, 0), (2, 1), (0, 0), (0, 1)]
    pend = []
    A("s_waitcnt lgkmcnt(8)" if 'p1' not in OPT else "s_waitcnt lgkmcnt(0)")
    for ti, (seg, rt) in enumerate(order):
        if ti >= 2:
            pend = epi(*order[ti - 2])
        for k, step in enumerate(range(60, 64)):
            if ti == 0 and k == 3:
                A("s_waitcnt lgkmcnt(0)")
            A(mf(step, seg, rt))
            if ti == 0 and k == 3:
                A("s_barrier")
                stamp1(A, 11)
            if ti == 1 and k in (1, 2):
                A("s_nop 3")
            n = (len(pend) + (3 - k)) // (4 - k)
            for x in pend[:n]:
                A(x)
            pend = pend[n:]
    stamp(A, 2)
    A("v_mov_b32 v216, 0x7fff0000")
    for x in epi(*order[4]) + epi(*order[5]):
        A(x)
    A("s_and_b32 s4, s2, 7")
    A("s_lshl_b32 s4, s4, 2")
    A("s_lshr_b32 s5, s2, 6")
    A("s_or_b32 s4, s4, s5")
    A("s_lshr_b32 s42, s4, 1")
    A("s_lshl_b32 s42, s42, 11")
    A(f"s_add_u32 s42, s42, {F1}")
    A("s_lshl_b32 s12, s4, 18")
    A("s_lshl_b32 s13, s3, 12")
    A("s_add_u32 s12, s12, s13")
    A(f"s_add_u32 s12, s12, {WS_KV}")
    A("s_bfe_u32 s5, s2, 0x30003")
    A("s_lshl_b32 s14, s4, 17")
    A("s_lshl_b32 s15, s5, 14")
    A("s_add_u32 s14, s14, s15")
    A("s_add_u32 s14, s14, s13")
    A("s_waitcnt vmcnt(0)")
    A(f"v_mov_b32 v3, {CNT_LDS}")
    A("v_mov_b32 v4, 1")
    A("s_mov_b64 exec, 1")
    A("ds_add_rtn_u32 v5, v3, v4")
    A("s_waitcnt lgkmcnt(0)")
    A("v_readfirstlane_b32 s6, v5")
    A("s_mov_b64 exec, -1")
    stamp(A, 3)
    A("s_cmp_lg_u32 s6, 3")
    A("s_cbranch_scc1 NOPOLL1")
    setflag(A, 's7', 4)
    poll(A, 'POLL1', WS, FA, 's42', 5)
    A("v_mov_b32 v4, 64")
    A("ds_write_b32 v3, v4")
    A("s_branch GO1")
    A("NOPOLL1:")
    A("s_mov_b32 s98, 0")
    A("LW1:")
    A("s_sleep 1")
    A("ds_read_b32 v5, v3")
    A("s_add_u32 s98, s98, 1")
    A("s_cmp_ge_u32 s98, 0x800000")
    A("s_cbranch_scc1 GO1")
    A("s_waitcnt lgkmcnt(0)")
    A("v_readfirstlane_b32 s6, v5")
    A("s_cmp_lg_u32 s6, 64")
    A("s_cbranch_scc1 LW1")
    A("GO1:")
    A("s_waitcnt lgkmcnt(0)")
    stamp(A, 4)
    A(f"s_add_u32 m0, s13, {RING}")
    A("s_nop 0")
    for j in range(4):
        A(f"buffer_load_dwordx4 v1, {WS}, s12 offen offset:{j*1024}{SC} lds")
    A(f"s_add_u32 m0, s13, {RING+3*16384}")
    A("s_add_u32 s12, s12, 16384")
    for j in range(4):
        A(f"buffer_load_dwordx4 v1, {WS}, s14 offen offset:{j*1024}{SC} lds")
    A(f"s_add_u32 m0, s13, {RING+16384}")
    A("s_nop 0")
    for j in range(4):
        A(f"buffer_load_dwordx4 v1, {WS}, s12 offen offset:{j*1024}{SC} lds")

    A("P2_JOIN:")
    Q, NM, S, P, O, L, KF, VF, ON = 4, 16, [32, 48], 64, 72, 88, [92, 100], [108, 116], 124
    RB, WOA, IDX = 128, 129, 15
    GA = 130
    ZR, QR, WL, OS = 136, 144, 152, 168
    SM = f"v_smfmac_f32_16x16x64_bf16 {v(L,4)}, {v(ON,4)}, {v(P,8)}, v{IDX}"
    A("s_and_b32 s4, s2, 7")
    A("s_lshl_b32 s4, s4, 2")
    A("s_lshr_b32 s5, s2, 6")
    A("s_or_b32 s4, s4, s5")
    A("s_bfe_u32 s5, s2, 0x30003")
    A("s_lshl_b32 s6, s4, 18")
    A(f"s_add_u32 s6, s6, {WS_KV}")
    A("s_lshl_b32 s13, s3, 11")
    A("s_add_u32 s12, s6, s13")
    A("s_add_u32 s12, s12, 32768")
    A(f"s_add_u32 s13, s13, {RING}")
    A("s_lshl_b32 s14, s5, 3")
    A("s_add_u32 s14, s14, s3")
    A("s_lshl_b32 s15, s14, 5")
    A("s_add_u32 s15, s15, s4")
    A("s_lshl_b32 s58, s5, 5")
    A("s_add_u32 s58, s58, s4")
    A("s_lshl_b32 s58, s58, 7")
    A(f"s_add_u32 s58, s58, {F2}")
    A("s_lshl_b32 s57, s2, 7")
    A(f"s_add_u32 s57, s57, {FZ}")
    A("s_cmp_eq_u32 s3, 4")
    A("s_cselect_b32 s57, s57, 0x7fff0000")
    A("s_cselect_b32 s58, s58, 0x7fff0000")
    A("s_lshl_b32 s15, s15, 11")
    A(f"s_add_u32 s15, s15, {WS_OF}")
    A(f"v_add_u32 v{RB}, {RING}, v1")
    A(f"v_add_u32 v3, s13, v1")
    A("s_bfe_u32 s40, s2, 0x20001")
    A("s_lshl_b32 s40, s40, 2")
    A("s_bfe_u32 s41, s2, 0x20003")
    A("s_or_b32 s40, s40, s41")
    A("s_and_b32 s41, s2, 1")
    A("s_lshl_b32 s41, s41, 3")
    A("s_lshr_b32 s42, s2, 5")
    A("s_or_b32 s41, s41, s42")
    srd(A, 44, P_WO, 2 * MB)
    srd(A, 52, P_Q, 4 * MB)
    A("v_lshrrev_b32 v5, 3, v0")
    A("v_and_b32 v6, 7, v0")
    A("v_bfe_u32 v7, v0, 4, 1")
    A("v_lshlrev_b32 v7, 2, v7")
    A("v_xor_b32 v7, v7, v6")
    A("v_lshlrev_b32 v7, 4, v7")
    A(f"v_lshl_add_u32 v{WOA}, v5, 11, v7")
    A("s_lshl_b32 s48, s3, 14")
    A("s_lshl_b32 s49, s41, 7")
    A("s_add_u32 s48, s48, s49")
    A("s_lshl_b32 s49, s3, 10")
    A("s_mov_b32 s43, s49")
    A("s_and_b32 s59, s3, 3")
    A("s_lshl_b32 s50, s40, 2")
    A("s_add_u32 s59, s59, s50")
    A("s_lshl_b32 s59, s59, 1")
    A("s_lshr_b32 s50, s3, 2")
    A("s_add_u32 s59, s59, s50")
    A("s_lshl_b32 s60, s59, 15")
    A(f"s_add_u32 s60, s60, {WS_OF}")
    A("s_lshr_b32 s59, s40, 1")
    A("s_lshl_b32 s59, s59, 1")
    A("s_add_u32 s59, s59, s50")
    A("s_lshl_b32 s59, s59, 11")
    A(f"s_add_u32 s59, s59, {F2}")
    A("s_lshr_b32 s50, s2, 4")
    A("s_lshl_b32 s50, s50, 7")
    A("s_lshl_b32 s51, s3, 4")
    A("s_add_u32 s50, s50, s51")
    A("s_and_b32 s51, s2, 15")
    A("s_lshl_b32 s56, s51, 11")
    A(f"s_add_u32 s56, s56, {FZ}")
    A("s_lshl_b32 s51, s51, 6")
    A(f"v_lshl_add_u32 v5, v5, 1, s50")
    A(f"v_lshl_add_u32 v6, v6, 3, s51")
    A(f"v_lshlrev_b32 v{GA+2}, 1, v5")
    A(f"v_lshl_add_u32 v{GA+2}, v6, 12, v{GA+2}")
    A(f"v_lshlrev_b32 v{GA+3}, 1, v6")
    A(f"v_lshl_add_u32 v{GA+4}, v5, 11, v{GA+3}")
    A(f"v_lshl_add_u32 v{GA+3}, v5, 12, v{GA+3}")
    A("s_and_b32 s61, s41, 3" if 'norot3' not in OPT else "s_mov_b32 s61, 0")
    A("s_lshl_b32 s61, s61, 2")
    A(f"v_add_u32 v{GA+1}, s61, v0")
    A(f"v_and_b32 v{GA+1}, 15, v{GA+1}")
    A(f"v_lshlrev_b32 v{GA+1}, 7, v{GA+1}")
    A(f"v_add_u32 v{GA}, s43, v{RB}")
    A("s_lshr_b32 s63, 0x00110011, s61")
    A("s_and_b32 s63, s63, 0x1111")
    A("s_cmp_lt_u32 s3, 4")
    A("s_cselect_b32 s63, 0x1111, s63")
    A("s_mov_b32 s27, 0x7fff0000")
    A("s_mov_b32 s28, 0x7fff0000")
    A("v_bfe_u32 v5, v0, 2, 1")
    A("v_cmp_eq_u32 vcc, 0, v5")
    A("v_mov_b32 v6, 0x3f803f80")
    A("v_and_b32 v5, 1, v0")
    A(f"v_cndmask_b32 v{ON}, 0, v6, vcc")
    A(f"v_xor_b32 v{ON+2}, v6, v{ON}")
    A(f"v_mov_b32 v{ON+1}, v{ON}")
    A(f"v_mov_b32 v{ON+3}, v{ON+2}")
    A(f"v_mul_u32_u24 v{IDX}, 0xaaaa, v5")
    A(f"v_add_u32 v{IDX}, 0x4444, v{IDX}")
    for r in range(16):
        A(f"v_mov_b32 v{O+r}, 0")
    for r in range(4):
        A(f"v_mov_b32 v{L+r}, 0")
    for r in range(8):
        A(f"v_mov_b32 v{P+r}, 0")
        A(f"v_mov_b32 v{VF[1]+r}, 0")

    def rdK(t):
        b = t & 1
        o = (t % 16) * 4096
        return [f"ds_read_b128 {v(KF[b],4)}, v{RB} offset:{o}", f"ds_read_b128 {v(KF[b]+4,4)}, v{RB} offset:{o+1024}"]

    def rdV(t):
        b = t & 1
        o = (t % 16) * 4096 + 2048
        return [f"ds_read_b128 {v(VF[b],4)}, v{RB} offset:{o}", f"ds_read_b128 {v(VF[b]+4,4)}, v{RB} offset:{o+1024}"]

    A("s_cmp_lt_u32 s3, 4")
    A("s_cselect_b64 vcc, -1, 0")
    A("s_waitcnt vmcnt(4)")
    stamp(A, 5)
    A("s_barrier")
    stamp(A, 6)
    A(f"ds_read_b128 {v(Q,4)}, v3 offset:{3*16384}")
    A(f"ds_read_b128 {v(Q+4,4)}, v3 offset:{3*16384+1024}")
    for x in rdK(0) + rdK(1) + rdV(0):
        A(x)
    A(f"s_add_u32 m0, s13, {2*16384}")
    A("s_mov_b32 s14, 0")
    A(f"buffer_load_dwordx4 v1, {WS}, s12 offen{SC} lds")
    A(f"buffer_load_dwordx4 v1, {WS}, s12 offen offset:1024{SC} lds")
    A("s_add_u32 s12, s12, 16384")
    A("s_waitcnt lgkmcnt(4)")
    A(mfma32(S[1], KF[0], Q, '0'))
    A(mfma32(S[1], KF[0] + 4, Q + 4, S[1]))
    A("s_nop 7")
    A("s_nop 3")
    s1 = S[1]
    A(f"v_max3_f32 v12, v{s1}, v{s1+1}, v{s1+2}")
    for r in range(3, 15, 2):
        A(f"v_max3_f32 v12, v12, v{s1+r}, v{s1+r+1}")
    A(f"v_max_f32 v12, v12, v{s1+15}")
    A("v_mov_b32 v13, v12")
    A("s_nop 1")
    A("v_permlane32_swap_b32 v12, v13")
    A("v_max_f32 v12, v12, v13")
    for r in range(16):
        A(f"v_sub_f32 v{S[0]+r}, v{s1+r}, v12")
    for r in range(16):
        A(f"v_xor_b32 v{NM+r}, 0x80000000, v12")
    stamp(A, 7)

    vq = [('kv', 1)] * 4 + [('kv', 2)] * 2

    def vwait(tag):
        if tag not in vq:
            return "s_nop 0"
        lastp = max(i for i, x in enumerate(vq) if x == tag)
        n_ = len(vq) - 1 - lastp
        del vq[:lastp + 1]
        return f"s_waitcnt vmcnt({n_})"

    def ofr(i):
        return 176 + 4 * i if i < 16 else (64 + 4 * (i - 16) if i < 28 else 240 + 4 * (i - 28))

    def avail(B=A):
        B(f"v_cmp_eq_u32 {MK}, 1, v{GA+5}")
        B("s_lshr_b32 s25, s100, 1")
        B("s_and_b32 s25, s25, s100")
        B("s_lshr_b32 s26, s25, 2")
        if FIXED:
            B("s_and_b32 s29, s25, s26")
            nextbit(B)
        else:
            B("s_and_b32 s25, s25, s26")
            B("s_and_b32 s25, s25, s24")

    FIXED = 'dyn' not in OPT

    def nextbit(B):
        B("s_sub_u32 s25, 0, s24")
        B("s_and_b32 s25, s25, s24")
        B("s_and_b32 s25, s25, s29")

    def pick(r, B=A):
        B("s_ff1_i32_b32 s26, s25")
        B("s_bitset0_b32 s24, s26")
        if FIXED:
            nextbit(B)
        else:
            B("s_bitset0_b32 s25, s26")
        B("s_add_u32 s26, s26, s61")
        B("s_and_b32 s26, s26, 15")
        B("s_lshl_b32 s27, s26, 11")
        B("s_add_u32 s27, s27, s60")
        B("s_add_u32 s28, s27, 4096")
        B(f"s_lshl_b32 s{16+r}, s26, 12")

    def oload(r, i):
        return f"buffer_load_dwordx4 {v(ofr(8*r+i),4)}, v1, {WS}, s{27+i//4} offen offset:{(i%4)*1024}{SC}"

    def zload(j2):
        vq.append('z')
        return [f"s_mov_b32 s51, {WS_ZT+4096*j2}", f"buffer_load_dword v{ZR+j2}, v{GA+2}, {WS}, s51 offen sc1"]

    fl = f"buffer_load_dword v{GA+5}, v{GA+1}, {WS}, s59 offen sc1"

    def slot_a(T):
        j = (T + 2) // 4 + 2
        if T % 4 == 2 and j <= 15:
            vq.append(('kv', j))
            return [f"s_add_u32 m0, s13, {(j%4)*16384}", "s_nop 0", f"buffer_load_dwordx4 v1, {WS}, s12 offen{SC} lds"]
        if T % 4 == 3 and (T + 1) // 4 + 2 <= 15:
            vq.append(('kv', (T + 1) // 4 + 2))
            return [f"buffer_load_dwordx4 v1, {WS}, s12 offen offset:1024{SC} lds", "s_add_u32 s12, s12, 16384"]
        if T % 4 == 0 and 4 <= T <= 48:
            vq.append('wo')
            return ["s_mov_b32 m0, s49", "s_add_u32 s49, s49, 8192",
                    f"buffer_load_dwordx4 v{WOA}, s[44:47], s48 offen lds", f"s_add_u32 s48, s48, {64*2048}"]
        if T == 49:
            vq.append('cz')
            return [f"buffer_load_dword v{GA+5}, v{FA}, {WS}, s56 offen sc1"]
        if 52 <= T <= 55:
            vq.append('wl')
            return [f"buffer_load_dwordx4 {v(WL+4*(T-52),4)}, v{WOA}, s[44:47], s48 offen",
                    f"s_add_u32 s48, s48, {64*2048}"]
        if T in (56, 57):
            return zload(4 + 2 * (T - 56))
        if T == 58:
            vq.append('f2')
            return [fl]
        if T >= 60:
            vq.append('e')
            return [oload(0, 2 * (T - 60))]
        return []

    def slot_e(T):
        if 2 <= T <= 9:
            G = T - 2
            vq.append('zt')
            return [f"buffer_store_dwordx2 {v(200+2*G,2)}, v216, {WS}, 0 offen offset:{512*G}{SC}"]
        if T in (48, 49):
            i = T - 48
            vq.append('q')
            return [f"buffer_load_dwordx4 {v(QR+4*i,4)}, v{GA+4}, s[52:55], 0 offen offset:{2048*i}{NT}"]
        if 52 <= T <= 55:
            return zload(T - 52)
        if T in (56, 57):
            return zload(5 + 2 * (T - 56))
        if T >= 60:
            vq.append('e')
            return [oload(0, 2 * (T - 60) + 1)] + ([fl] if T == 63 else [])
        return []

    def tile(B, T, grp):
        t = T % 16
        c, n = S[t & 1], S[(t + 1) & 1]
        kb, vp = KF[(t + 1) & 1], VF[(t + 1) & 1]
        do_qk = T < 63
        rk = rdK(t + 2) if T < 62 else []
        rv = rdV(t + 1) if T < 63 else []
        E = lambda r: f"v_exp_f32 v{c+r}, v{c+r}"
        C = lambda r: f"v_cvt_pk_bf16_f32 v{P+r}, v{c+2*r}, v{c+2*r+1}"
        B("s_setprio 0")
        if T in (0, 48, 56):
            stamp2(B, {0: 1, 48: 5, 56: 7}[T])
        B("s_waitcnt lgkmcnt(0)")
        if do_qk:
            B(mfma32(n, kb, Q, NM))
        if T == 52:
            B(vwait('cz'))
            check_or_poll(B, 'POLLZ', WS, FA, 's56', GA + 5)
        if T == 60:
            B(vwait('f2'))
            B("s_movk_i32 s24, 0x1111")
            avail(B)
            B("s_and_b32 s25, s25, s63")
            B("s_cselect_b32 s62, 1, 0")
            B("s_cbranch_scc0 NOE")
            pick(0, B)
            B("NOE:")
        for x in slot_a(T):
            B(x)
        B(mfma32(O, vp, P, O))
        B(mfma32(O, vp + 4, P + 4, O))
        for x in rk:
            B(x)
        if do_qk:
            B(mfma32(n, kb + 4, Q + 4, n))
        for x in rv:
            B(x)
        B(SM)
        for x in slot_e(T):
            B(x)
        if T == 13:
            B(vwait('zt'))
        if T == 15:
            setflag(B, 's57', 12)
            vq.append('fl')
        nb = t % 4 == 1 and T + 1 < 62
        if nb:
            w = vwait(('kv', (T + 3) // 4))
            if grp == 'mid':
                w = "s_waitcnt vmcnt(4)"
            B(f"s_cbranch_vccnz SKB_{grp}_{t}")
            B(w)
            B("s_barrier")
            B(f"SKB_{grp}_{t}:")
        for r in range(8):
            B(E(2 * r)); B(E(2 * r + 1))
            if 1 <= r < 7:
                B(C(r - 1))
            if r == 1:
                B("s_setprio 2")
        B(C(6))
        B(C(7))
        if nb:
            B(f"s_cbranch_vccz SKA_{grp}_{t}")
            B(w)
            B("s_barrier")
            B(f"SKA_{grp}_{t}:")

    for T in range(16):
        tile(A, T, 'first')
    stamp2(A, 3)
    A("P2_LOOP:")
    n0 = len(A.ins)
    for T in range(16, 32):
        tile(A, T, 'mid')
    body = [i.text for i in A.ins[n0:]]
    B2 = Asm()
    for T in range(32, 48):
        tile(B2, T, 'mid')
    assert body == [i.text for i in B2.ins]
    A("s_add_u32 s14, s14, 1")
    A("s_cmp_lt_u32 s14, 2")
    A("s_cbranch_scc1 P2_LOOP")
    for T in range(48, 64):
        tile(A, T, 'last')
    A("s_setprio 0")
    A("s_waitcnt lgkmcnt(0)")
    A(mfma32(O, VF[1], P, O))
    A(mfma32(O, VF[1] + 4, P + 4, O))
    A(SM)
    stamp2(A, 9)
    stamp(A, 8)
    srd(A, 52, P_OUT, 8 * MB)
    A(f"s_mov_b32 s50, {L_THR:#x}")
    A("s_lshr_b32 s5, s3, 2")
    A("s_and_b32 s4, s3, 3")
    A("s_nop 0")
    A(f"v_add_f32 v{L}, v{L}, v{L+1}")
    A(f"v_cmp_nge_f32 vcc, s50, v{L}")
    A(f"v_rcp_f32 v12, v{L}")
    A("s_nop 1")
    A("s_cbranch_vccnz P2_SLOW")
    A("P2_FIN:")
    for r in range(16):
        A(f"v_mul_f32 v{O+r}, v{O+r}, v12")
    for r in range(8):
        A(f"v_cvt_pk_bf16_f32 v{OS+r}, v{O+2*r}, v{O+2*r+1}")
    A(f"buffer_store_dwordx4 {v(OS,4)}, v1, {WS}, s15 offen{SC}")
    A(f"buffer_store_dwordx4 {v(OS+4,4)}, v1, {WS}, s15 offen offset:1024{SC}")

    ACC = 32
    WF = [16, 24]

    def issue3(r):
        pick(r)
        for i in range(8):
            A(oload(r, i))

    A("s_barrier")
    for i in range(4):
        A(f"ds_write_b128 v{GA}, {v(WL+4*i,4)} offset:{8192*i}")
    A("v_lshrrev_b32 v4, 5, v0")
    A("v_bfe_u32 v5, v0, 2, 2")
    A("v_lshl_add_u32 v5, v4, 2, v5")
    A("v_lshlrev_b32 v5, 7, v5")
    A("v_and_b32 v6, 1, v0")
    A("v_lshl_add_u32 v5, v6, 5, v5")
    A("v_bfe_u32 v6, v0, 4, 1")
    A("v_lshl_add_u32 v5, v6, 4, v5")
    A("v_bfe_u32 v6, v0, 1, 1")
    A("v_lshl_add_u32 v5, v6, 3, v5")
    A("v_bfe_u32 v6, v0, 3, 1")
    A("v_xor_b32 v6, s5, v6")
    A("v_lshl_add_u32 v5, v6, 6, v5")
    A("s_lshl_b32 s13, s5, 16")
    A("v_add_u32 v12, s13, v5")
    A("v_xor_b32 v13, 64, v12")
    A("s_lshl_b32 s13, s3, 12")
    A(f"s_add_u32 s13, s13, {RING+32768}")
    A("v_add_u32 v6, s13, v1")
    A("v_xor_b32 v7, 0x4000, v6")
    A("v_bfe_u32 v8, v0, 1, 2")
    A("v_lshlrev_b32 v4, 1, v4")
    A("v_xor_b32 v8, v8, v4")
    A("v_lshlrev_b32 v8, 4, v8")
    A("v_and_b32 v4, 31, v0")
    A("v_lshl_add_u32 v8, v4, 6, v8")
    A("s_xor_b32 s13, s13, 0x4000")
    A("v_add_u32 v8, s13, v8")
    A("v_xor_b32 v9, 16, v8")
    A("v_bfe_u32 v4, v0, 3, 2")
    A("v_and_b32 v5, 3, v0")
    A("v_xor_b32 v4, v4, v5")
    A("v_lshlrev_b32 v4, 4, v4")
    A("v_lshrrev_b32 v5, 2, v0")
    A("v_lshl_add_u32 v5, v5, 12, v4")
    A("s_lshl_b32 s14, s40, 19")
    A("s_lshl_b32 s13, s4, 17")
    A("s_add_u32 s14, s14, s13")
    A("s_lshl_b32 s13, s41, 7")
    A("s_add_u32 s14, s14, s13")
    A("s_lshl_b32 s13, s5, 6")
    A("s_add_u32 s14, s14, s13")
    A("s_add_u32 s14, s14, 2048")
    A("s_add_u32 s15, s14, 65536")
    A("s_movk_i32 s13, 0x1000")
    A("s_mov_b32 s98, 0")

    PD3 = int(os.environ.get('PD3', 2))
    WF = [16, 24, 152]

    def reads3(step):
        b = step % 3
        return [f"ds_read_b64_tr_b16 {v(WF[b]+4*nt+2*j,2)}, v{14+nt} offset:{(16*step+8*j)*128}"
                for nt in range(2) for j in range(2)]

    T = 112
    gat = []
    for i in range(2):
        for dw in range(4):
            for hi in range(2):
                zr = ZR + 2 * dw + hi
                gat.append(f"v_and_b32 v{T+hi}, 0xffff0000, v{zr}" if i else f"v_lshlrev_b32 v{T+hi}, 16, v{zr}")
            gat.append(f"v_lshlrev_b32 v{T+2}, 16, v{QR+4*i+dw}")
            gat.append(f"v_and_b32 v{T+3}, 0xffff0000, v{QR+4*i+dw}")
            gat.append(f"v_mul_f32 v{T}, v{T}, v{T+2}")
            gat.append(f"v_mul_f32 v{T+1}, v{T+1}, v{T+3}")
            gat.append(f"v_cvt_pk_bf16_f32 v{QR+4*i+dw}, v{T}, v{T+1}")

    def consume(c, y):
        stamp3(A, 5 + c)
        A(f"v_add_u32 v14, s{16+c}, v12")
        A(f"v_add_u32 v15, s{16+c}, v13")
        for k in range(PD3):
            for x in reads3(k):
                A(x)
        for step in range(8):
            nxt = reads3(step + PD3) if step + PD3 < 8 else []
            for x in nxt:
                A(x)
            A((f"s_waitcnt vmcnt({y+7-step}) " if y is not None else "s_waitcnt ") +
              f"lgkmcnt({4*min(PD3, 7-step)})")
            for nt in range(2):
                A(mfma32(ACC + 16 * nt, WF[step % 3] + 4 * nt, ofr(8 * c + step),
                         '0' if (c == 0 and step == 0) else ACC + 16 * nt))
                if c == GC:
                    for x in gat[7 * step + 4 * nt:7 * step + 4 + 3 * nt]:
                        A(x)
        if c == GC:
            A(f"buffer_store_dwordx4 {v(QR,4)}, v{GA+3}, s[52:55], 0 offen{OM}")
            A(f"buffer_store_dwordx4 {v(QR+4,4)}, v{GA+3}, s[52:55], s13 offen{OM}")

    A("s_waitcnt vmcnt(2)")
    avail()
    stamp3(A, 2)
    A("s_cmp_eq_u32 s62, 0")
    A("s_cbranch_scc1 P3_W0")
    A("s_cmp_eq_u32 s25, 0")
    A("s_cbranch_scc1 P3_E1")
    issue3(1)
    A("s_mov_b32 s62, 2")
    A("P3_E1:")
    consume(0, None)
    A("s_cmp_eq_u32 s62, 2")
    A("s_cbranch_scc1 P3_E2")
    A("s_waitcnt vmcnt(0)")
    A("P3_E2:")
    A("s_waitcnt vmcnt(8)")
    A("s_barrier")
    setflag(A, 's58', 10)
    stamp(A, 9)
    A("s_cmp_eq_u32 s62, 2")
    A("s_cbranch_scc1 TRY_1_2")
    A("s_branch TRY_1_1")
    A("P3_W0:")
    A("s_waitcnt vmcnt(0) lgkmcnt(0)")
    A("s_barrier")
    setflag(A, 's58', 10)
    stamp(A, 9)

    LK = int(os.environ.get('LK', 2))

    def state(c, n):
        A(f"TRY_{c}_{n}:")
        can = n < 4 and n - c < LK
        if can:
            A("s_cmp_lg_u32 s25, 0")
            A(f"s_cbranch_scc1 ISS_{c}_{n}")
            if c == n:
                A(f"POL_{c}:")
                A(fl)
                A("s_waitcnt vmcnt(0)")
                avail()
                A(f"s_cbranch_scc1 ISS_{c}_{n}")
                A(f"s_sleep {SLP3}")
                A("s_add_u32 s98, s98, 1")
                A("s_cmp_lt_u32 s98, 0x80000")
                A(f"s_cbranch_scc1 POL_{c}")
                A("s_branch P3_RED")
        if c < n:
            y = 8 * (n - 1 - c)
            if n < 4:
                A(fl)
                y += 1
            consume(c, y)
            if n < 4:
                A("s_cmp_lg_u32 s25, 0")
                A(f"s_cbranch_scc1 ISS_{c+1}_{n}")
                A("s_waitcnt vmcnt(0)")
                avail()
            if (c + 1, n) != (4, 4):
                if not (n == 4):
                    A(f"s_branch TRY_{c+1}_{n}")
        if can:
            A(f"ISS_{c}_{n}:")
            issue3(n)
            A(f"s_branch TRY_{c}_{n+1}")

    for n in range(4):
        for c in range(n + 1):
            if n - c <= LK:
                state(c, n)
    for c in range(4):
        if 4 - c <= LK:
            state(c, 4)
    A("P3_RED:")
    stamp3(A, 9)
    A("s_nop 7")
    A("s_nop 3")
    for i in range(4):
        A(f"ds_write_b128 v6, {v(ACC+16+4*i,4)} offset:{1024*i}")
    A("s_waitcnt lgkmcnt(0)")
    A("s_barrier")
    stamp3(A, 10)
    for i in range(4):
        A(f"ds_read_b128 {v(64+4*i,4)}, v7 offset:{1024*i}")
    for i in range(4):
        A(f"s_waitcnt lgkmcnt({3-i})")
        for r in range(4):
            A(f"v_add_f32 v{ACC+4*i+r}, v{ACC+4*i+r}, v{64+4*i+r}")
    for r in range(8):
        A(f"v_cvt_pk_bf16_f32 v{16+r}, v{ACC+2*r}, v{ACC+2*r+1}")
    A("ds_write_b128 v8, v[16:19]")
    A("ds_write_b128 v9, v[20:23]")
    A("ds_read_b128 v[24:27], v7")
    A("ds_read_b128 v[28:31], v7 offset:1024")
    A("s_waitcnt lgkmcnt(1)")
    A(f"buffer_store_dwordx4 v[24:27], v5, s[52:55], s14 offen{OM}")
    A("s_waitcnt lgkmcnt(0)")
    A(f"buffer_store_dwordx4 v[28:31], v5, s[52:55], s15 offen{OM}")
    stamp(A, 11)
    dump_stamps(A, 12, 8)
    A("K_END:")
    A("s_endpgm")

    A("P2_SLOW:")
    A("v_mov_b32 v12, 0xff7fffff")
    A("s_mov_b32 s50, s6")
    A("s_mov_b32 s49, 0")
    A("P2_SLOW1:")
    A(f"buffer_load_dwordx4 {v(KF[0],4)}, v1, {WS}, s50 offen{SC}")
    A(f"buffer_load_dwordx4 {v(KF[0]+4,4)}, v1, {WS}, s50 offen offset:1024{SC}")
    A("s_waitcnt vmcnt(0)")
    A(mfma32(s1, KF[0], Q, '0'))
    A(mfma32(s1, KF[0] + 4, Q + 4, s1))
    A("s_nop 7")
    A("s_nop 3")
    for r in range(0, 16, 2):
        A(f"v_max3_f32 v12, v12, v{s1+r}, v{s1+r+1}")
    A("s_add_u32 s50, s50, 4096")
    A("s_add_u32 s49, s49, 1")
    A("s_cmp_lt_u32 s49, 64")
    A("s_cbranch_scc1 P2_SLOW1")
    A("v_mov_b32 v13, v12")
    A("s_nop 1")
    A("v_permlane32_swap_b32 v12, v13")
    A("v_max_f32 v12, v12, v13")
    for r in range(16):
        A(f"v_xor_b32 v{NM+r}, 0x80000000, v12")
        A(f"v_mov_b32 v{O+r}, 0")
    for r in range(4):
        A(f"v_mov_b32 v{L+r}, 0")
    A("s_mov_b32 s50, s6")
    A("s_mov_b32 s49, 0")
    A("P2_SLOW2:")
    A(f"buffer_load_dwordx4 {v(KF[0],4)}, v1, {WS}, s50 offen{SC}")
    A(f"buffer_load_dwordx4 {v(KF[0]+4,4)}, v1, {WS}, s50 offen offset:1024{SC}")
    A(f"buffer_load_dwordx4 {v(VF[0],4)}, v1, {WS}, s50 offen offset:2048{SC}")
    A(f"buffer_load_dwordx4 {v(VF[0]+4,4)}, v1, {WS}, s50 offen offset:3072{SC}")
    A("s_waitcnt vmcnt(0)")
    A(mfma32(s1, KF[0], Q, NM))
    A(mfma32(s1, KF[0] + 4, Q + 4, s1))
    A("s_nop 7")
    A("s_nop 3")
    for r in range(16):
        A(f"v_exp_f32 v{s1+r}, v{s1+r}")
    A("s_nop 0")
    for r in range(8):
        A(f"v_cvt_pk_bf16_f32 v{P+r}, v{s1+2*r}, v{s1+2*r+1}")
    A("s_nop 1")
    A(mfma32(O, VF[0], P, O))
    A(mfma32(O, VF[0] + 4, P + 4, O))
    A(SM)
    A("s_add_u32 s50, s50, 4096")
    A("s_add_u32 s49, s49, 1")
    A("s_cmp_lt_u32 s49, 64")
    A("s_cbranch_scc1 P2_SLOW2")
    A("s_nop 7")
    A("s_nop 3")
    A(f"v_add_f32 v{L}, v{L}, v{L+1}")
    A(f"v_rcp_f32 v12, v{L}")
    A("s_nop 0")
    A("s_branch P2_FIN")
    A("K_LAST:")
    return kd(NAME, 256, 102)


def build(path):
    hdr = open('concat_heads__ssm_conv_h3__mha_block__prompt.s.ref').read().split('\n')
    hdr = [l for l in hdr if l.startswith(';') and '@launch' not in l]
    A = Asm()
    k = gen(A)
    A.check()
    out = '\n'.join(hdr) + '\n' + f"; @launch grid=(256,1,1) block=(512,1,1) lds={LDS}\n"
    out += '.amdgcn_target "amdgcn-amd-amdhsa--gfx950"\n.text\n' + A.text()
    out += '.section .rodata,"a"\n' + k
    import subprocess
    open(path, 'w').write(out.replace('CODE_CHUNKS', '0'))
    subprocess.run(['clang', '-x', 'assembler', '-target', 'amdgcn-amd-amdhsa', '-mcpu=gfx950', '-c',
                    path, '-o', '_sz.o'], check=True)
    sz = int([l for l in subprocess.run(['llvm-objdump', '-h', '_sz.o'], capture_output=True,
                                        text=True).stdout.split('\n') if '.text' in l][0].split()[2], 16)
    pad = (-(sz - 256)) % 8192
    chunks = (sz - 256 + pad) // 8192
    out = out.replace('CODE_CHUNKS', str(chunks - 1))
    out = out.replace('K_LAST:\n', f'K_LAST:\n.fill {pad//4+64}, 4, 0xbf810000\n')
    open(path, 'w').write(out)
    print('code bytes', sz, 'chunks', chunks)
    ok = {x: True for x in ('POLLU_OK', 'POLL1_OK', 'POLLZ_OK', 'INITP_OK')}
    loop = {'P2_LOOP': lambda c: c < 1, 'P1_LOOP': lambda c: c < 2, 'CONV_LOOP': lambda c: c < 3}
    skb = {f'SKB_{g}_{t}': True for g in ('first', 'mid', 'last') for t in range(16)}
    ska = {f'SKA_{g}_{t}': True for g in ('first', 'mid', 'last') for t in range(16)}
    iss_all = {f'ISS_{c}_{n}': True for c in range(4) for n in range(4)}
    iss_late = {f'ISS_{c}_{c}': True for c in range(4)}
    e2 = {'P3_E2': True, 'TRY_1_2': True}
    A.check_trace(NAME, {**ok, **loop, **skb, **iss_all, **e2}, 'compute init, all ready')
    A.check_trace(NAME, {**ok, **loop, **skb, **iss_late, 'NOINIT': True, 'P1_COMPUTE': True, 'NOPOLL1': True,
                         'NOE': True, 'P3_W0': True}, 'compute one by one')
    A.check_trace(NAME, {**ok, **loop, **ska, 'P1_LOADER': True, 'NOUT': True, 'NOSIGU': True, 'NOE': True, 'P3_W0': True,
                         'ISS_0_0': True, 'ISS_0_1': True, 'ISS_2_2': True, 'ISS_2_3': True}, 'loader late, 2+2')
    A.check_trace(NAME, {**ok, **loop, **ska, 'P1_LOADER': True, 'U_EARLY': True, 'P3_E1': True, 'ISS_1_1': True,
                         'ISS_1_2': True, 'ISS_3_3': True}, 'loader early')
    A.check_trace(NAME, {**ok, **loop, **ska, **iss_all, **e2, 'P1_LOADER': True, 'P2_SLOW': True,
                         'P2_SLOW1': lambda c: c < 2, 'P2_SLOW2': lambda c: c < 2}, 'slow')
    return A


if __name__ == '__main__':
    build(sys.argv[1] if len(sys.argv) > 1 else 'f.s')
```

```python
import sys, struct, math, os
sys.path.insert(0, 'dev')
from asmlib import *

OPT = set(os.environ.get('OPT', '').split(','))
PROF = 'prof' in OPT
NAME = 'concat_heads__ssm_conv_h3__mha_block__prompt_kernel'
LA = int(os.environ.get('LA', 2))
SLP = int(os.environ.get('SLP', 2))
SLP3 = int(os.environ.get('SLP3', 3))

MB = 1 << 20
WS_QF = 0
WS_KV = 4 * MB
WS_OF = 12 * MB
WS_UT = 16 * MB
WS_ZT = 20 * MB
WS_SYNC = 24 * MB
F1 = WS_SYNC
FU = WS_SYNC + 32768
FZ = WS_SYNC + 65536
F2 = WS_SYNC + 98304
CNT_LDS = 4 * (4 * 4160 + 64) + 4 * 4608
WS_SIZE = 24 * MB + 131072
WS_PROF = 32 * MB

P_Q, P_K, P_V, P_SH, P_SSMK, P_D, P_X, P_W, P_WO, P_OUT, P_DBG, P_WS = [16 + 2 * i for i in range(12)]
SRD_WS = 8
WS = f"s[{SRD_WS}:{SRD_WS+3}]"


def f32bits(x):
    return struct.unpack('<I', struct.pack('<f', x))[0]


QSCALE = f32bits(math.log2(math.e) / math.sqrt(32.0))
L_THR = f32bits(2.0 ** 60)

SLOT = 40960
LDS = 163840
HCS = 4160
HC_STRIDE = 4 * HCS + 64
U_BASE = 4 * HC_STRIDE
U_SZ = 4608
RING = 98304
SC = ' sc1'
NT = ' nt'
OM = ' ' + os.environ.get('OM', 'sc1')
GC = int(os.environ.get('GC', 3))
MT = 's_memrealtime' if 'rt' in OPT else 's_memtime'
MK = "s[100:101]"


def srd(A, d, p, size):
    A(f"s_mov_b32 s{d}, s{p}")
    A(f"s_and_b32 s{d+1}, s{p+1}, 0xffff")
    A(f"s_mov_b32 s{d+2}, {size}")
    A(f"s_mov_b32 s{d+3}, 0x00020000")


def mfma32(d, a, b, c):
    cs = c if isinstance(c, str) else v(c, 16)
    return f"v_mfma_f32_32x32x16_bf16 {v(d,16)}, {v(a,4)}, {v(b,4)}, {cs}"


def mfma16(d, a, b, c):
    cs = c if isinstance(c, str) else v(c, 4)
    return f"v_mfma_f32_16x16x32_bf16 {v(d,4)}, {v(a,4)}, {v(b,4)}, {cs}"


def stamp1(A, idx):
    if PROF and 'p1' in OPT:
        A(f"{MT} s[{70+2*idx}:{71+2*idx}]")


def stamp2(A, idx):
    if PROF and 'p2' in OPT:
        A(f"s_memrealtime s[{70+2*idx}:{71+2*idx}]")
        A(f"s_memtime s[{72+2*idx}:{73+2*idx}]")


def stamp3(A, idx):
    if PROF and 'p3' in OPT:
        A(f"s_memrealtime s[{70+2*idx}:{71+2*idx}]")
        A("s_waitcnt lgkmcnt(0)")


def stamp(A, idx):
    if PROF and ('p1' in OPT or 'p2' in OPT) and idx != 0:
        return
    if PROF and 'p3' in OPT:
        idx = {0: 0, 8: 1, 9: 3, 10: 4, 11: 11}.get(idx)
        if idx is None:
            return
    if PROF:
        A(f"{MT} s[{70+2*idx}:{71+2*idx}]")
        if idx == 0:
            A("s_memrealtime s[68:69]")
        else:
            A("s_waitcnt lgkmcnt(0)")


def dump_stamps(A, n, vt=2):
    if not PROF:
        return
    if 'dbg' in OPT:
        srd(A, 64, P_DBG, 256)
        A("s_cmp_ge_u32 s3, 4")
        A("s_cbranch_scc1 K_END")
        A("s_mov_b64 exec, 1")
        A("s_not_b32 s60, s70")
        A(f"v_mov_b32 v{vt}, s60")
        A(f"buffer_atomic_umax v{vt}, v2, s[64:67], 0 offen offset:4")
        for i in range(n):
            if i in (10,):
                continue
            A(f"v_mov_b32 v{vt+1+i}, s{70+2*i}")
            A(f"buffer_atomic_umax v{vt+1+i}, v2, s[64:67], 0 offen offset:{8+4*i}")
        return
    A("s_memrealtime s[62:63]")
    A("s_waitcnt lgkmcnt(0)")
    A(f"s_add_u32 s64, s{P_WS}, {WS_PROF}")
    A(f"s_addc_u32 s65, s{P_WS+1}, 0")
    A("s_and_b32 s65, s65, 0xffff")
    A(f"s_mov_b32 s66, {MB}")
    A("s_mov_b32 s67, 0x00020000")
    A("s_lshl_b32 s60, s2, 10")
    A("s_lshl_b32 s61, s3, 6")
    A("s_add_u32 s60, s60, s61")
    A(f"v_mov_b32 v{vt+1}, 0")
    for i in range(n):
        A(f"v_mov_b32 v{vt}, s{70+2*i}")
        A(f"buffer_store_dword v{vt}, v{vt+1}, s[64:67], s60 offen offset:{4*i}")
    A(f"v_mov_b32 v{vt}, s68")
    A(f"buffer_store_dword v{vt}, v{vt+1}, s[64:67], s60 offen offset:56")
    A(f"v_mov_b32 v{vt}, s62")
    A(f"buffer_store_dword v{vt}, v{vt+1}, s[64:67], s60 offen offset:60")
    A("s_waitcnt vmcnt(0)")


FA = 254


def all_set(A, vt, val=1):
    A(f"v_cmp_eq_u32 {MK}, 1, v{vt}" if val == 1 else f"v_cmp_le_u32 {MK}, {val}, v{vt}")
    A(f"s_cmp_eq_u64 {MK}, -1")


def poll(A, name, srds, va, soff, vt, val=1):
    A("s_mov_b32 s98, 0")
    A(f"{name}:")
    A(f"buffer_load_dword v{vt}, v{va}, {srds}, {soff} offen sc1")
    A("s_waitcnt vmcnt(0)")
    all_set(A, vt, val)
    A(f"s_cbranch_scc1 {name}_OK")
    A(f"s_sleep {SLP}")
    A("s_add_u32 s98, s98, 1")
    A("s_cmp_lt_u32 s98, 0x80000")
    A(f"s_cbranch_scc1 {name}")
    A(f"{name}_OK:")


def check_or_poll(A, name, srds, va, soff, vt, val=1):
    all_set(A, vt, val)
    A(f"s_cbranch_scc1 {name}_OK")
    poll(A, name, srds, va, soff, vt, val)


def setflag(A, soff, vt, srds=WS):
    A("s_mov_b64 exec, 1")
    A(f"v_mov_b32 v{vt}, 1")
    A(f"buffer_store_dword v{vt}, v2, {srds}, {soff} offen sc1")
    A("s_mov_b64 exec, -1")


def gen(A):
    A(f".globl {NAME}")
    A(".p2align 8")
    A(f".type {NAME},@function")
    A(f"{NAME}:")
    A("s_cmp_ge_u32 s2, 256")
    A("s_cbranch_scc1 K_END")
    A("s_load_dwordx16 s[16:31], s[0:1], 0")
    A("s_load_dwordx8 s[32:39], s[0:1], 64")
    A("v_lshrrev_b32 v1, 6, v0")
    A("v_and_b32 v0, 63, v0")
    A("v_readfirstlane_b32 s3, v1")
    stamp(A, 0)
    A("s_and_b32 s4, s2, 1")
    A("s_lshl_b32 s4, s4, 3")
    A("s_bfe_u32 s5, s2, 0x30003")
    A("s_or_b32 s4, s4, s5")
    A("s_bfe_u32 s5, s2, 0x20001")
    A("s_lshl_b32 s5, s5, 2")
    A("s_lshr_b32 s6, s2, 6")
    A("s_or_b32 s5, s5, s6")
    A("v_lshlrev_b32 v1, 4, v0")
    A("v_mov_b32 v2, 0")
    A(f"v_and_b32 v{FA}, 15, v0")
    A(f"v_lshlrev_b32 v{FA}, 7, v{FA}")
    A("s_cmp_lt_u32 s3, 4")
    A("s_cbranch_scc0 P1_LOADER")
    if 'nocp' not in OPT:
        A("s_and_b32 s6, s2, 0x30")
        A("s_cbranch_scc1 P1_COMPUTE")
        A("s_getpc_b64 s[40:41]")
        A("s_bfe_u32 s6, s2, 0x10003")
        A("s_lshl_b32 s6, s6, 2")
        A("s_add_u32 s6, s6, s3")
        A("s_min_u32 s6, s6, CODE_CHUNKS")
        A("s_lshl_b32 s6, s6, 13")
        A("v_lshl_add_u32 v3, v0, 7, s6")
        A("global_load_dword v255, v3, s[40:41]")
    A("s_branch P1_COMPUTE")

    A("P1_LOADER:")
    A("s_sub_u32 s6, s3, 4")
    A("v_lshrrev_b32 v3, 3, v0")
    A("v_and_b32 v4, 7, v0")
    A("v_lshrrev_b32 v11, 4, v0")
    A("v_xor_b32 v5, v4, v11")
    A("v_lshlrev_b32 v5, 4, v5")
    A("v_lshl_add_u32 v5, v3, 11, v5")
    A("v_xor_b32 v6, 64, v5")
    A(f"v_add_u32 v6, {15360}, v6")
    A(f"v_add_u32 v7, {2*15360}, v5")
    A(f"v_add_u32 v8, {2*15360}, v6")
    A("v_and_b32 v9, 1, v11")
    A("v_lshlrev_b32 v9, 2, v9")
    A("v_xor_b32 v9, v9, v4")
    A("v_lshlrev_b32 v9, 4, v9")
    A("v_mul_u32_u24 v10, 6144, v3")
    A("v_add_u32 v9, v9, v10")
    A(f"v_add_u32 v10, {49152-1024}, v9")
    A("s_lshl_b32 s12, s4, 18")
    A("s_lshl_b32 s13, s6, 16")
    A("s_add_u32 s96, s12, s13")
    A(f"s_mul_i32 s13, s6, {16*6144}")
    A("s_lshl_b32 s14, s5, 7")
    A("s_add_u32 s97, s13, s14")
    A("s_add_u32 s95, s4, s5")
    A("s_and_b32 s95, s95, 3")
    A("s_mul_i32 s15, s6, 10240")
    A("s_waitcnt lgkmcnt(0)")
    srd(A, 40, P_X, 4 * MB)
    srd(A, 44, P_W, 6 * MB)

    vm = []
    fill = []

    def F(n):
        for _ in range(n):
            if fill:
                A(fill.pop(0))

    def issue_stage(st, nf=0):
        slot = st % 4
        A(f"s_xor_b32 s14, s95, {st}")
        A("s_lshl_b32 s12, s14, 7")
        A(f"s_add_u32 m0, s15, {slot*SLOT}")
        A("s_add_u32 s12, s12, s96")
        for j in range(4):
            A(f"buffer_load_dwordx4 v{5+j}, s[40:43], s12 offen offset:{j*1024} lds")
            F(nf)
        A(f"s_mul_i32 s14, s14, {64*6144}")
        A(f"s_add_u32 m0, s15, {slot*SLOT+4096}")
        A("s_add_u32 s13, s14, s97")
        for t in range(4):
            A(f"buffer_load_dwordx4 v{9+(t&1)}, s[44:47], s13 offen offset:{t*1024} lds")
            F(nf)
        A(f"s_add_u32 m0, s15, {slot*SLOT+8192}")
        A("s_add_u32 s13, s13, 4096")
        for t in range(2):
            A(f"buffer_load_dwordx4 v{9+t}, s[44:47], s13 offen offset:{t*1024} lds")
            F(nf)
        vm.extend([('st', st)] * 10)

    def wait_tag(tag):
        last = max(i for i, t in enumerate(vm) if t == tag)
        A(f"s_waitcnt vmcnt({len(vm) - 1 - last})")
        del vm[:last + 1]

    issue_stage(0)
    issue_stage(1)

    KR, VR, WR, T, OUT = 20, 42, 60, 68, 104
    srd(A, 48, P_K, 4 * MB)
    srd(A, 52, P_V, 4 * MB)
    srd(A, 60, P_SH, 8192)
    A("s_lshr_b32 s7, s2, 4")
    A("s_lshl_b32 s7, s7, 7")
    A("s_lshl_b32 s64, s6, 5")
    A("s_add_u32 s7, s7, s64")
    A("s_and_b32 s64, s2, 15")
    A("s_lshl_b32 s64, s64, 6")
    A("v_lshl_add_u32 v11, v11, 3, s7")
    A("v_and_b32 v12, 15, v0")
    A("v_lshl_add_u32 v12, v12, 2, s64")
    A("v_lshlrev_b32 v13, 1, v12")
    A("v_lshl_add_u32 v15, v11, 11, v13")
    A("v_subrev_u32 v13, 6144, v15")
    A("v_subrev_u32 v14, 2048, v15")
    A("v_lshlrev_b32 v17, 3, v12")
    A("s_movk_i32 s64, 0x1000")
    A("s_movk_i32 s65, 0x2000")
    A("s_movk_i32 s66, 0x3000")
    so4 = ['0', 's64', 's65', 's66']
    rows = [(13, '0', 0), (13, '0', 2048), (14, '0', 0)] + [(15, so4[i // 2], 2048 * (i & 1)) for i in range(8)]

    def prep_loads():
        for i in range(2):
            A(f"buffer_load_dwordx4 {v(WR+4*i,4)}, v17, s[60:63], 0 offen offset:{16*i}")
        for i, (a, so, o) in enumerate(rows):
            A(f"buffer_load_dwordx2 {v(KR+2*i,2)}, v{a}, s[48:51], {so} offen offset:{o}{NT}")
        for i, (a, so, o) in enumerate(rows[3:]):
            A(f"buffer_load_dwordx2 {v(VR+2*i,2)}, v{a}, s[52:55], {so} offen offset:{o}{NT}")
        vm.extend(['prep'] * 21)
    ST_PL = int(os.environ.get('ST_PL', -1))
    if ST_PL < 0:
        prep_loads()
    A("v_sub_u32 v18, 2040, v11")
    A("v_lshlrev_b32 v18, 1, v18")
    A("v_lshl_add_u32 v18, v12, 12, v18")
    A(f"v_add_u32 v18, {WS_UT}, v18")
    srd(A, SRD_WS, P_WS, WS_SIZE)
    srd(A, 56, P_DBG, 256)

    prep = []
    for j in range(4):
        dw, hi = j // 2, j & 1

        def unp(dst, src):
            return f"v_and_b32 v{dst}, 0xffff0000, v{src}" if hi else f"v_lshlrev_b32 v{dst}, 16, v{src}"
        for i in range(11):
            prep.append(unp(T + i, KR + 2 * i + dw))
        prep.append(f"v_lshlrev_b32 v{T+11}, 16, v{WR+2*j}")
        prep.append(f"v_and_b32 v{T+12}, 0xffff0000, v{WR+2*j}")
        prep.append(f"v_lshlrev_b32 v{T+13}, 16, v{WR+2*j+1}")
        prep.append(f"v_and_b32 v{T+14}, 0xffff0000, v{WR+2*j+1}")
        for i in range(8):
            prep.append(f"v_mul_f32 v{T+15+i}, v{T+i}, v{T+14}")
        for t in (2, 1, 0):
            for i in range(8):
                prep.append(f"v_fmac_f32 v{T+15+i}, v{T+3+i-t}, v{T+11+t}")
        for i in range(8):
            prep.append(unp(T + i, VR + 2 * i + dw))
        for i in range(8):
            prep.append(f"v_mul_f32 v{T+15+i}, v{T+15+i}, v{T+i}")
        for i in range(4):
            prep.append(f"v_cvt_pk_bf16_f32 v{OUT+4*j+i}, v{T+15+7-2*i}, v{T+15+6-2*i}")

    def h_loads():
        A("s_lshl_b32 s7, s2, 2")
        A("s_add_u32 s7, s7, s6")
        A("s_lshl_b32 s64, s7, 12")
        A(f"s_mul_i32 s65, s6, {HCS}")
        A(f"s_mul_i32 s66, s6, {U_SZ}")
        A(f"s_add_u32 s66, s66, {U_BASE}")
        srd(A, 48, P_SSMK, 4 * MB)
        srd(A, 52, P_D, 2048)
        HN = NT if ('hnt' in OPT or 'hall' in OPT) else ''
        for j in range(4):
            A(f"buffer_load_dwordx4 {v(HD+8*j,4)}, v1, s[48:51], s64 offen offset:{1024*j}{HN}")
        for j in range(4):
            A(f"buffer_load_dwordx2 {v(HD+8*j+4,2)}, v1, s[48:51], s64 offen offset:{1024*j+16}{HN}")
        A("buffer_load_dwordx2 v[200:201], v2, s[48:51], s64 offen")
        A("s_lshl_b32 s7, s7, 1")
        A("buffer_load_ushort v202, v2, s[52:55], s7 offen")
        A("v_add_u32 v205, s65, v1")
        vm.extend(['h'] * 10)

    HD = 120

    def h_write(c):
        if 'hall' in OPT and not c & 1:
            for j in range(4):
                if c == 4:
                    src = HD + 8 * j + 2
                else:
                    src = 208 + 4 * (j & 1)
                    for i in range(4):
                        A(f"v_mov_b32 v{src+i}, v{HD+8*j+1+i}")
                A(f"ds_write_b128 v205, {v(src,4)} offset:{(c-1)*HC_STRIDE+32+1024*j}")
                A("s_nop 3")
            return
        if c & 1:
            for j in range(4):
                d = HD + 8 * j + (c >> 1)
                o = 208 + 4 * (j & 1)
                for i in range(4):
                    A(f"v_alignbit_b32 v{o+i}, v{d+i+1}, v{d+i}, 16")
                A(f"ds_write_b128 v205, {v(o,4)} offset:{(c-1)*HC_STRIDE+32+1024*j}")
                A("s_nop 7")
            return
        A(f"s_add_u32 s7, s64, {2*c}")
        A(f"s_add_u32 m0, s65, {(c-1)*HC_STRIDE+32}")
        A("s_nop 0")
        for j in range(4):
            A(f"buffer_load_dwordx4 v1, s[48:51], s7 offen offset:{j*1024} lds")
        vm.extend(['cv'] * 4)

    FR, UR, YR = [32, 96], [64, 128], 160
    csetup = [
        "v_lshrrev_b32 v221, 1, v0",
        f"v_mul_u32_u24 v221, {HC_STRIDE}, v221",
        "v_and_b32 v222, 1, v0",
        "v_lshl_add_u32 v221, v222, 4, v221",
        "v_add_u32 v221, s65, v221",
        "v_subrev_u32 v222, 8, v0",
        "v_min_u32 v222, 31, v222",
        "v_lshlrev_b32 v222, 4, v222",
        "v_add_u32 v222, 4096, v222",
        "v_add_u32 v222, s66, v222",
        "v_cmp_gt_u32 vcc, 8, v0"] + [f"v_mov_b32 v{YR+r}, 0" for r in range(32)] + [
        "v_cndmask_b32 v221, v222, v221, vcc",
        "v_and_b32 v222, 3, v0",
        f"v_mul_u32_u24 v223, {HC_STRIDE}, v222",
        "v_lshlrev_b32 v222, 1, v222",
        "v_sub_u32 v222, v223, v222",
        "v_add_u32 v222, 30, v222",
        "v_add_u32 v222, s65, v222",
        "v_lshrrev_b32 v224, 4, v0",
        "v_lshl_add_u32 v223, v224, 4, v223",
        "v_bfe_u32 v225, v0, 2, 2",
        "v_lshl_add_u32 v223, v225, 3, v223",
        "v_add_u32 v223, s65, v223",
        "v_and_b32 v225, 15, v0",
        "v_lshlrev_b32 v226, 5, v225",
        "v_lshlrev_b32 v227, 4, v224",
        "v_sub_u32 v227, v227, v226",
        "v_lshl_add_u32 v226, v224, 3, v226",
        "v_add_u32 v227, 480, v227",
        "v_add_u32 v224, s66, v227",
        f"v_sub_u32 v225, {4088-3584}, v226",
        "v_add_u32 v225, s66, v225",
        f"v_mov_b32 v227, {CNT_LDS}",
    ]
    ST_H = int(os.environ.get('ST_H', 0))
    ST_PC = ST_PL + LA + 1
    NF = int(os.environ.get('NF', 9))
    ST_UT = ST_PC + (268 + 10 * NF - 1) // (10 * NF) - 1
    ST_SIG = ST_UT + LA + 1
    ST_CU = int(os.environ.get('ST_CU', 10))
    ST_UCHK = int(os.environ.get('ST_UCHK', 13))
    assert ST_UCHK >= ST_CU + LA + 1
    assert ST_UT >= ST_H >= ST_PL and ST_SIG < ST_CU and ST_CU + LA + 1 <= 15
    for st in range(16):
        wait_tag(('st', st))
        A("s_barrier")
        if st == ST_PC:
            assert 'prep' not in vm
            fill.extend(prep)
        if st == 0:
            for k in range(2, LA + 1):
                issue_stage(k)
        elif st + LA < 16:
            issue_stage(st + LA, NF)
        if st == ST_PL:
            prep_loads()
        if st == ST_H:
            h_loads()
        if st == ST_UT:
            A("buffer_load_dword v19, v2, s[56:59], 0 offen sc1")
            vm.append('if')
            F(len(fill))
            A("s_movk_i32 s7, 0x1000")
            A("s_movk_i32 s12, 0x2000")
            A("s_movk_i32 s13, 0x3000")
            for j, so in enumerate(['0', 's7', 's12', 's13']):
                A(f"buffer_store_dwordx4 {v(OUT+4*j,4)}, v18, {WS}, {so} offen{SC}")
                vm.append('ut')
        if st == ST_SIG:
            assert 'ut' not in vm and 'if' not in vm
            check_or_poll(A, 'INITP', 's[56:59]', 2, '0', 19, 16)
            A("s_cmp_lg_u32 s6, 0")
            A("s_cbranch_scc1 NOSIGU")
            A("s_and_b32 s7, s2, 15")
            A("s_lshl_b32 s7, s7, 4")
            A("s_lshr_b32 s12, s2, 4")
            A("s_add_u32 s7, s7, s12")
            A("s_lshl_b32 s7, s7, 7")
            A(f"s_add_u32 s7, s7, {FU}")
            setflag(A, 's7', 11)
            A("NOSIGU:")
        if st == ST_CU:
            A("s_lshr_b32 s7, s2, 4")
            A("s_lshl_b32 s7, s7, 11")
            A(f"s_add_u32 s67, s7, {FU}")
            A(f"buffer_load_dword v19, v{FA}, {WS}, s67 offen sc1")
            vm.append('cu')
        if st == ST_UCHK:
            assert 'cu' not in vm
            all_set(A, 19)
            A("s_cbranch_scc0 NOUT")
            A(f"s_add_u32 s12, s64, {WS_UT}")
            A("v_min_u32 v203, 31, v0")
            A("v_lshlrev_b32 v203, 7, v203")
            A(f"buffer_load_dword v204, v203, {WS}, s12 offen sc1")
            A("NOUT:")
        if st == ST_UT + 1:
            fill.extend(csetup)
        if st == 14:
            A(f"buffer_load_dword v19, v{FA}, {WS}, s67 offen sc1")
            vm.append('cu2')
            F(len(fill))
            h_write(2)
            h_write(4)
            h_write(1)
            h_write(3)
    A(f"ds_write_b128 v221, {v(YR,4)}")
    A("ds_write_b32 v227, v2")
    A("v_lshlrev_b32 v220, 16, v202")
    A(f"s_add_u32 s12, s64, {WS_UT}")
    A("s_mov_b32 m0, s66")
    wait_tag('cu2')
    all_set(A, 19)
    A("s_cbranch_scc1 U_EARLY")
    A("s_waitcnt lgkmcnt(0)")
    A("s_barrier")
    poll(A, 'POLLU', WS, FA, 's67', 19)
    for j in range(4):
        A(f"buffer_load_dwordx4 v1, {WS}, s12 offen offset:{j*1024}{SC} lds")
    A("s_branch U_JOIN")
    A("U_EARLY:")
    for j in range(4):
        A(f"buffer_load_dwordx4 v1, {WS}, s12 offen offset:{j*1024}{SC} lds")
    A("s_waitcnt lgkmcnt(0)")
    A("s_barrier")
    A("U_JOIN:")
    stamp(A, 1)
    A("s_waitcnt vmcnt(4)")
    A("ds_write_b64 v222, v[200:201]")
    A(f"s_add_u32 s7, s64, {WS_ZT}")
    A("v_add_u32 v216, s7, v226")
    pairs = [(a, b) for a in range(8) for b in range(8) if a + b <= 7]

    def cF(rho):
        o = []
        for a in range(8):
            o.append(f"ds_read_b64 {v(FR[rho&1]+4*a,2)}, v223 offset:{512*a+64*rho}")
            o.append(f"ds_read_b64 {v(FR[rho&1]+4*a+2,2)}, v223 offset:{512*a+64*rho+8}")
        return o

    def cU(rho):
        return [f"ds_read_b128 {v(UR[rho&1]+4*b,4)}, v224 offset:{512*(7-b)+64*rho}" for b in range(8)]

    for x in cF(0):
        A(x)
    A("s_waitcnt vmcnt(0)")
    for x in cU(0):
        A(x)
    stamp(A, 2)
    A("s_mov_b32 s7, 0")
    A("CONV_LOOP:")
    for rho in range(2):
        A("s_waitcnt lgkmcnt(0)")
        nxt = cU(rho + 1) + cF(rho + 1)
        if rho == 1:
            nxt += ["v_add_u32 v223, 128, v223", "v_add_u32 v224, 128, v224", "s_add_u32 s7, s7, 1", "s_cmp_lt_u32 s7, 4"]
        for i, (a, b) in enumerate(pairs):
            G = a + b
            A(mfma16(YR + 4 * G, FR[rho] + 4 * a, UR[rho] + 4 * b, YR + 4 * G))
            if i < len(nxt):
                A(nxt[i])
    A("s_cbranch_scc1 CONV_LOOP")
    for G in range(8):
        A(f"ds_read_b64 {v(FR[1]+2*G,2)}, v225 offset:{512*(7-G)}")
    A("s_waitcnt lgkmcnt(0)")
    for G in range(8):
        y = YR + 4 * G
        t = UR[1]
        f = FR[1]
        A(f"v_and_b32 v{t}, 0xffff0000, v{f+2*G+1}")
        A(f"v_lshlrev_b32 v{t+1}, 16, v{f+2*G+1}")
        A(f"v_and_b32 v{t+2}, 0xffff0000, v{f+2*G}")
        A(f"v_lshlrev_b32 v{t+3}, 16, v{f+2*G}")
        for r in range(4):
            A(f"v_fmac_f32 v{y+r}, v{t+r}, v220")
        A(f"v_cvt_pk_bf16_f32 v{200+2*G}, v{y}, v{y+1}")
        A(f"v_cvt_pk_bf16_f32 v{201+2*G}, v{y+2}, v{y+3}")
    stamp(A, 3)
    A("s_branch P2_JOIN")

    A("P1_COMPUTE:")
    ACC = 64
    XF = [16, 40, 176, 200]
    WF = [24, 48, 184, 208]
    XA = 160
    WA = 168
    A("s_lshr_b32 s6, s3, 1")
    A("s_and_b32 s7, s3, 1")
    A("v_and_b32 v6, 31, v0")
    A("v_lshrrev_b32 v3, 5, v0")
    A("v_bfe_u32 v4, v0, 1, 3")
    A("v_xor_b32 v4, v4, v3")
    A("v_lshlrev_b32 v4, 4, v4")
    A("v_lshl_add_u32 v4, v6, 7, v4")
    A("s_mul_i32 s12, s6, 20480")
    A("v_add_u32 v4, s12, v4")
    for ks in range(4):
        if ks == 0:
            A(f"v_mov_b32 v{XA}, v4")
        else:
            A(f"v_xor_b32 v{XA+ks}, {32*ks}, v4")
        A(f"v_add_u32 v{XA+4+ks}, {2*SLOT}, v{XA+ks}")
    A("v_bfe_u32 v5, v0, 2, 2")
    A("v_lshlrev_b32 v6, 7, v5")
    A("v_lshl_add_u32 v6, v3, 10, v6")
    A("v_bfe_u32 v7, v0, 3, 1")
    A("v_xor_b32 v7, s7, v7")
    A("v_lshl_add_u32 v6, v7, 6, v6")
    A("v_bfe_u32 v7, v0, 4, 1")
    A("v_lshl_add_u32 v6, v7, 5, v6")
    A("v_and_b32 v7, 3, v0")
    A(f"v_lshl_add_u32 v{WA}, v7, 3, v6")
    for sl in range(1, 4):
        A(f"v_add_u32 v{WA+sl}, {sl*SLOT}, v{WA}")
    A("s_lshl_b32 s12, s5, 1")
    A("s_add_u32 s12, s12, s7")
    A("s_lshl_b32 s7, s5, 4")
    A("s_add_u32 s7, s7, s4")
    A("s_lshl_b32 s7, s7, 7")
    A(f"s_add_u32 s7, s7, {F1}")
    A("s_lshl_b32 s12, s12, 6")
    A("s_lshl_b32 s13, s4, 2")
    A("s_add_u32 s12, s12, s13")
    A("s_lshl_b32 s13, s6, 1")
    A("s_add_u32 s12, s12, s13")
    A("s_lshl_b32 s13, s12, 11")
    A("s_lshl_b32 s14, s12, 12")
    A(f"s_add_u32 s14, s14, {WS_KV}")
    A("s_add_u32 s15, s14, 4096")
    A(f"s_mov_b32 s12, {QSCALE:#x}")
    A("s_waitcnt lgkmcnt(0)")
    srd(A, SRD_WS, P_WS, WS_SIZE)
    if 'tlb' in OPT:
        A("s_bfe_u32 s42, s2, 0x20004")
        A("s_lshl_b32 s42, s42, 2")
        A("s_add_u32 s42, s42, s3")
        for k, (p, stride) in enumerate([(P_WS, 393216 + 2048), (P_OUT, 131072), (P_Q, 65536), (P_WO, 32768),
                                         (P_W, 98304), (P_SSMK, 65536)]):
            A(f"s_cmp_lg_u32 s42, {4+k}")
            A(f"s_cbranch_scc1 NOTLB{k}")
            A(f"v_mul_u32_u24 v8, {stride}, v0")
            A(f"global_load_dword v255, v8, s[{p}:{p+1}] sc1")
            A(f"NOTLB{k}:")
    A("s_lshl_b32 s42, s3, 4")
    A("s_or_b32 s42, s42, s2")
    A("s_cmp_ge_u32 s42, 16")
    A("s_cbranch_scc1 NOINIT")
    srd(A, 56, P_DBG, 256)
    A("v_lshlrev_b32 v8, 7, v0")
    A("s_lshl_b32 s42, s2, 13")
    A(f"s_add_u32 s42, s42, {WS_SYNC}")
    A(f"buffer_store_dword v2, v8, {WS}, s42 offen sc1")
    A("v_mov_b32 v9, 1")
    A("s_waitcnt vmcnt(0)")
    A("s_mov_b64 exec, 1")
    A("buffer_atomic_add v9, v2, s[56:59], 0 offen")
    A("s_mov_b64 exec, -1")
    A("NOINIT:")

    def bufof(step):
        return step & 1 if step < 60 else {60: 0, 61: 2, 62: 3, 63: 1}[step]

    def reads(step):
        st, ks = divmod(step, 4)
        slot = st % 4
        b = bufof(step)
        out = []
        xa = XA + 4 * (slot >> 1) + ks
        out.append(f"ds_read_b128 {v(XF[b],4)}, v{xa} offset:{(slot&1)*SLOT}")
        for seg in range(3):
            for j in range(2):
                out.append(f"ds_read_b64_tr_b16 {v(WF[b]+4*seg+2*j,2)}, v{WA+slot} offset:{ks*10240+4096+seg*2048+j*512}")
            if seg == 0:
                out.append(f"ds_read_b128 {v(XF[b]+4,4)}, v{xa} offset:{(slot&1)*SLOT+10240}")
        return out

    def mf(step, seg, rt):
        b = bufof(step)
        d = ACC + 16 * (3 * rt + seg)
        c = d
        if seg < 2:
            return mfma32(d, WF[b] + 4 * seg, XF[b] + 4 * rt, c)
        return mfma32(d, XF[b] + 4 * rt, WF[b] + 4 * seg, c)

    def epi(seg, rt):
        d = ACC + 16 * (3 * rt + seg)
        out = []
        if seg == 0:
            for r in range(16):
                out.append(f"v_mul_f32 v{d+r}, s12, v{d+r}")
        for r in range(8):
            out.append(f"v_cvt_pk_bf16_f32 v{d+r}, v{d+2*r}, v{d+2*r+1}")
        so, off = [('s13', rt * 2048), (('s14', 's15')[rt], 0), (('s14', 's15')[rt], 2048)][seg]
        out.append(f"buffer_store_dwordx4 {v(d,4)}, v1, {WS}, {so} offen offset:{off}{SC}")
        out.append(f"buffer_store_dwordx4 {v(d+4,4)}, v1, {WS}, {so} offen offset:{off+1024}{SC}")
        return out

    for r in range(96):
        A(f"v_mov_b32 v{ACC+r}, 0")
    A("s_mov_b32 s6, 0")
    A("s_barrier")
    stamp(A, 1)
    stamp1(A, 1)
    for r in reads(0):
        A(r)

    def gstep(step):
        m = [mf(step, seg, rt) for seg in range(3) for rt in range(2)]
        nxt = reads(step + 1)
        A("s_waitcnt lgkmcnt(0)")
        A(m[0])
        if (step + 1) % 4 == 0:
            A("s_barrier")
            bs = (step + 1) // 4
            P1S = (2, 4, 6, 8, 9, 10, 11, 12, 14)
            if bs in P1S:
                stamp1(A, 2 + P1S.index(bs))
        if step == 59:
            nxt = reads(60) + reads(61) + reads(62)
            gaps = [nxt[0:4], nxt[4:8], nxt[8:12], nxt[12:16], nxt[16:20], nxt[20:24]]
        else:
            gaps = [nxt[0:3], nxt[3:5], nxt[5:7], nxt[7:8], [], []]
        if step == 15 and 'p1' not in OPT:
            gaps[4] = ["s_add_u32 s6, s6, 1", "s_cmp_lt_u32 s6, 3"]
        for x in gaps[0]:
            A(x)
        for k in range(1, 6):
            A(m[k])
            for x in gaps[k]:
                A(x)

    if 'p1' in OPT:
        for step in range(48):
            gstep(step)
    else:
        A("P1_LOOP:")
        for step in range(16):
            gstep(step)
        A("s_cbranch_scc1 P1_LOOP")
    for step in range(48, 60):
        gstep(step)
    for x in reads(63):
        A(x)
    order = [(1, 0), (1, 1), (2, 0), (2, 1), (0, 0), (0, 1)]
    pend = []
    A("s_waitcnt lgkmcnt(8)" if 'p1' not in OPT else "s_waitcnt lgkmcnt(0)")
    for ti, (seg, rt) in enumerate(order):
        if ti >= 2:
            pend = epi(*order[ti - 2])
        for k, step in enumerate(range(60, 64)):
            if ti == 0 and k == 3:
                A("s_waitcnt lgkmcnt(0)")
            A(mf(step, seg, rt))
            if ti == 0 and k == 3:
                A("s_barrier")
                stamp1(A, 11)
            if ti == 1 and k in (1, 2):
                A("s_nop 3")
            n = (len(pend) + (3 - k)) // (4 - k)
            for x in pend[:n]:
                A(x)
            pend = pend[n:]
    stamp(A, 2)
    A("v_mov_b32 v216, 0x7fff0000")
    for x in epi(*order[4]) + epi(*order[5]):
        A(x)
    A("s_and_b32 s4, s2, 7")
    A("s_lshl_b32 s4, s4, 2")
    A("s_lshr_b32 s5, s2, 6")
    A("s_or_b32 s4, s4, s5")
    A("s_lshr_b32 s42, s4, 1")
    A("s_lshl_b32 s42, s42, 11")
    A(f"s_add_u32 s42, s42, {F1}")
    A("s_lshl_b32 s12, s4, 18")
    A("s_lshl_b32 s13, s3, 12")
    A("s_add_u32 s12, s12, s13")
    A(f"s_add_u32 s12, s12, {WS_KV}")
    A("s_bfe_u32 s5, s2, 0x30003")
    A("s_lshl_b32 s14, s4, 17")
    A("s_lshl_b32 s15, s5, 14")
    A("s_add_u32 s14, s14, s15")
    A("s_add_u32 s14, s14, s13")
    A("s_waitcnt vmcnt(0)")
    A(f"v_mov_b32 v3, {CNT_LDS}")
    A("v_mov_b32 v4, 1")
    A("s_mov_b64 exec, 1")
    A("ds_add_rtn_u32 v5, v3, v4")
    A("s_waitcnt lgkmcnt(0)")
    A("v_readfirstlane_b32 s6, v5")
    A("s_mov_b64 exec, -1")
    stamp(A, 3)
    A("s_cmp_lg_u32 s6, 3")
    A("s_cbranch_scc1 NOPOLL1")
    setflag(A, 's7', 4)
    poll(A, 'POLL1', WS, FA, 's42', 5)
    A("v_mov_b32 v4, 64")
    A("ds_write_b32 v3, v4")
    A("s_branch GO1")
    A("NOPOLL1:")
    A("s_mov_b32 s98, 0")
    A("LW1:")
    A("s_sleep 1")
    A("ds_read_b32 v5, v3")
    A("s_add_u32 s98, s98, 1")
    A("s_cmp_ge_u32 s98, 0x800000")
    A("s_cbranch_scc1 GO1")
    A("s_waitcnt lgkmcnt(0)")
    A("v_readfirstlane_b32 s6, v5")
    A("s_cmp_lg_u32 s6, 64")
    A("s_cbranch_scc1 LW1")
    A("GO1:")
    A("s_waitcnt lgkmcnt(0)")
    stamp(A, 4)
    A(f"s_add_u32 m0, s13, {RING}")
    A("s_nop 0")
    for j in range(4):
        A(f"buffer_load_dwordx4 v1, {WS}, s12 offen offset:{j*1024}{SC} lds")
    A(f"s_add_u32 m0, s13, {RING+3*16384}")
    A("s_add_u32 s12, s12, 16384")
    for j in range(4):
        A(f"buffer_load_dwordx4 v1, {WS}, s14 offen offset:{j*1024}{SC} lds")
    A(f"s_add_u32 m0, s13, {RING+16384}")
    A("s_nop 0")
    for j in range(4):
        A(f"buffer_load_dwordx4 v1, {WS}, s12 offen offset:{j*1024}{SC} lds")

    A("P2_JOIN:")
    Q, NM, S, P, O, L, KF, VF, ON = 4, 16, [32, 48], 64, 72, 88, [92, 100], [108, 116], 124
    RB, WOA, IDX = 128, 129, 15
    GA = 130
    ZR, QR, WL, OS = 136, 144, 152, 168
    SM = f"v_smfmac_f32_16x16x64_bf16 {v(L,4)}, {v(ON,4)}, {v(P,8)}, v{IDX}"
    A("s_and_b32 s4, s2, 7")
    A("s_lshl_b32 s4, s4, 2")
    A("s_lshr_b32 s5, s2, 6")
    A("s_or_b32 s4, s4, s5")
    A("s_bfe_u32 s5, s2, 0x30003")
    A("s_lshl_b32 s6, s4, 18")
    A(f"s_add_u32 s6, s6, {WS_KV}")
    A("s_lshl_b32 s13, s3, 11")
    A("s_add_u32 s12, s6, s13")
    A("s_add_u32 s12, s12, 32768")
    A(f"s_add_u32 s13, s13, {RING}")
    A("s_lshl_b32 s14, s5, 3")
    A("s_add_u32 s14, s14, s3")
    A("s_lshl_b32 s15, s14, 5")
    A("s_add_u32 s15, s15, s4")
    A("s_lshl_b32 s58, s5, 5")
    A("s_add_u32 s58, s58, s4")
    A("s_lshl_b32 s58, s58, 7")
    A(f"s_add_u32 s58, s58, {F2}")
    A("s_lshl_b32 s57, s2, 7")
    A(f"s_add_u32 s57, s57, {FZ}")
    A("s_cmp_eq_u32 s3, 4")
    A("s_cselect_b32 s57, s57, 0x7fff0000")
    A("s_cselect_b32 s58, s58, 0x7fff0000")
    A("s_lshl_b32 s15, s15, 11")
    A(f"s_add_u32 s15, s15, {WS_OF}")
    A(f"v_add_u32 v{RB}, {RING}, v1")
    A(f"v_add_u32 v3, s13, v1")
    A("s_bfe_u32 s40, s2, 0x20001")
    A("s_lshl_b32 s40, s40, 2")
    A("s_bfe_u32 s41, s2, 0x20003")
    A("s_or_b32 s40, s40, s41")
    A("s_and_b32 s41, s2, 1")
    A("s_lshl_b32 s41, s41, 3")
    A("s_lshr_b32 s42, s2, 5")
    A("s_or_b32 s41, s41, s42")
    srd(A, 44, P_WO, 2 * MB)
    srd(A, 52, P_Q, 4 * MB)
    A("v_lshrrev_b32 v5, 3, v0")
    A("v_and_b32 v6, 7, v0")
    A("v_bfe_u32 v7, v0, 4, 1")
    A("v_lshlrev_b32 v7, 2, v7")
    A("v_xor_b32 v7, v7, v6")
    A("v_lshlrev_b32 v7, 4, v7")
    A(f"v_lshl_add_u32 v{WOA}, v5, 11, v7")
    A("s_lshl_b32 s48, s3, 14")
    A("s_lshl_b32 s49, s41, 7")
    A("s_add_u32 s48, s48, s49")
    A("s_lshl_b32 s49, s3, 10")
    A("s_mov_b32 s43, s49")
    A("s_and_b32 s59, s3, 3")
    A("s_lshl_b32 s50, s40, 2")
    A("s_add_u32 s59, s59, s50")
    A("s_lshl_b32 s59, s59, 1")
    A("s_lshr_b32 s50, s3, 2")
    A("s_add_u32 s59, s59, s50")
    A("s_lshl_b32 s60, s59, 15")
    A(f"s_add_u32 s60, s60, {WS_OF}")
    A("s_lshr_b32 s59, s40, 1")
    A("s_lshl_b32 s59, s59, 1")
    A("s_add_u32 s59, s59, s50")
    A("s_lshl_b32 s59, s59, 11")
    A(f"s_add_u32 s59, s59, {F2}")
    A("s_lshr_b32 s50, s2, 4")
    A("s_lshl_b32 s50, s50, 7")
    A("s_lshl_b32 s51, s3, 4")
    A("s_add_u32 s50, s50, s51")
    A("s_and_b32 s51, s2, 15")
    A("s_lshl_b32 s56, s51, 11")
    A(f"s_add_u32 s56, s56, {FZ}")
    A("s_lshl_b32 s51, s51, 6")
    A(f"v_lshl_add_u32 v5, v5, 1, s50")
    A(f"v_lshl_add_u32 v6, v6, 3, s51")
    A(f"v_lshlrev_b32 v{GA+2}, 1, v5")
    A(f"v_lshl_add_u32 v{GA+2}, v6, 12, v{GA+2}")
    A(f"v_lshlrev_b32 v{GA+3}, 1, v6")
    A(f"v_lshl_add_u32 v{GA+4}, v5, 11, v{GA+3}")
    A(f"v_lshl_add_u32 v{GA+3}, v5, 12, v{GA+3}")
    A("s_and_b32 s61, s41, 3" if 'norot3' not in OPT else "s_mov_b32 s61, 0")
    A("s_lshl_b32 s61, s61, 2")
    A(f"v_add_u32 v{GA+1}, s61, v0")
    A(f"v_and_b32 v{GA+1}, 15, v{GA+1}")
    A(f"v_lshlrev_b32 v{GA+1}, 7, v{GA+1}")
    A(f"v_add_u32 v{GA}, s43, v{RB}")
    A("s_lshr_b32 s63, 0x00110011, s61")
    A("s_and_b32 s63, s63, 0x1111")
    A("s_cmp_lt_u32 s3, 4")
    A("s_cselect_b32 s63, 0x1111, s63")
    A("s_mov_b32 s27, 0x7fff0000")
    A("s_mov_b32 s28, 0x7fff0000")
    A("v_bfe_u32 v5, v0, 2, 1")
    A("v_cmp_eq_u32 vcc, 0, v5")
    A("v_mov_b32 v6, 0x3f803f80")
    A("v_and_b32 v5, 1, v0")
    A(f"v_cndmask_b32 v{ON}, 0, v6, vcc")
    A(f"v_xor_b32 v{ON+2}, v6, v{ON}")
    A(f"v_mov_b32 v{ON+1}, v{ON}")
    A(f"v_mov_b32 v{ON+3}, v{ON+2}")
    A(f"v_mul_u32_u24 v{IDX}, 0xaaaa, v5")
    A(f"v_add_u32 v{IDX}, 0x4444, v{IDX}")
    for r in range(16):
        A(f"v_mov_b32 v{O+r}, 0")
    for r in range(4):
        A(f"v_mov_b32 v{L+r}, 0")
    for r in range(8):
        A(f"v_mov_b32 v{P+r}, 0")
        A(f"v_mov_b32 v{VF[1]+r}, 0")

    def rdK(t):
        b = t & 1
        o = (t % 16) * 4096
        return [f"ds_read_b128 {v(KF[b],4)}, v{RB} offset:{o}", f"ds_read_b128 {v(KF[b]+4,4)}, v{RB} offset:{o+1024}"]

    def rdV(t):
        b = t & 1
        o = (t % 16) * 4096 + 2048
        return [f"ds_read_b128 {v(VF[b],4)}, v{RB} offset:{o}", f"ds_read_b128 {v(VF[b]+4,4)}, v{RB} offset:{o+1024}"]

    A("s_cmp_lt_u32 s3, 4")
    A("s_cselect_b64 vcc, -1, 0")
    A("s_waitcnt vmcnt(4)")
    stamp(A, 5)
    A("s_barrier")
    stamp(A, 6)
    A(f"ds_read_b128 {v(Q,4)}, v3 offset:{3*16384}")
    A(f"ds_read_b128 {v(Q+4,4)}, v3 offset:{3*16384+1024}")
    for x in rdK(0) + rdK(1) + rdV(0):
        A(x)
    A(f"s_add_u32 m0, s13, {2*16384}")
    A("s_mov_b32 s14, 0")
    A(f"buffer_load_dwordx4 v1, {WS}, s12 offen{SC} lds")
    A(f"buffer_load_dwordx4 v1, {WS}, s12 offen offset:1024{SC} lds")
    A("s_add_u32 s12, s12, 16384")
    A("s_waitcnt lgkmcnt(4)")
    A(mfma32(S[1], KF[0], Q, '0'))
    A(mfma32(S[1], KF[0] + 4, Q + 4, S[1]))
    A("s_nop 7")
    A("s_nop 3")
    s1 = S[1]
    A(f"v_max3_f32 v12, v{s1}, v{s1+1}, v{s1+2}")
    for r in range(3, 15, 2):
        A(f"v_max3_f32 v12, v12, v{s1+r}, v{s1+r+1}")
    A(f"v_max_f32 v12, v12, v{s1+15}")
    A("v_mov_b32 v13, v12")
    A("s_nop 1")
    A("v_permlane32_swap_b32 v12, v13")
    A("v_max_f32 v12, v12, v13")
    for r in range(16):
        A(f"v_sub_f32 v{S[0]+r}, v{s1+r}, v12")
    for r in range(16):
        A(f"v_xor_b32 v{NM+r}, 0x80000000, v12")
    stamp(A, 7)

    vq = [('kv', 1)] * 4 + [('kv', 2)] * 2

    def vwait(tag):
        if tag not in vq:
            return "s_nop 0"
        lastp = max(i for i, x in enumerate(vq) if x == tag)
        n_ = len(vq) - 1 - lastp
        del vq[:lastp + 1]
        return f"s_waitcnt vmcnt({n_})"

    def ofr(i):
        return 176 + 4 * i if i < 16 else (64 + 4 * (i - 16) if i < 28 else 240 + 4 * (i - 28))

    def avail(B=A):
        B(f"v_cmp_eq_u32 {MK}, 1, v{GA+5}")
        B("s_lshr_b32 s25, s100, 1")
        B("s_and_b32 s25, s25, s100")
        B("s_lshr_b32 s26, s25, 2")
        if FIXED:
            B("s_and_b32 s29, s25, s26")
            nextbit(B)
        else:
            B("s_and_b32 s25, s25, s26")
            B("s_and_b32 s25, s25, s24")

    FIXED = 'dyn' not in OPT

    def nextbit(B):
        B("s_sub_u32 s25, 0, s24")
        B("s_and_b32 s25, s25, s24")
        B("s_and_b32 s25, s25, s29")

    def pick(r, B=A):
        B("s_ff1_i32_b32 s26, s25")
        B("s_bitset0_b32 s24, s26")
        if FIXED:
            nextbit(B)
        else:
            B("s_bitset0_b32 s25, s26")
        B("s_add_u32 s26, s26, s61")
        B("s_and_b32 s26, s26, 15")
        B("s_lshl_b32 s27, s26, 11")
        B("s_add_u32 s27, s27, s60")
        B("s_add_u32 s28, s27, 4096")
        B(f"s_lshl_b32 s{16+r}, s26, 12")

    def oload(r, i):
        return f"buffer_load_dwordx4 {v(ofr(8*r+i),4)}, v1, {WS}, s{27+i//4} offen offset:{(i%4)*1024}{SC}"

    def zload(j2):
        vq.append('z')
        return [f"s_mov_b32 s51, {WS_ZT+4096*j2}", f"buffer_load_dword v{ZR+j2}, v{GA+2}, {WS}, s51 offen sc1"]

    fl = f"buffer_load_dword v{GA+5}, v{GA+1}, {WS}, s59 offen sc1"

    def slot_a(T):
        j = (T + 2) // 4 + 2
        if T % 4 == 2 and j <= 15:
            vq.append(('kv', j))
            return [f"s_add_u32 m0, s13, {(j%4)*16384}", "s_nop 0", f"buffer_load_dwordx4 v1, {WS}, s12 offen{SC} lds"]
        if T % 4 == 3 and (T + 1) // 4 + 2 <= 15:
            vq.append(('kv', (T + 1) // 4 + 2))
            return [f"buffer_load_dwordx4 v1, {WS}, s12 offen offset:1024{SC} lds", "s_add_u32 s12, s12, 16384"]
        if T % 4 == 0 and 4 <= T <= 48:
            vq.append('wo')
            return ["s_mov_b32 m0, s49", "s_add_u32 s49, s49, 8192",
                    f"buffer_load_dwordx4 v{WOA}, s[44:47], s48 offen lds", f"s_add_u32 s48, s48, {64*2048}"]
        if T == 49:
            vq.append('cz')
            return [f"buffer_load_dword v{GA+5}, v{FA}, {WS}, s56 offen sc1"]
        if 52 <= T <= 55:
            vq.append('wl')
            return [f"buffer_load_dwordx4 {v(WL+4*(T-52),4)}, v{WOA}, s[44:47], s48 offen",
                    f"s_add_u32 s48, s48, {64*2048}"]
        if T in (56, 57):
            return zload(4 + 2 * (T - 56))
        if T == 58:
            vq.append('f2')
            return [fl]
        if T >= 60:
            vq.append('e')
            return [oload(0, 2 * (T - 60))]
        return []

    def slot_e(T):
        if 2 <= T <= 9:
            G = T - 2
            vq.append('zt')
            return [f"buffer_store_dwordx2 {v(200+2*G,2)}, v216, {WS}, 0 offen offset:{512*G}{SC}"]
        if T in (48, 49):
            i = T - 48
            vq.append('q')
            return [f"buffer_load_dwordx4 {v(QR+4*i,4)}, v{GA+4}, s[52:55], 0 offen offset:{2048*i}{NT}"]
        if 52 <= T <= 55:
            return zload(T - 52)
        if T in (56, 57):
            return zload(5 + 2 * (T - 56))
        if T >= 60:
            vq.append('e')
            return [oload(0, 2 * (T - 60) + 1)] + ([fl] if T == 63 else [])
        return []

    def tile(B, T, grp):
        t = T % 16
        c, n = S[t & 1], S[(t + 1) & 1]
        kb, vp = KF[(t + 1) & 1], VF[(t + 1) & 1]
        do_qk = T < 63
        rk = rdK(t + 2) if T < 62 else []
        rv = rdV(t + 1) if T < 63 else []
        E = lambda r: f"v_exp_f32 v{c+r}, v{c+r}"
        C = lambda r: f"v_cvt_pk_bf16_f32 v{P+r}, v{c+2*r}, v{c+2*r+1}"
        B("s_setprio 0")
        if T in (0, 48, 56):
            stamp2(B, {0: 1, 48: 5, 56: 7}[T])
        B("s_waitcnt lgkmcnt(0)")
        if do_qk:
            B(mfma32(n, kb, Q, NM))
        if T == 52:
            B(vwait('cz'))
            check_or_poll(B, 'POLLZ', WS, FA, 's56', GA + 5)
        if T == 60:
            B(vwait('f2'))
            B("s_movk_i32 s24, 0x1111")
            avail(B)
            B("s_and_b32 s25, s25, s63")
            B("s_cselect_b32 s62, 1, 0")
            B("s_cbranch_scc0 NOE")
            pick(0, B)
            B("NOE:")
        for x in slot_a(T):
            B(x)
        B(mfma32(O, vp, P, O))
        B(mfma32(O, vp + 4, P + 4, O))
        for x in rk:
            B(x)
        if do_qk:
            B(mfma32(n, kb + 4, Q + 4, n))
        for x in rv:
            B(x)
        B(SM)
        for x in slot_e(T):
            B(x)
        if T == 13:
            B(vwait('zt'))
        if T == 15:
            setflag(B, 's57', 12)
            vq.append('fl')
        nb = t % 4 == 1 and T + 1 < 62
        if nb:
            w = vwait(('kv', (T + 3) // 4))
            if grp == 'mid':
                w = "s_waitcnt vmcnt(4)"
            B(f"s_cbranch_vccnz SKB_{grp}_{t}")
            B(w)
            B("s_barrier")
            B(f"SKB_{grp}_{t}:")
        for r in range(8):
            B(E(2 * r)); B(E(2 * r + 1))
            if 1 <= r < 7:
                B(C(r - 1))
            if r == 1:
                B("s_setprio 2")
        B(C(6))
        B(C(7))
        if nb:
            B(f"s_cbranch_vccz SKA_{grp}_{t}")
            B(w)
            B("s_barrier")
            B(f"SKA_{grp}_{t}:")

    for T in range(16):
        tile(A, T, 'first')
    stamp2(A, 3)
    A("P2_LOOP:")
    n0 = len(A.ins)
    for T in range(16, 32):
        tile(A, T, 'mid')
    body = [i.text for i in A.ins[n0:]]
    B2 = Asm()
    for T in range(32, 48):
        tile(B2, T, 'mid')
    assert body == [i.text for i in B2.ins]
    A("s_add_u32 s14, s14, 1")
    A("s_cmp_lt_u32 s14, 2")
    A("s_cbranch_scc1 P2_LOOP")
    for T in range(48, 64):
        tile(A, T, 'last')
    A("s_setprio 0")
    A("s_waitcnt lgkmcnt(0)")
    A(mfma32(O, VF[1], P, O))
    A(mfma32(O, VF[1] + 4, P + 4, O))
    A(SM)
    stamp2(A, 9)
    stamp(A, 8)
    srd(A, 52, P_OUT, 8 * MB)
    A(f"s_mov_b32 s50, {L_THR:#x}")
    A("s_lshr_b32 s5, s3, 2")
    A("s_and_b32 s4, s3, 3")
    A("s_nop 0")
    A(f"v_add_f32 v{L}, v{L}, v{L+1}")
    A(f"v_cmp_nge_f32 vcc, s50, v{L}")
    A(f"v_rcp_f32 v12, v{L}")
    A("s_nop 1")
    A("s_cbranch_vccnz P2_SLOW")
    A("P2_FIN:")
    for r in range(16):
        A(f"v_mul_f32 v{O+r}, v{O+r}, v12")
    for r in range(8):
        A(f"v_cvt_pk_bf16_f32 v{OS+r}, v{O+2*r}, v{O+2*r+1}")
    A(f"buffer_store_dwordx4 {v(OS,4)}, v1, {WS}, s15 offen{SC}")
    A(f"buffer_store_dwordx4 {v(OS+4,4)}, v1, {WS}, s15 offen offset:1024{SC}")

    ACC = 32
    WF = [16, 24]

    def issue3(r):
        pick(r)
        for i in range(8):
            A(oload(r, i))

    A("s_barrier")
    for i in range(4):
        A(f"ds_write_b128 v{GA}, {v(WL+4*i,4)} offset:{8192*i}")
    A("v_lshrrev_b32 v4, 5, v0")
    A("v_bfe_u32 v5, v0, 2, 2")
    A("v_lshl_add_u32 v5, v4, 2, v5")
    A("v_lshlrev_b32 v5, 7, v5")
    A("v_and_b32 v6, 1, v0")
    A("v_lshl_add_u32 v5, v6, 5, v5")
    A("v_bfe_u32 v6, v0, 4, 1")
    A("v_lshl_add_u32 v5, v6, 4, v5")
    A("v_bfe_u32 v6, v0, 1, 1")
    A("v_lshl_add_u32 v5, v6, 3, v5")
    A("v_bfe_u32 v6, v0, 3, 1")
    A("v_xor_b32 v6, s5, v6")
    A("v_lshl_add_u32 v5, v6, 6, v5")
    A("s_lshl_b32 s13, s5, 16")
    A("v_add_u32 v12, s13, v5")
    A("v_xor_b32 v13, 64, v12")
    A("s_lshl_b32 s13, s3, 12")
    A(f"s_add_u32 s13, s13, {RING+32768}")
    A("v_add_u32 v6, s13, v1")
    A("v_xor_b32 v7, 0x4000, v6")
    A("v_bfe_u32 v8, v0, 1, 2")
    A("v_lshlrev_b32 v4, 1, v4")
    A("v_xor_b32 v8, v8, v4")
    A("v_lshlrev_b32 v8, 4, v8")
    A("v_and_b32 v4, 31, v0")
    A("v_lshl_add_u32 v8, v4, 6, v8")
    A("s_xor_b32 s13, s13, 0x4000")
    A("v_add_u32 v8, s13, v8")
    A("v_xor_b32 v9, 16, v8")
    A("v_bfe_u32 v4, v0, 3, 2")
    A("v_and_b32 v5, 3, v0")
    A("v_xor_b32 v4, v4, v5")
    A("v_lshlrev_b32 v4, 4, v4")
    A("v_lshrrev_b32 v5, 2, v0")
    A("v_lshl_add_u32 v5, v5, 12, v4")
    A("s_lshl_b32 s14, s40, 19")
    A("s_lshl_b32 s13, s4, 17")
    A("s_add_u32 s14, s14, s13")
    A("s_lshl_b32 s13, s41, 7")
    A("s_add_u32 s14, s14, s13")
    A("s_lshl_b32 s13, s5, 6")
    A("s_add_u32 s14, s14, s13")
    A("s_add_u32 s14, s14, 2048")
    A("s_add_u32 s15, s14, 65536")
    A("s_movk_i32 s13, 0x1000")
    A("s_mov_b32 s98, 0")

    PD3 = int(os.environ.get('PD3', 2))
    WF = [16, 24, 152]

    def reads3(step):
        b = step % 3
        return [f"ds_read_b64_tr_b16 {v(WF[b]+4*nt+2*j,2)}, v{14+nt} offset:{(16*step+8*j)*128}"
                for nt in range(2) for j in range(2)]

    T = 112
    gat = []
    for i in range(2):
        for dw in range(4):
            for hi in range(2):
                zr = ZR + 2 * dw + hi
                gat.append(f"v_and_b32 v{T+hi}, 0xffff0000, v{zr}" if i else f"v_lshlrev_b32 v{T+hi}, 16, v{zr}")
            gat.append(f"v_lshlrev_b32 v{T+2}, 16, v{QR+4*i+dw}")
            gat.append(f"v_and_b32 v{T+3}, 0xffff0000, v{QR+4*i+dw}")
            gat.append(f"v_mul_f32 v{T}, v{T}, v{T+2}")
            gat.append(f"v_mul_f32 v{T+1}, v{T+1}, v{T+3}")
            gat.append(f"v_cvt_pk_bf16_f32 v{QR+4*i+dw}, v{T}, v{T+1}")

    def consume(c, y):
        stamp3(A, 5 + c)
        A(f"v_add_u32 v14, s{16+c}, v12")
        A(f"v_add_u32 v15, s{16+c}, v13")
        for k in range(PD3):
            for x in reads3(k):
                A(x)
        for step in range(8):
            nxt = reads3(step + PD3) if step + PD3 < 8 else []
            for x in nxt:
                A(x)
            A((f"s_waitcnt vmcnt({y+7-step}) " if y is not None else "s_waitcnt ") +
              f"lgkmcnt({4*min(PD3, 7-step)})")
            for nt in range(2):
                A(mfma32(ACC + 16 * nt, WF[step % 3] + 4 * nt, ofr(8 * c + step),
                         '0' if (c == 0 and step == 0) else ACC + 16 * nt))
                if c == GC:
                    for x in gat[7 * step + 4 * nt:7 * step + 4 + 3 * nt]:
                        A(x)
        if c == GC:
            A(f"buffer_store_dwordx4 {v(QR,4)}, v{GA+3}, s[52:55], 0 offen{OM}")
            A(f"buffer_store_dwordx4 {v(QR+4,4)}, v{GA+3}, s[52:55], s13 offen{OM}")

    A("s_waitcnt vmcnt(2)")
    avail()
    stamp3(A, 2)
    A("s_cmp_eq_u32 s62, 0")
    A("s_cbranch_scc1 P3_W0")
    A("s_cmp_eq_u32 s25, 0")
    A("s_cbranch_scc1 P3_E1")
    issue3(1)
    A("s_mov_b32 s62, 2")
    A("P3_E1:")
    consume(0, None)
    A("s_cmp_eq_u32 s62, 2")
    A("s_cbranch_scc1 P3_E2")
    A("s_waitcnt vmcnt(0)")
    A("P3_E2:")
    A("s_waitcnt vmcnt(8)")
    A("s_barrier")
    setflag(A, 's58', 10)
    stamp(A, 9)
    A("s_cmp_eq_u32 s62, 2")
    A("s_cbranch_scc1 TRY_1_2")
    A("s_branch TRY_1_1")
    A("P3_W0:")
    A("s_waitcnt vmcnt(0) lgkmcnt(0)")
    A("s_barrier")
    setflag(A, 's58', 10)
    stamp(A, 9)

    LK = int(os.environ.get('LK', 2))

    def state(c, n):
        A(f"TRY_{c}_{n}:")
        can = n < 4 and n - c < LK
        if can:
            A("s_cmp_lg_u32 s25, 0")
            A(f"s_cbranch_scc1 ISS_{c}_{n}")
            if c == n:
                A(f"POL_{c}:")
                A(fl)
                A("s_waitcnt vmcnt(0)")
                avail()
                A(f"s_cbranch_scc1 ISS_{c}_{n}")
                A(f"s_sleep {SLP3}")
                A("s_add_u32 s98, s98, 1")
                A("s_cmp_lt_u32 s98, 0x80000")
                A(f"s_cbranch_scc1 POL_{c}")
                A("s_branch P3_RED")
        if c < n:
            y = 8 * (n - 1 - c)
            if n < 4:
                A(fl)
                y += 1
            consume(c, y)
            if n < 4:
                A("s_cmp_lg_u32 s25, 0")
                A(f"s_cbranch_scc1 ISS_{c+1}_{n}")
                A("s_waitcnt vmcnt(0)")
                avail()
            if (c + 1, n) != (4, 4):
                if not (n == 4):
                    A(f"s_branch TRY_{c+1}_{n}")
        if can:
            A(f"ISS_{c}_{n}:")
            issue3(n)
            A(f"s_branch TRY_{c}_{n+1}")

    for n in range(4):
        for c in range(n + 1):
            if n - c <= LK:
                state(c, n)
    for c in range(4):
        if 4 - c <= LK:
            state(c, 4)
    A("P3_RED:")
    stamp3(A, 9)
    A("s_nop 7")
    A("s_nop 3")
    for i in range(4):
        A(f"ds_write_b128 v6, {v(ACC+16+4*i,4)} offset:{1024*i}")
    A("s_waitcnt lgkmcnt(0)")
    A("s_barrier")
    stamp3(A, 10)
    for i in range(4):
        A(f"ds_read_b128 {v(64+4*i,4)}, v7 offset:{1024*i}")
    for i in range(4):
        A(f"s_waitcnt lgkmcnt({3-i})")
        for r in range(4):
            A(f"v_add_f32 v{ACC+4*i+r}, v{ACC+4*i+r}, v{64+4*i+r}")
    for r in range(8):
        A(f"v_cvt_pk_bf16_f32 v{16+r}, v{ACC+2*r}, v{ACC+2*r+1}")
    A("ds_write_b128 v8, v[16:19]")
    A("ds_write_b128 v9, v[20:23]")
    A("ds_read_b128 v[24:27], v7")
    A("ds_read_b128 v[28:31], v7 offset:1024")
    A("s_waitcnt lgkmcnt(1)")
    A(f"buffer_store_dwordx4 v[24:27], v5, s[52:55], s14 offen{OM}")
    A("s_waitcnt lgkmcnt(0)")
    A(f"buffer_store_dwordx4 v[28:31], v5, s[52:55], s15 offen{OM}")
    stamp(A, 11)
    dump_stamps(A, 12, 8)
    A("K_END:")
    A("s_endpgm")

    A("P2_SLOW:")
    A("v_mov_b32 v12, 0xff7fffff")
    A("s_mov_b32 s50, s6")
    A("s_mov_b32 s49, 0")
    A("P2_SLOW1:")
    A(f"buffer_load_dwordx4 {v(KF[0],4)}, v1, {WS}, s50 offen{SC}")
    A(f"buffer_load_dwordx4 {v(KF[0]+4,4)}, v1, {WS}, s50 offen offset:1024{SC}")
    A("s_waitcnt vmcnt(0)")
    A(mfma32(s1, KF[0], Q, '0'))
    A(mfma32(s1, KF[0] + 4, Q + 4, s1))
    A("s_nop 7")
    A("s_nop 3")
    for r in range(0, 16, 2):
        A(f"v_max3_f32 v12, v12, v{s1+r}, v{s1+r+1}")
    A("s_add_u32 s50, s50, 4096")
    A("s_add_u32 s49, s49, 1")
    A("s_cmp_lt_u32 s49, 64")
    A("s_cbranch_scc1 P2_SLOW1")
    A("v_mov_b32 v13, v12")
    A("s_nop 1")
    A("v_permlane32_swap_b32 v12, v13")
    A("v_max_f32 v12, v12, v13")
    for r in range(16):
        A(f"v_xor_b32 v{NM+r}, 0x80000000, v12")
        A(f"v_mov_b32 v{O+r}, 0")
    for r in range(4):
        A(f"v_mov_b32 v{L+r}, 0")
    A("s_mov_b32 s50, s6")
    A("s_mov_b32 s49, 0")
    A("P2_SLOW2:")
    A(f"buffer_load_dwordx4 {v(KF[0],4)}, v1, {WS}, s50 offen{SC}")
    A(f"buffer_load_dwordx4 {v(KF[0]+4,4)}, v1, {WS}, s50 offen offset:1024{SC}")
    A(f"buffer_load_dwordx4 {v(VF[0],4)}, v1, {WS}, s50 offen offset:2048{SC}")
    A(f"buffer_load_dwordx4 {v(VF[0]+4,4)}, v1, {WS}, s50 offen offset:3072{SC}")
    A("s_waitcnt vmcnt(0)")
    A(mfma32(s1, KF[0], Q, NM))
    A(mfma32(s1, KF[0] + 4, Q + 4, s1))
    A("s_nop 7")
    A("s_nop 3")
    for r in range(16):
        A(f"v_exp_f32 v{s1+r}, v{s1+r}")
    A("s_nop 0")
    for r in range(8):
        A(f"v_cvt_pk_bf16_f32 v{P+r}, v{s1+2*r}, v{s1+2*r+1}")
    A("s_nop 1")
    A(mfma32(O, VF[0], P, O))
    A(mfma32(O, VF[0] + 4, P + 4, O))
    A(SM)
    A("s_add_u32 s50, s50, 4096")
    A("s_add_u32 s49, s49, 1")
    A("s_cmp_lt_u32 s49, 64")
    A("s_cbranch_scc1 P2_SLOW2")
    A("s_nop 7")
    A("s_nop 3")
    A(f"v_add_f32 v{L}, v{L}, v{L+1}")
    A(f"v_rcp_f32 v12, v{L}")
    A("s_nop 0")
    A("s_branch P2_FIN")
    A("K_LAST:")
    return kd(NAME, 256, 102)


def build(path):
    hdr = open('concat_heads__ssm_conv_h3__mha_block__prompt.s.ref').read().split('\n')
    hdr = [l for l in hdr if l.startswith(';') and '@launch' not in l]
    A = Asm()
    k = gen(A)
    A.check()
    out = '\n'.join(hdr) + '\n' + f"; @launch grid=(256,1,1) block=(512,1,1) lds={LDS}\n"
    out += '.amdgcn_target "amdgcn-amd-amdhsa--gfx950"\n.text\n' + A.text()
    out += '.section .rodata,"a"\n' + k
    import subprocess
    open(path, 'w').write(out.replace('CODE_CHUNKS', '0'))
    subprocess.run(['clang', '-x', 'assembler', '-target', 'amdgcn-amd-amdhsa', '-mcpu=gfx950', '-c',
                    path, '-o', '_sz.o'], check=True)
    sz = int([l for l in subprocess.run(['llvm-objdump', '-h', '_sz.o'], capture_output=True,
                                        text=True).stdout.split('\n') if '.text' in l][0].split()[2], 16)
    pad = (-(sz - 256)) % 8192
    chunks = (sz - 256 + pad) // 8192
    out = out.replace('CODE_CHUNKS', str(chunks - 1))
    out = out.replace('K_LAST:\n', f'K_LAST:\n.fill {pad//4+64}, 4, 0xbf810000\n')
    open(path, 'w').write(out)
    print('code bytes', sz, 'chunks', chunks)
    ok = {x: True for x in ('POLLU_OK', 'POLL1_OK', 'POLLZ_OK', 'INITP_OK')}
    loop = {'P2_LOOP': lambda c: c < 1, 'P1_LOOP': lambda c: c < 2, 'CONV_LOOP': lambda c: c < 3}
    skb = {f'SKB_{g}_{t}': True for g in ('first', 'mid', 'last') for t in range(16)}
    ska = {f'SKA_{g}_{t}': True for g in ('first', 'mid', 'last') for t in range(16)}
    iss_all = {f'ISS_{c}_{n}': True for c in range(4) for n in range(4)}
    iss_late = {f'ISS_{c}_{c}': True for c in range(4)}
    e2 = {'P3_E2': True, 'TRY_1_2': True}
    A.check_trace(NAME, {**ok, **loop, **skb, **iss_all, **e2}, 'compute init, all ready')
    A.check_trace(NAME, {**ok, **loop, **skb, **iss_late, 'NOINIT': True, 'P1_COMPUTE': True, 'NOPOLL1': True,
                         'NOE': True, 'P3_W0': True}, 'compute one by one')
    A.check_trace(NAME, {**ok, **loop, **ska, 'P1_LOADER': True, 'NOUT': True, 'NOSIGU': True, 'NOE': True, 'P3_W0': True,
                         'ISS_0_0': True, 'ISS_0_1': True, 'ISS_2_2': True, 'ISS_2_3': True}, 'loader late, 2+2')
    A.check_trace(NAME, {**ok, **loop, **ska, 'P1_LOADER': True, 'U_EARLY': True, 'P3_E1': True, 'ISS_1_1': True,
                         'ISS_1_2': True, 'ISS_3_3': True}, 'loader early')
    A.check_trace(NAME, {**ok, **loop, **ska, **iss_all, **e2, 'P1_LOADER': True, 'P2_SLOW': True,
                         'P2_SLOW1': lambda c: c < 2, 'P2_SLOW2': lambda c: c < 2}, 'slow')
    return A


if __name__ == '__main__':
    build(sys.argv[1] if len(sys.argv) > 1 else 'f.s')
```

```python
import sys, struct, math, os
sys.path.insert(0, 'dev')
from asmlib import *

OPT = set(os.environ.get('OPT', '').split(',')) | {'hall', 'norot3'}
PROF = 'prof' in OPT
NAME = 'concat_heads__ssm_conv_h3__mha_block__prompt_kernel'
LA = int(os.environ.get('LA', 2))
SLP = int(os.environ.get('SLP', 2))
SLP3 = int(os.environ.get('SLP3', 3))

MB = 1 << 20
WS_QF = 0
WS_KV = 4 * MB
WS_OF = 12 * MB
WS_UT = 16 * MB
WS_ZT = 20 * MB
WS_SYNC = 24 * MB
F1 = WS_SYNC
FU = WS_SYNC + 32768
FZ = WS_SYNC + 65536
F2 = WS_SYNC + 98304
CNT_LDS = 4 * (4 * 4160 + 64) + 4 * 4608
WS_SIZE = 24 * MB + 131072
WS_PROF = 32 * MB

P_Q, P_K, P_V, P_SH, P_SSMK, P_D, P_X, P_W, P_WO, P_OUT, P_DBG, P_WS = [16 + 2 * i for i in range(12)]
SRD_WS = 8
WS = f"s[{SRD_WS}:{SRD_WS+3}]"


def f32bits(x):
    return struct.unpack('<I', struct.pack('<f', x))[0]


QSCALE = f32bits(math.log2(math.e) / math.sqrt(32.0))
L_THR = f32bits(2.0 ** 60)

SLOT = 40960
LDS = 163840
HCS = 4160
HC_STRIDE = 4 * HCS + 64
U_BASE = 4 * HC_STRIDE
U_SZ = 4608
RING = 98304
SC = ' sc1'
NT = ' nt' if 'nont' not in OPT else ''
NTX = ' nt' if 'ntx' in OPT else ''
NTW = ' nt' if 'ntw' in OPT else ''
NTU = ' nt' if 'ntu' in OPT else ''
NTS = ' nt' if 'nts' in OPT else ''
NTO = ' nt' if 'nto' in OPT else ''
OM = ' ' + os.environ.get('OM', 'sc1')
GC = int(os.environ.get('GC', 3))
MT = 's_memrealtime' if 'rt' in OPT else 's_memtime'
MK = "s[100:101]"


def srd(A, d, p, size):
    A(f"s_mov_b32 s{d}, s{p}")
    A(f"s_and_b32 s{d+1}, s{p+1}, 0xffff")
    A(f"s_mov_b32 s{d+2}, {size}")
    A(f"s_mov_b32 s{d+3}, 0x00020000")


def mfma32(d, a, b, c):
    cs = c if isinstance(c, str) else v(c, 16)
    return f"v_mfma_f32_32x32x16_bf16 {v(d,16)}, {v(a,4)}, {v(b,4)}, {cs}"


def mfma16(d, a, b, c):
    cs = c if isinstance(c, str) else v(c, 4)
    return f"v_mfma_f32_16x16x32_bf16 {v(d,4)}, {v(a,4)}, {v(b,4)}, {cs}"


def stamp1(A, idx):
    if PROF and 'p1' in OPT:
        A(f"{MT} s[{70+2*idx}:{71+2*idx}]")


def stamp2(A, idx):
    if PROF and 'p2' in OPT:
        A(f"s_memrealtime s[{70+2*idx}:{71+2*idx}]")
        A(f"s_memtime s[{72+2*idx}:{73+2*idx}]")


def stamp3(A, idx):
    if PROF and 'p3' in OPT:
        A(f"s_memrealtime s[{70+2*idx}:{71+2*idx}]")
        A("s_waitcnt lgkmcnt(0)")


def stamp(A, idx):
    if PROF and ('p1' in OPT or 'p2' in OPT) and idx != 0:
        return
    if PROF and 'p3' in OPT:
        idx = {0: 0, 8: 1, 9: 3, 10: 4, 11: 11}.get(idx)
        if idx is None:
            return
    if PROF:
        A(f"{MT} s[{70+2*idx}:{71+2*idx}]")
        if idx == 0:
            A("s_memrealtime s[68:69]")
        else:
            A("s_waitcnt lgkmcnt(0)")


def dump_stamps(A, n, vt=2):
    if not PROF:
        return
    if 'dbg' in OPT:
        srd(A, 64, P_DBG, 256)
        A("s_cmp_ge_u32 s3, 4")
        A("s_cbranch_scc1 K_END")
        A("s_mov_b64 exec, 1")
        A("s_not_b32 s60, s70")
        A(f"v_mov_b32 v{vt}, s60")
        A(f"buffer_atomic_umax v{vt}, v2, s[64:67], 0 offen offset:4")
        for i in range(n):
            if i in (10,):
                continue
            A(f"v_mov_b32 v{vt+1+i}, s{70+2*i}")
            A(f"buffer_atomic_umax v{vt+1+i}, v2, s[64:67], 0 offen offset:{8+4*i}")
        return
    A("s_memrealtime s[62:63]")
    A("s_waitcnt lgkmcnt(0)")
    A(f"s_add_u32 s64, s{P_WS}, {WS_PROF}")
    A(f"s_addc_u32 s65, s{P_WS+1}, 0")
    A("s_and_b32 s65, s65, 0xffff")
    A(f"s_mov_b32 s66, {MB}")
    A("s_mov_b32 s67, 0x00020000")
    A("s_lshl_b32 s60, s2, 10")
    A("s_lshl_b32 s61, s3, 6")
    A("s_add_u32 s60, s60, s61")
    A(f"v_mov_b32 v{vt+1}, 0")
    for i in range(n):
        A(f"v_mov_b32 v{vt}, s{70+2*i}")
        A(f"buffer_store_dword v{vt}, v{vt+1}, s[64:67], s60 offen offset:{4*i}")
    A(f"v_mov_b32 v{vt}, s68")
    A(f"buffer_store_dword v{vt}, v{vt+1}, s[64:67], s60 offen offset:56")
    A(f"v_mov_b32 v{vt}, s62")
    A(f"buffer_store_dword v{vt}, v{vt+1}, s[64:67], s60 offen offset:60")
    A("s_waitcnt vmcnt(0)")


FA = 254


def all_set(A, vt, val=1):
    A(f"v_cmp_eq_u32 {MK}, 1, v{vt}" if val == 1 else f"v_cmp_le_u32 {MK}, {val}, v{vt}")
    A(f"s_cmp_eq_u64 {MK}, -1")


def poll(A, name, srds, va, soff, vt, val=1):
    A("s_mov_b32 s98, 0")
    A(f"{name}:")
    A(f"buffer_load_dword v{vt}, v{va}, {srds}, {soff} offen sc1")
    A("s_waitcnt vmcnt(0)")
    all_set(A, vt, val)
    A(f"s_cbranch_scc1 {name}_OK")
    A(f"s_sleep {SLP}")
    A("s_add_u32 s98, s98, 1")
    A("s_cmp_lt_u32 s98, 0x80000")
    A(f"s_cbranch_scc1 {name}")
    A(f"{name}_OK:")


def check_or_poll(A, name, srds, va, soff, vt, val=1):
    all_set(A, vt, val)
    A(f"s_cbranch_scc1 {name}_OK")
    poll(A, name, srds, va, soff, vt, val)


def setflag(A, soff, vt, srds=WS):
    A("s_mov_b64 exec, 1")
    A(f"v_mov_b32 v{vt}, 1")
    A(f"buffer_store_dword v{vt}, v2, {srds}, {soff} offen sc1")
    A("s_mov_b64 exec, -1")


def gen(A):
    Q, NM, S, P, O, L, KF, VF, ON = 4, 16, [32, 48], 64, 72, 88, [92, 100], [108, 116], 124
    RB, WOA, IDX = 128, 129, 15
    GA = 130
    ZR, QR, WL, OS = 136, 144, 152, 168
    SM = f"v_smfmac_f32_16x16x64_bf16 {v(L,4)}, {v(ON,4)}, {v(P,8)}, v{IDX}"

    def att_ids():
        A("s_and_b32 s4, s2, 6")
        A("s_lshl_b32 s4, s4, 2")
        A("s_lshr_b32 s5, s2, 6")
        A("s_lshl_b32 s5, s5, 1")
        A("s_or_b32 s4, s4, s5")
        A("s_bfe_u32 s5, s2, 0x10003")
        A("s_or_b32 s4, s4, s5")
        A("s_and_b32 s5, s2, 1")
        A("s_lshl_b32 s5, s5, 2")
        A("s_bfe_u32 s6, s2, 0x20004")
        A("s_or_b32 s5, s5, s6")

    def p2_setup():
        att_ids()
        A("s_lshl_b32 s6, s4, 18")
        A(f"s_add_u32 s6, s6, {WS_KV}")
        A("s_lshl_b32 s13, s3, 11")
        A("s_add_u32 s12, s6, s13")
        A("s_add_u32 s12, s12, 32768")
        A(f"s_add_u32 s13, s13, {RING}")
        A("s_lshl_b32 s14, s5, 3")
        A("s_add_u32 s14, s14, s3")
        A("s_lshl_b32 s15, s14, 5")
        A("s_add_u32 s15, s15, s4")
        A("s_lshl_b32 s58, s5, 5")
        A("s_add_u32 s58, s58, s4")
        A("s_lshl_b32 s58, s58, 7")
        A(f"s_add_u32 s58, s58, {F2}")
        A("s_lshl_b32 s57, s2, 7")
        A(f"s_add_u32 s57, s57, {FZ}")
        A("s_cmp_eq_u32 s3, 4")
        A("s_cselect_b32 s57, s57, 0x7fff0000")
        A("s_cselect_b32 s58, s58, 0x7fff0000")
        A("s_lshl_b32 s15, s15, 11")
        A(f"s_add_u32 s15, s15, {WS_OF}")
        A(f"v_add_u32 v{RB}, {RING}, v1")
        A(f"v_add_u32 v3, s13, v1")
        A("s_bfe_u32 s40, s2, 0x20001")
        A("s_lshl_b32 s40, s40, 2")
        A("s_bfe_u32 s41, s2, 0x20003")
        A("s_or_b32 s40, s40, s41")
        A("s_and_b32 s41, s2, 1")
        A("s_lshl_b32 s41, s41, 3")
        A("s_lshr_b32 s42, s2, 5")
        A("s_or_b32 s41, s41, s42")
        srd(A, 44, P_WO, 2 * MB)
        srd(A, 52, P_Q, 4 * MB)
        A("v_lshrrev_b32 v5, 3, v0")
        A("v_and_b32 v6, 7, v0")
        A("v_bfe_u32 v7, v0, 4, 1")
        A("v_lshlrev_b32 v7, 2, v7")
        A("v_xor_b32 v7, v7, v6")
        A("v_lshlrev_b32 v7, 4, v7")
        A(f"v_lshl_add_u32 v{WOA}, v5, 11, v7")
        A("s_lshl_b32 s48, s3, 14")
        A("s_lshl_b32 s49, s41, 7")
        A("s_add_u32 s48, s48, s49")
        A("s_lshl_b32 s49, s3, 10")
        A("s_mov_b32 s43, s49")
        A("s_and_b32 s59, s3, 3")
        A("s_lshl_b32 s50, s40, 2")
        A("s_add_u32 s59, s59, s50")
        A("s_lshl_b32 s59, s59, 1")
        A("s_lshr_b32 s50, s3, 2")
        A("s_add_u32 s59, s59, s50")
        A("s_lshl_b32 s60, s59, 15")
        A(f"s_add_u32 s60, s60, {WS_OF}")
        A("s_lshr_b32 s59, s40, 1")
        A("s_lshl_b32 s59, s59, 1")
        A("s_add_u32 s59, s59, s50")
        A("s_lshl_b32 s59, s59, 11")
        A(f"s_add_u32 s59, s59, {F2}")
        A("s_lshr_b32 s50, s2, 4")
        A("s_lshl_b32 s50, s50, 7")
        A("s_lshl_b32 s51, s3, 4")
        A("s_add_u32 s50, s50, s51")
        A("s_and_b32 s51, s2, 15")
        A("s_lshl_b32 s56, s51, 11")
        A(f"s_add_u32 s56, s56, {FZ}")
        A("s_lshl_b32 s51, s51, 6")
        A(f"v_lshl_add_u32 v5, v5, 1, s50")
        A(f"v_lshl_add_u32 v6, v6, 3, s51")
        A(f"v_lshlrev_b32 v{GA+2}, 1, v5")
        A(f"v_lshl_add_u32 v{GA+2}, v6, 12, v{GA+2}")
        A(f"v_lshlrev_b32 v{GA+3}, 1, v6")
        A(f"v_lshl_add_u32 v{GA+4}, v5, 11, v{GA+3}")
        A(f"v_lshl_add_u32 v{GA+3}, v5, 12, v{GA+3}")
        A("s_and_b32 s61, s41, 3" if 'norot3' not in OPT else "s_mov_b32 s61, 0")
        A("s_lshl_b32 s61, s61, 2")
        A(f"v_add_u32 v{GA+1}, s61, v0")
        A(f"v_and_b32 v{GA+1}, 15, v{GA+1}")
        A(f"v_lshlrev_b32 v{GA+1}, 7, v{GA+1}")
        A(f"v_add_u32 v{GA}, s43, v{RB}")
        A("s_lshr_b32 s63, 0x00110011, s61")
        A("s_and_b32 s63, s63, 0x1111")
        A("s_cmp_lt_u32 s3, 4")
        A("s_cselect_b32 s63, 0x1111, s63")
        A("s_mov_b32 s27, 0x7fff0000")
        A("s_mov_b32 s28, 0x7fff0000")
        A("v_bfe_u32 v5, v0, 2, 1")
        A("v_cmp_eq_u32 vcc, 0, v5")
        A("v_mov_b32 v6, 0x3f803f80")
        A("v_and_b32 v5, 1, v0")
        A(f"v_cndmask_b32 v{ON}, 0, v6, vcc")
        A(f"v_xor_b32 v{ON+2}, v6, v{ON}")
        A(f"v_mov_b32 v{ON+1}, v{ON}")
        A(f"v_mov_b32 v{ON+3}, v{ON+2}")
        A(f"v_mul_u32_u24 v{IDX}, 0xaaaa, v5")
        A(f"v_add_u32 v{IDX}, 0x4444, v{IDX}")
        for r in range(4):
            A(f"v_mov_b32 v{L+r}, 0")


    A(f".globl {NAME}")
    A(".p2align 8")
    A(f".type {NAME},@function")
    A(f"{NAME}:")
    A("s_cmp_ge_u32 s2, 256")
    A("s_cbranch_scc1 K_END")
    A("s_load_dwordx16 s[16:31], s[0:1], 0")
    A("s_load_dwordx8 s[32:39], s[0:1], 64")
    A("v_lshrrev_b32 v1, 6, v0")
    A("v_and_b32 v0, 63, v0")
    A("v_readfirstlane_b32 s3, v1")
    stamp(A, 0)
    A("s_and_b32 s4, s2, 1")
    A("s_lshl_b32 s4, s4, 3")
    A("s_bfe_u32 s5, s2, 0x30003")
    A("s_or_b32 s4, s4, s5")
    A("s_bfe_u32 s5, s2, 0x20001")
    A("s_lshl_b32 s5, s5, 2")
    A("s_lshr_b32 s6, s2, 6")
    A("s_or_b32 s5, s5, s6")
    A("v_lshlrev_b32 v1, 4, v0")
    A("v_mov_b32 v2, 0")
    A(f"v_and_b32 v{FA}, 15, v0")
    A(f"v_lshlrev_b32 v{FA}, 7, v{FA}")
    A("s_cmp_lt_u32 s3, 4")
    A("s_cbranch_scc0 P1_LOADER")
    if 'nocp' not in OPT:
        A("s_and_b32 s6, s2, 0x30")
        A("s_cbranch_scc1 P1_COMPUTE")
        A("s_getpc_b64 s[40:41]")
        A("s_bfe_u32 s6, s2, 0x10003")
        A("s_lshl_b32 s6, s6, 2")
        A("s_add_u32 s6, s6, s3")
        A("s_min_u32 s6, s6, CODE_CHUNKS")
        A("s_lshl_b32 s6, s6, 13")
        A("v_lshl_add_u32 v3, v0, 7, s6")
        A("global_load_dword v255, v3, s[40:41]")
    A("s_branch P1_COMPUTE")

    A("P1_LOADER:")
    A("s_sub_u32 s6, s3, 4")
    A("v_lshrrev_b32 v3, 3, v0")
    A("v_and_b32 v4, 7, v0")
    A("v_lshrrev_b32 v11, 4, v0")
    A("v_xor_b32 v5, v4, v11")
    A("v_lshlrev_b32 v5, 4, v5")
    A("v_lshl_add_u32 v5, v3, 11, v5")
    A("v_xor_b32 v6, 64, v5")
    A(f"v_add_u32 v6, {15360}, v6")
    A(f"v_add_u32 v7, {2*15360}, v5")
    A(f"v_add_u32 v8, {2*15360}, v6")
    A("v_and_b32 v9, 1, v11")
    A("v_lshlrev_b32 v9, 2, v9")
    A("v_xor_b32 v9, v9, v4")
    A("v_lshlrev_b32 v9, 4, v9")
    A("v_mul_u32_u24 v10, 6144, v3")
    A("v_add_u32 v9, v9, v10")
    A(f"v_add_u32 v10, {49152-1024}, v9")
    A("s_lshl_b32 s12, s4, 18")
    A("s_lshl_b32 s13, s6, 16")
    A("s_add_u32 s96, s12, s13")
    A(f"s_mul_i32 s13, s6, {16*6144}")
    A("s_lshl_b32 s14, s5, 7")
    A("s_add_u32 s97, s13, s14")
    A("s_add_u32 s95, s4, s5")
    A("s_add_u32 s94, s95, s5")
    A("s_and_b32 s94, s94, 7")
    A(f"s_and_b32 s95, s95, {os.environ.get('XM', 3)}")
    A("s_mul_i32 s15, s6, 10240")
    A("s_waitcnt lgkmcnt(0)")
    srd(A, 40, P_X, 4 * MB)
    srd(A, 44, P_W, 6 * MB)

    vm = []
    fill = []

    def F(n):
        for _ in range(n):
            if fill:
                A(fill.pop(0))

    def issue_stage(st, nf=0):
        slot = st % 4
        G8 = [int(x) for x in os.environ.get('G8', '').split(',') if x]
        A(f"s_xor_b32 s14, s{94 if st // 8 in G8 else 95}, {st}")
        A("s_lshl_b32 s12, s14, 7")
        A(f"s_add_u32 m0, s15, {slot*SLOT}")
        A("s_add_u32 s12, s12, s96")
        for j in range(4):
            A(f"buffer_load_dwordx4 v{5+j}, s[40:43], s12 offen offset:{j*1024}{NTX} lds")
            F(nf)
        A(f"s_mul_i32 s14, s14, {64*6144}")
        A(f"s_add_u32 m0, s15, {slot*SLOT+4096}")
        A("s_add_u32 s13, s14, s97")
        for t in range(4):
            A(f"buffer_load_dwordx4 v{9+(t&1)}, s[44:47], s13 offen offset:{t*1024}{NTW} lds")
            F(nf)
        A(f"s_add_u32 m0, s15, {slot*SLOT+8192}")
        A("s_add_u32 s13, s13, 4096")
        for t in range(2):
            A(f"buffer_load_dwordx4 v{9+t}, s[44:47], s13 offen offset:{t*1024}{NTW} lds")
            F(nf)
        vm.extend([('st', st)] * 10)

    def wait_tag(tag):
        last = max(i for i, t in enumerate(vm) if t == tag)
        A(f"s_waitcnt vmcnt({len(vm) - 1 - last})")
        del vm[:last + 1]

    issue_stage(0)
    issue_stage(1)

    KR, VR, WR, T, OUT = 20, 42, 60, 68, 104
    srd(A, 48, P_K, 4 * MB)
    srd(A, 52, P_V, 4 * MB)
    srd(A, 60, P_SH, 8192)
    A("s_lshr_b32 s7, s2, 4")
    A("s_lshl_b32 s7, s7, 7")
    A("s_lshl_b32 s64, s6, 5")
    A("s_add_u32 s7, s7, s64")
    A("s_and_b32 s64, s2, 15")
    A("s_lshl_b32 s64, s64, 6")
    A("v_lshl_add_u32 v11, v11, 3, s7")
    A("v_and_b32 v12, 15, v0")
    A("v_lshl_add_u32 v12, v12, 2, s64")
    A("v_lshlrev_b32 v13, 1, v12")
    A("v_lshl_add_u32 v15, v11, 11, v13")
    A("v_subrev_u32 v13, 6144, v15")
    A("v_subrev_u32 v14, 2048, v15")
    A("v_lshlrev_b32 v17, 3, v12")
    A("s_movk_i32 s64, 0x1000")
    A("s_movk_i32 s65, 0x2000")
    A("s_movk_i32 s66, 0x3000")
    so4 = ['0', 's64', 's65', 's66']
    rows = [(13, '0', 0), (13, '0', 2048), (14, '0', 0)] + [(15, so4[i // 2], 2048 * (i & 1)) for i in range(8)]

    def prep_loads():
        for i in range(2):
            A(f"buffer_load_dwordx4 {v(WR+4*i,4)}, v17, s[60:63], 0 offen offset:{16*i}")
        for i, (a, so, o) in enumerate(rows):
            A(f"buffer_load_dwordx2 {v(KR+2*i,2)}, v{a}, s[48:51], {so} offen offset:{o}{NT}")
        for i, (a, so, o) in enumerate(rows[3:]):
            A(f"buffer_load_dwordx2 {v(VR+2*i,2)}, v{a}, s[52:55], {so} offen offset:{o}{NT}")
        vm.extend(['prep'] * 21)
    ST_PL = int(os.environ.get('ST_PL', -1))
    if ST_PL < 0:
        prep_loads()
    A("v_sub_u32 v18, 2040, v11")
    A("v_lshlrev_b32 v18, 1, v18")
    A("v_lshl_add_u32 v18, v12, 12, v18")
    A(f"v_add_u32 v18, {WS_UT}, v18")
    srd(A, SRD_WS, P_WS, WS_SIZE)
    srd(A, 56, P_DBG, 256)

    prep = []
    for j in range(4):
        dw, hi = j // 2, j & 1

        def unp(dst, src):
            return f"v_and_b32 v{dst}, 0xffff0000, v{src}" if hi else f"v_lshlrev_b32 v{dst}, 16, v{src}"
        for i in range(11):
            prep.append(unp(T + i, KR + 2 * i + dw))
        prep.append(f"v_lshlrev_b32 v{T+11}, 16, v{WR+2*j}")
        prep.append(f"v_and_b32 v{T+12}, 0xffff0000, v{WR+2*j}")
        prep.append(f"v_lshlrev_b32 v{T+13}, 16, v{WR+2*j+1}")
        prep.append(f"v_and_b32 v{T+14}, 0xffff0000, v{WR+2*j+1}")
        for i in range(8):
            prep.append(f"v_mul_f32 v{T+15+i}, v{T+i}, v{T+14}")
        for t in (2, 1, 0):
            for i in range(8):
                prep.append(f"v_fmac_f32 v{T+15+i}, v{T+3+i-t}, v{T+11+t}")
        for i in range(8):
            prep.append(unp(T + i, VR + 2 * i + dw))
        for i in range(8):
            prep.append(f"v_mul_f32 v{T+15+i}, v{T+15+i}, v{T+i}")
        for i in range(4):
            prep.append(f"v_cvt_pk_bf16_f32 v{OUT+4*j+i}, v{T+15+7-2*i}, v{T+15+6-2*i}")

    def h_loads():
        A("s_lshl_b32 s7, s2, 2")
        A("s_add_u32 s7, s7, s6")
        A("s_lshl_b32 s64, s7, 12")
        A(f"s_mul_i32 s65, s6, {HCS}")
        A(f"s_mul_i32 s66, s6, {U_SZ}")
        A(f"s_add_u32 s66, s66, {U_BASE}")
        srd(A, 48, P_SSMK, 4 * MB)
        srd(A, 52, P_D, 2048)
        A("v_add_u32 v205, s65, v1")

    def h_loads2():
        A("s_lshr_b32 s7, s64, 12")
        HN = NT if ('hnt' in OPT or 'hall' in OPT) else ''
        for j in range(4):
            A(f"buffer_load_dwordx4 {v(HD+8*j,4)}, v1, s[48:51], s64 offen offset:{1024*j}{HN}")
        for j in range(4):
            A(f"buffer_load_dwordx2 {v(HD+8*j+4,2)}, v1, s[48:51], s64 offen offset:{1024*j+16}{HN}")
        A("buffer_load_dwordx2 v[200:201], v2, s[48:51], s64 offen")
        A("s_lshl_b32 s7, s7, 1")
        A("buffer_load_ushort v202, v2, s[52:55], s7 offen")
        vm.extend(['h'] * 10)

    HD = 120

    def h_write(c):
        if 'hall' in OPT and not c & 1:
            for j in range(4):
                if c == 4:
                    src = HD + 8 * j + 2
                else:
                    src = 208 + 4 * (j & 1)
                    for i in range(4):
                        A(f"v_mov_b32 v{src+i}, v{HD+8*j+1+i}")
                A(f"ds_write_b128 v205, {v(src,4)} offset:{(c-1)*HC_STRIDE+32+1024*j}")
            return
        if c & 1:
            for j in range(4):
                d = HD + 8 * j + (c >> 1)
                o = 208 + 4 * (j & 1)
                for i in range(4):
                    A(f"v_alignbit_b32 v{o+i}, v{d+i+1}, v{d+i}, 16")
                A(f"ds_write_b128 v205, {v(o,4)} offset:{(c-1)*HC_STRIDE+32+1024*j}")
            return
        A(f"s_add_u32 s7, s64, {2*c}")
        A(f"s_add_u32 m0, s65, {(c-1)*HC_STRIDE+32}")
        A("s_nop 0")
        for j in range(4):
            A(f"buffer_load_dwordx4 v1, s[48:51], s7 offen offset:{j*1024} lds")
        vm.extend(['cv'] * 4)

    FR, UR, YR = [16, 92], [48, 136], 168
    csetup = [
        "v_lshrrev_b32 v221, 1, v0",
        f"v_mul_u32_u24 v221, {HC_STRIDE}, v221",
        "v_and_b32 v222, 1, v0",
        "v_lshl_add_u32 v221, v222, 4, v221",
        "v_add_u32 v221, s65, v221",
        "v_subrev_u32 v222, 8, v0",
        "v_min_u32 v222, 31, v222",
        "v_lshlrev_b32 v222, 4, v222",
        "v_add_u32 v222, 4096, v222",
        "v_add_u32 v222, s66, v222",
        "v_cmp_gt_u32 vcc, 8, v0"] + [f"v_mov_b32 v{YR+r}, 0" for r in range(32)] + [
        "v_cndmask_b32 v221, v222, v221, vcc",
        "v_and_b32 v222, 3, v0",
        f"v_mul_u32_u24 v223, {HC_STRIDE}, v222",
        "v_lshlrev_b32 v222, 1, v222",
        "v_sub_u32 v222, v223, v222",
        "v_add_u32 v222, 30, v222",
        "v_add_u32 v222, s65, v222",
        "v_lshrrev_b32 v224, 4, v0",
        "v_lshl_add_u32 v223, v224, 4, v223",
        "v_bfe_u32 v225, v0, 2, 2",
        "v_lshl_add_u32 v223, v225, 3, v223",
        "v_add_u32 v223, s65, v223",
        "v_and_b32 v225, 15, v0",
        "v_lshlrev_b32 v226, 5, v225",
        "v_lshlrev_b32 v227, 4, v224",
        "v_sub_u32 v227, v227, v226",
        "v_lshl_add_u32 v226, v224, 3, v226",
        "v_add_u32 v227, 480, v227",
        "v_add_u32 v224, s66, v227",
        f"v_sub_u32 v225, {4088-3584}, v226",
        "v_add_u32 v225, s66, v225",
        f"v_mov_b32 v227, {CNT_LDS}",
    ]
    ST_H = int(os.environ.get('ST_H', 2))
    ST_PC = ST_PL + LA + 1
    NF = int(os.environ.get('NF', 9))
    ST_UT = ST_PC + (268 + 10 * NF - 1) // (10 * NF) - 1
    ST_SIG = ST_UT + LA + 1
    ST_CU = int(os.environ.get('ST_CU', 10))
    ST_UCHK = int(os.environ.get('ST_UCHK', 13))
    assert ST_UCHK >= ST_CU + LA + 1
    assert ST_H >= ST_PL and ST_SIG < ST_CU and ST_CU + LA + 1 <= 15
    for st in range(16):
        wait_tag(('st', st))
        A("s_barrier")
        if st == ST_PC:
            assert 'prep' not in vm
            fill.extend(prep)
        if st == 0:
            for k in range(2, LA + 1):
                issue_stage(k)
        elif st + LA < 16:
            issue_stage(st + LA, NF)
        if st == ST_PL:
            prep_loads()
        if st == max(ST_PL, 0):
            h_loads()
        if st == ST_H:
            h_loads2()
        if st == ST_UT:
            A("buffer_load_dword v19, v2, s[56:59], 0 offen sc1")
            vm.append('if')
            F(len(fill))
            A("s_movk_i32 s7, 0x1000")
            A("s_movk_i32 s12, 0x2000")
            A("s_movk_i32 s13, 0x3000")
            for j, so in enumerate(['0', 's7', 's12', 's13']):
                A(f"buffer_store_dwordx4 {v(OUT+4*j,4)}, v18, {WS}, {so} offen{SC}{NTU}")
                vm.append('ut')
        if st == ST_SIG:
            assert 'ut' not in vm and 'if' not in vm
            check_or_poll(A, 'INITP', 's[56:59]', 2, '0', 19, 16)
            A("s_cmp_lg_u32 s6, 0")
            A("s_cbranch_scc1 NOSIGU")
            A("s_and_b32 s7, s2, 15")
            A("s_lshl_b32 s7, s7, 4")
            A("s_lshr_b32 s12, s2, 4")
            A("s_add_u32 s7, s7, s12")
            A("s_lshl_b32 s7, s7, 7")
            A(f"s_add_u32 s7, s7, {FU}")
            setflag(A, 's7', 11)
            A("NOSIGU:")
        if st == ST_CU:
            A("s_lshr_b32 s7, s2, 4")
            A("s_lshl_b32 s7, s7, 11")
            A(f"s_add_u32 s67, s7, {FU}")
            A(f"buffer_load_dword v19, v{FA}, {WS}, s67 offen sc1")
            vm.append('cu')
        if st == ST_UCHK:
            assert 'cu' not in vm
            all_set(A, 19)
            A("s_cbranch_scc0 NOUT")
            A(f"s_add_u32 s12, s64, {WS_UT}")
            A("v_min_u32 v203, 31, v0")
            A("v_lshlrev_b32 v203, 7, v203")
            A(f"buffer_load_dword v204, v203, {WS}, s12 offen sc1{NTU}")
            A("NOUT:")
        if st == ST_UT + 1:
            fill.extend(csetup)
        if st == 14:
            A(f"buffer_load_dword v19, v{FA}, {WS}, s67 offen sc1")
            vm.append('cu2')
            F(len(fill))
            if 'h' not in vm:
                for c in (2, 4, 1, 3):
                    h_write(c)
                hdone = True
            else:
                hdone = False
    A(f"ds_write_b128 v221, {v(YR,4)}")
    A("ds_write_b32 v227, v2")
    A(f"s_add_u32 s12, s64, {WS_UT}")
    A("s_mov_b32 m0, s66")
    wait_tag('cu2')
    all_set(A, 19)
    A("s_cbranch_scc1 U_EARLY")
    A("s_waitcnt lgkmcnt(0)")
    A("s_barrier")
    poll(A, 'POLLU', WS, FA, 's67', 19)
    for j in range(4):
        A(f"buffer_load_dwordx4 v1, {WS}, s12 offen offset:{j*1024}{SC} lds")
    A("s_branch U_JOIN")
    A("U_EARLY:")
    for j in range(4):
        A(f"buffer_load_dwordx4 v1, {WS}, s12 offen offset:{j*1024}{SC} lds")
    A("s_waitcnt lgkmcnt(0)")
    A("s_barrier")
    A("U_JOIN:")
    stamp(A, 1)
    A("s_waitcnt vmcnt(4)")
    if not hdone:
        for c in (2, 4, 1, 3):
            h_write(c)
    A("v_lshlrev_b32 v220, 16, v202")
    A("ds_write_b64 v222, v[200:201]")
    A(f"s_add_u32 s7, s64, {WS_ZT}")
    A("v_add_u32 v216, s7, v226")
    p2_setup()
    pairs = [(a, b) for a in range(8) for b in range(8) if a + b <= 7]

    def cF(rho):
        o = []
        for a in range(8):
            o.append(f"ds_read_b64 {v(FR[rho&1]+4*a,2)}, v223 offset:{512*a+64*rho}")
            o.append(f"ds_read_b64 {v(FR[rho&1]+4*a+2,2)}, v223 offset:{512*a+64*rho+8}")
        return o

    def cU(rho):
        return [f"ds_read_b128 {v(UR[rho&1]+4*b,4)}, v224 offset:{512*(7-b)+64*rho}" for b in range(8)]

    for x in cF(0):
        A(x)
    A("s_waitcnt vmcnt(0)")
    for x in cU(0):
        A(x)
    stamp(A, 2)
    A("s_mov_b32 s7, 0")
    A("CONV_LOOP:")
    for rho in range(2):
        A("s_waitcnt lgkmcnt(0)")
        nxt = cU(rho + 1) + cF(rho + 1)
        if rho == 1:
            nxt += ["v_add_u32 v223, 128, v223", "v_add_u32 v224, 128, v224", "s_add_u32 s7, s7, 1", "s_cmp_lt_u32 s7, 3"]
        for i, (a, b) in enumerate(pairs):
            G = a + b
            A(mfma16(YR + 4 * G, FR[rho] + 4 * a, UR[rho] + 4 * b, YR + 4 * G))
            if i < len(nxt):
                A(nxt[i])
    A("s_cbranch_scc1 CONV_LOOP")
    A("s_waitcnt lgkmcnt(0)")
    nxt = cU(1) + cF(1)
    for i, (a, b) in enumerate(pairs):
        A(mfma16(YR + 4 * (a + b), FR[0] + 4 * a, UR[0] + 4 * b, YR + 4 * (a + b)))
        if i < len(nxt):
            A(nxt[i])
    for G in range(8):
        A(f"ds_read_b64 {v(FR[0]+2*G,2)}, v225 offset:{512*(7-G)}")
    A("s_waitcnt lgkmcnt(8)")

    def cepi(G):
        y, t_, f = YR + 4 * G, UR[0] + 4 * (G & 1), FR[0]
        return [f"v_and_b32 v{t_}, 0xffff0000, v{f+2*G+1}", f"v_lshlrev_b32 v{t_+1}, 16, v{f+2*G+1}",
                f"v_and_b32 v{t_+2}, 0xffff0000, v{f+2*G}", f"v_lshlrev_b32 v{t_+3}, 16, v{f+2*G}"] + \
               [f"v_fmac_f32 v{y+r}, v{t_+r}, v220" for r in range(4)] + \
               [f"v_cvt_pk_bf16_f32 v{200+2*G}, v{y}, v{y+1}", f"v_cvt_pk_bf16_f32 v{201+2*G}, v{y+2}, v{y+3}"]

    last = [(a, G - a) for G in range(8) for a in range(G + 1)]
    done_at = {G: (G + 1) * (G + 2) // 2 - 1 for G in range(8)}
    q = []
    nextG = 0
    for i, (a, b) in enumerate(last):
        A(mfma16(YR + 4 * (a + b), FR[1] + 4 * a, UR[1] + 4 * b, YR + 4 * (a + b)))
        if i == 5:
            A("s_waitcnt lgkmcnt(0)")
        while nextG < 7 and i >= max(done_at[nextG] + 3, 6):
            q += cepi(nextG)
            nextG += 1
        for _ in range(2):
            if q:
                A(q.pop(0))
    for x in q:
        A(x)
    e7 = cepi(7)
    for x in e7:
        A(x)
    stamp(A, 3)
    A("s_branch P2_JOIN")

    A("P1_COMPUTE:")
    ACC = 64
    XF = [16, 40, 176, 200]
    WF = [24, 48, 184, 208]
    XA = 160
    WA = 168
    A("s_lshr_b32 s6, s3, 1")
    A("s_and_b32 s7, s3, 1")
    A("v_and_b32 v6, 31, v0")
    A("v_lshrrev_b32 v3, 5, v0")
    A("v_bfe_u32 v4, v0, 1, 3")
    A("v_xor_b32 v4, v4, v3")
    A("v_lshlrev_b32 v4, 4, v4")
    A("v_lshl_add_u32 v4, v6, 7, v4")
    A("s_mul_i32 s12, s6, 20480")
    A("v_add_u32 v4, s12, v4")
    for ks in range(4):
        if ks == 0:
            A(f"v_mov_b32 v{XA}, v4")
        else:
            A(f"v_xor_b32 v{XA+ks}, {32*ks}, v4")
        A(f"v_add_u32 v{XA+4+ks}, {2*SLOT}, v{XA+ks}")
    A("v_bfe_u32 v5, v0, 2, 2")
    A("v_lshlrev_b32 v6, 7, v5")
    A("v_lshl_add_u32 v6, v3, 10, v6")
    A("v_bfe_u32 v7, v0, 3, 1")
    A("v_xor_b32 v7, s7, v7")
    A("v_lshl_add_u32 v6, v7, 6, v6")
    A("v_bfe_u32 v7, v0, 4, 1")
    A("v_lshl_add_u32 v6, v7, 5, v6")
    A("v_and_b32 v7, 3, v0")
    A(f"v_lshl_add_u32 v{WA}, v7, 3, v6")
    for sl in range(1, 4):
        A(f"v_add_u32 v{WA+sl}, {sl*SLOT}, v{WA}")
    A("s_lshl_b32 s12, s5, 1")
    A("s_add_u32 s12, s12, s7")
    A("s_lshl_b32 s7, s5, 4")
    A("s_add_u32 s7, s7, s4")
    A("s_lshl_b32 s7, s7, 7")
    A(f"s_add_u32 s7, s7, {F1}")
    A("s_lshl_b32 s12, s12, 6")
    A("s_lshl_b32 s13, s4, 2")
    A("s_add_u32 s12, s12, s13")
    A("s_lshl_b32 s13, s6, 1")
    A("s_add_u32 s12, s12, s13")
    A("s_lshl_b32 s13, s12, 11")
    A("s_lshl_b32 s14, s12, 12")
    A(f"s_add_u32 s14, s14, {WS_KV}")
    A("s_add_u32 s15, s14, 4096")
    A("s_and_b32 s12, s4, 1")
    A("s_lshl_b32 s42, s12, 13")
    A("s_lshl_b32 s43, s6, 12")
    A("s_add_u32 s42, s42, s43")
    A(f"s_add_u32 s42, s42, {RING+3*16384}")
    A("s_sub_u32 s43, s42, 16384")
    A("s_and_b32 s44, s3, 1")
    A("s_cmp_eq_u32 s44, s12")
    A("s_cselect_b32 s42, s42, s43")
    A("s_cselect_b32 s13, 0x7fff0000, s13")
    A("v_add_u32 v10, s42, v1")
    A(f"s_mov_b32 s12, {QSCALE:#x}")
    A("s_waitcnt lgkmcnt(0)")
    srd(A, SRD_WS, P_WS, WS_SIZE)
    if 'tlb' in OPT:
        A("s_bfe_u32 s42, s2, 0x20004")
        A("s_lshl_b32 s42, s42, 2")
        A("s_add_u32 s42, s42, s3")
        for k, (p, stride) in enumerate([(P_WS, 393216 + 2048), (P_OUT, 131072), (P_Q, 65536), (P_WO, 32768),
                                         (P_W, 98304), (P_SSMK, 65536)]):
            A(f"s_cmp_lg_u32 s42, {4+k}")
            A(f"s_cbranch_scc1 NOTLB{k}")
            A(f"v_mul_u32_u24 v8, {stride}, v0")
            A(f"global_load_dword v255, v8, s[{p}:{p+1}] sc1")
            A(f"NOTLB{k}:")
    A("s_lshl_b32 s42, s3, 4")
    A("s_or_b32 s42, s42, s2")
    A("s_cmp_ge_u32 s42, 16")
    A("s_cbranch_scc1 NOINIT")
    srd(A, 56, P_DBG, 256)
    A("v_lshlrev_b32 v8, 7, v0")
    A("s_lshl_b32 s42, s2, 13")
    A(f"s_add_u32 s42, s42, {WS_SYNC}")
    A(f"buffer_store_dword v2, v8, {WS}, s42 offen sc1")
    A("v_mov_b32 v9, 1")
    A("s_waitcnt vmcnt(0)")
    A("s_mov_b64 exec, 1")
    A("buffer_atomic_add v9, v2, s[56:59], 0 offen")
    A("s_mov_b64 exec, -1")
    A("NOINIT:")

    def bufof(step):
        return step & 1 if step < 60 else {60: 0, 61: 2, 62: 3, 63: 1}[step]

    def reads(step):
        st, ks = divmod(step, 4)
        slot = st % 4
        b = bufof(step)
        out = []
        xa = XA + 4 * (slot >> 1) + ks
        out.append(f"ds_read_b128 {v(XF[b],4)}, v{xa} offset:{(slot&1)*SLOT}")
        for seg in range(3):
            for j in range(2):
                out.append(f"ds_read_b64_tr_b16 {v(WF[b]+4*seg+2*j,2)}, v{WA+slot} offset:{ks*10240+4096+seg*2048+j*512}")
            if seg == 0:
                out.append(f"ds_read_b128 {v(XF[b]+4,4)}, v{xa} offset:{(slot&1)*SLOT+10240}")
        return out

    def mf(step, seg, rt):
        b = bufof(step)
        d = ACC + 16 * (3 * rt + seg)
        c = d
        if seg < 2:
            return mfma32(d, WF[b] + 4 * seg, XF[b] + 4 * rt, c)
        return mfma32(d, XF[b] + 4 * rt, WF[b] + 4 * seg, c)

    def epi(seg, rt):
        d = ACC + 16 * (3 * rt + seg)
        out = []
        if seg == 0:
            for r in range(16):
                out.append(f"v_mul_f32 v{d+r}, s12, v{d+r}")
        for r in range(8):
            out.append(f"v_cvt_pk_bf16_f32 v{d+r}, v{d+2*r}, v{d+2*r+1}")
        so, off = [('s13', rt * 2048), (('s14', 's15')[rt], 0), (('s14', 's15')[rt], 2048)][seg]
        out.append(f"buffer_store_dwordx4 {v(d,4)}, v1, {WS}, {so} offen offset:{off}{SC}{NTS}")
        out.append(f"buffer_store_dwordx4 {v(d+4,4)}, v1, {WS}, {so} offen offset:{off+1024}{SC}{NTS}")
        if seg == 0:
            out.append(f"ds_write_b128 v10, {v(d,4)} offset:{off}")
            out.append(f"ds_write_b128 v10, {v(d+4,4)} offset:{off+1024}")
        return out

    for r in range(96):
        A(f"v_mov_b32 v{ACC+r}, 0")
    A("s_mov_b32 s6, 0")
    A("s_barrier")
    stamp(A, 1)
    stamp1(A, 1)
    for r in reads(0):
        A(r)

    def gstep(step):
        m = [mf(step, seg, rt) for seg in range(3) for rt in range(2)]
        nxt = reads(step + 1)
        A("s_waitcnt lgkmcnt(0)")
        A(m[0])
        if (step + 1) % 4 == 0:
            A("s_barrier")
            bs = (step + 1) // 4
            P1S = (2, 4, 6, 8, 9, 10, 11, 12, 14)
            if bs in P1S:
                stamp1(A, 2 + P1S.index(bs))
        if step == 59:
            nxt = reads(60) + reads(61) + reads(62)
            gaps = [nxt[0:4], nxt[4:8], nxt[8:12], nxt[12:16], nxt[16:20], nxt[20:24]]
        else:
            gaps = [nxt[0:3], nxt[3:5], nxt[5:7], nxt[7:8], [], []]
        if step == 15 and 'p1' not in OPT:
            gaps[4] = ["s_add_u32 s6, s6, 1", "s_cmp_lt_u32 s6, 3"]
        for x in gaps[0]:
            A(x)
        for k in range(1, 6):
            A(m[k])
            for x in gaps[k]:
                A(x)

    if 'p1' in OPT:
        for step in range(48):
            gstep(step)
    else:
        A("P1_LOOP:")
        for step in range(16):
            gstep(step)
        A("s_cbranch_scc1 P1_LOOP")
    for step in range(48, 60):
        gstep(step)
    for x in reads(63):
        A(x)
    order = [(0, 0), (0, 1), (1, 0), (1, 1), (2, 0), (2, 1)] if 'qlast' not in OPT else [(1, 0), (1, 1), (2, 0), (2, 1), (0, 0), (0, 1)]
    pend = []
    A("s_waitcnt lgkmcnt(8)" if 'p1' not in OPT else "s_waitcnt lgkmcnt(0)")
    for ti, (seg, rt) in enumerate(order):
        if ti >= 2:
            pend = epi(*order[ti - 2])
        for k, step in enumerate(range(60, 64)):
            if ti == 0 and k == 3:
                A("s_waitcnt lgkmcnt(0)")
            A(mf(step, seg, rt))
            if ti == 0 and k == 3:
                A("s_barrier")
                stamp1(A, 11)
            if ti == 1 and k in (1, 2):
                A("s_nop 3")
            n = (len(pend) + (3 - k)) // (4 - k)
            for x in pend[:n]:
                A(x)
            pend = pend[n:]
    stamp(A, 2)
    A("v_mov_b32 v216, 0x7fff0000")
    for x in epi(*order[4]) + ["s_nop 0"] + epi(*order[5]):
        A(x)
    att_ids()
    A("s_lshr_b32 s42, s4, 1")
    A("s_lshl_b32 s42, s42, 11")
    A(f"s_add_u32 s42, s42, {F1}")
    A("s_lshl_b32 s12, s4, 18")
    A("s_lshl_b32 s13, s3, 12")
    A("s_add_u32 s12, s12, s13")
    A(f"s_add_u32 s12, s12, {WS_KV}")
    A("s_andn2_b32 s15, 1, s4")
    A("s_lshl_b32 s15, s15, 2")
    A("s_add_u32 s15, s15, s3")
    A("s_lshl_b32 s15, s15, 11")
    A("s_lshl_b32 s14, s4, 17")
    A("s_lshl_b32 s6, s5, 14")
    A("s_add_u32 s14, s14, s6")
    A("s_add_u32 s14, s14, s15")
    A("s_waitcnt vmcnt(0)")
    A(f"v_mov_b32 v3, {CNT_LDS}")
    A("v_mov_b32 v4, 1")
    A("s_mov_b64 exec, 1")
    A("ds_add_rtn_u32 v5, v3, v4")
    A("s_waitcnt lgkmcnt(0)")
    A("v_readfirstlane_b32 s6, v5")
    A("s_mov_b64 exec, -1")
    stamp(A, 3)
    A("s_cmp_lg_u32 s6, 3")
    A("s_cbranch_scc1 NOPOLL1")
    setflag(A, 's7', 4)
    if 'noinc1' in OPT:
        poll(A, 'POLL1', WS, FA, 's42', 5)
    else:
        A("s_lshl_b32 s43, s5, 1")
        A("s_lshl_b32 s43, 3, s43")
        A("s_or_b32 s43, s43, 3")
        A("s_mov_b32 s98, 0")
        A("POLL1:")
        A(f"buffer_load_dword v5, v{FA}, {WS}, s42 offen sc1")
        A("s_waitcnt vmcnt(0)")
        A(f"v_cmp_eq_u32 {MK}, 1, v5")
        A("s_and_b32 s100, s100, s43")
        A("s_cmp_eq_u32 s100, s43")
        A("s_cbranch_scc1 POLL1_OK")
        A(f"s_sleep {SLP}")
        A("s_add_u32 s98, s98, 1")
        A("s_cmp_lt_u32 s98, 0x80000")
        A("s_cbranch_scc1 POLL1")
        A("POLL1_OK:")
    A("v_mov_b32 v4, 64")
    A("ds_write_b32 v3, v4")
    A("s_branch GO1")
    A("NOPOLL1:")
    A("s_mov_b32 s98, 0")
    A("LW1:")
    A("s_sleep 1")
    A("ds_read_b32 v5, v3")
    A("s_add_u32 s98, s98, 1")
    A("s_cmp_ge_u32 s98, 0x800000")
    A("s_cbranch_scc1 GO1")
    A("s_waitcnt lgkmcnt(0)")
    A("v_readfirstlane_b32 s6, v5")
    A("s_cmp_lg_u32 s6, 64")
    A("s_cbranch_scc1 LW1")
    A("GO1:")
    A("s_waitcnt lgkmcnt(0)")
    stamp(A, 4)
    A(f"s_add_u32 m0, s13, {RING}")
    A("s_nop 0")
    for j in range(4):
        A(f"buffer_load_dwordx4 v1, {WS}, s12 offen offset:{j*1024}{SC} lds")
    A(f"s_add_u32 m0, s15, {RING+3*16384}")
    A("s_add_u32 s12, s12, 16384")
    for j in range(2):
        A(f"buffer_load_dwordx4 v1, {WS}, s14 offen offset:{j*1024}{SC} lds")
    A(f"s_add_u32 m0, s13, {RING+16384}")
    A("s_nop 0")
    for j in range(4):
        A(f"buffer_load_dwordx4 v1, {WS}, s12 offen offset:{j*1024}{SC} lds")

    p2_setup()
    A("P2_JOIN:")

    def rdK(t):
        b = t & 1
        o = (t % 16) * 4096
        return [f"ds_read_b128 {v(KF[b],4)}, v{RB} offset:{o}", f"ds_read_b128 {v(KF[b]+4,4)}, v{RB} offset:{o+1024}"]

    def rdV(t):
        b = t & 1
        o = (t % 16) * 4096 + 2048
        return [f"ds_read_b128 {v(VF[b],4)}, v{RB} offset:{o}", f"ds_read_b128 {v(VF[b]+4,4)}, v{RB} offset:{o+1024}"]

    A("s_cmp_lt_u32 s3, 4")
    A("s_cselect_b64 vcc, -1, 0")
    A("s_waitcnt vmcnt(4)")
    stamp(A, 5)
    A("s_barrier")
    stamp(A, 6)
    A(f"ds_read_b128 {v(Q,4)}, v3 offset:{3*16384}")
    A(f"ds_read_b128 {v(Q+4,4)}, v3 offset:{3*16384+1024}")
    for x in rdK(0) + rdK(1) + rdV(0):
        A(x)
    A("s_mov_b32 s14, 0")
    INC1 = 'noinc1' not in OPT
    st2 = [f"s_add_u32 m0, s13, {2*16384}", "s_nop 0", f"buffer_load_dwordx4 v1, {WS}, s12 offen{SC} lds",
           f"buffer_load_dwordx4 v1, {WS}, s12 offen offset:1024{SC} lds", "s_add_u32 s12, s12, 16384"]
    if INC1:
        A("s_lshr_b32 s42, s4, 1")
        A("s_lshl_b32 s42, s42, 11")
        A(f"s_add_u32 s42, s42, {F1}")
        A(f"buffer_load_dword v{GA+5}, v{FA}, {WS}, s42 offen sc1")
    else:
        for x in st2:
            A(x)
    A("s_waitcnt lgkmcnt(4)")
    A(mfma32(S[1], KF[0], Q, '0'))
    A(mfma32(S[1], KF[0] + 4, Q + 4, S[1]))
    A("s_nop 7")
    A("s_nop 3")
    s1 = S[1]
    A(f"v_max3_f32 v12, v{s1}, v{s1+1}, v{s1+2}")
    for r in range(3, 15, 2):
        A(f"v_max3_f32 v12, v12, v{s1+r}, v{s1+r+1}")
    A(f"v_max_f32 v12, v12, v{s1+15}")
    A("v_mov_b32 v13, v12")
    A("s_nop 1")
    A("v_permlane32_swap_b32 v12, v13")
    A("v_max_f32 v12, v12, v13")
    for r in range(16):
        A(f"v_sub_f32 v{S[0]+r}, v{s1+r}, v12")
    for r in range(16):
        A(f"v_xor_b32 v{NM+r}, 0x80000000, v12")
    stamp(A, 7)

    vq = [('kv', 1)] * 4 + ([('kv', 2)] * 2 if not INC1 else ['f1'])
    TI = int(os.environ.get('TI', 1))

    def vwait(tag):
        if tag not in vq:
            return "s_nop 0"
        lastp = max(i for i, x in enumerate(vq) if x == tag)
        n_ = len(vq) - 1 - lastp
        del vq[:lastp + 1]
        return f"s_waitcnt vmcnt({n_})"

    def ofr(i):
        return 176 + 4 * i if i < 16 else (64 + 4 * (i - 16) if i < 28 else 240 + 4 * (i - 28))

    def avail(B=A):
        B(f"v_cmp_eq_u32 {MK}, 1, v{GA+5}")
        B("s_lshr_b32 s25, s100, 1")
        B("s_and_b32 s25, s25, s100")
        B("s_lshr_b32 s26, s25, 2")
        if FIXED:
            B("s_and_b32 s29, s25, s26")
            nextbit(B)
        else:
            B("s_and_b32 s25, s25, s26")
            B("s_and_b32 s25, s25, s24")

    FIXED = 'dyn' not in OPT

    def nextbit(B):
        B("s_sub_u32 s25, 0, s24")
        B("s_and_b32 s25, s25, s24")
        B("s_and_b32 s25, s25, s29")

    def pick(r, B=A):
        B("s_ff1_i32_b32 s26, s25")
        B("s_bitset0_b32 s24, s26")
        if FIXED:
            nextbit(B)
        else:
            B("s_bitset0_b32 s25, s26")
        B("s_add_u32 s26, s26, s61")
        B("s_and_b32 s26, s26, 15")
        B("s_lshl_b32 s27, s26, 11")
        B("s_add_u32 s27, s27, s60")
        B("s_add_u32 s28, s27, 4096")
        B(f"s_lshl_b32 s{16+r}, s26, 12")

    def oload(r, i):
        return f"buffer_load_dwordx4 {v(ofr(8*r+i),4)}, v1, {WS}, s{27+i//4} offen offset:{(i%4)*1024}{SC}"

    def zload(j2):
        vq.append('z')
        return [f"s_mov_b32 s51, {WS_ZT+4096*j2}", f"buffer_load_dword v{ZR+j2}, v{GA+2}, {WS}, s51 offen sc1"]

    fl = f"buffer_load_dword v{GA+5}, v{GA+1}, {WS}, s59 offen sc1"

    def slot_a(T):
        j = (T + 2) // 4 + 2
        if T % 4 == 2 and j <= 15:
            vq.append(('kv', j))
            return [f"s_add_u32 m0, s13, {(j%4)*16384}", "s_nop 0", f"buffer_load_dwordx4 v1, {WS}, s12 offen{SC} lds"]
        if T % 4 == 3 and (T + 1) // 4 + 2 <= 15:
            vq.append(('kv', (T + 1) // 4 + 2))
            return [f"buffer_load_dwordx4 v1, {WS}, s12 offen offset:1024{SC} lds", "s_add_u32 s12, s12, 16384"]
        if T % 4 == 0 and 4 <= T <= 48:
            vq.append('wo')
            return ["s_mov_b32 m0, s49", "s_add_u32 s49, s49, 8192",
                    f"buffer_load_dwordx4 v{WOA}, s[44:47], s48 offen{NTO} lds", f"s_add_u32 s48, s48, {64*2048}"]
        if T == 49:
            vq.append('cz')
            return [f"buffer_load_dword v{GA+5}, v{FA}, {WS}, s56 offen sc1"]
        if 52 <= T <= 55:
            vq.append('wl')
            return [f"buffer_load_dwordx4 {v(WL+4*(T-52),4)}, v{WOA}, s[44:47], s48 offen",
                    f"s_add_u32 s48, s48, {64*2048}"]
        if T in (56, 57):
            return zload(4 + 2 * (T - 56))
        if T == 58:
            vq.append('f2')
            return [fl]
        if T >= 60:
            vq.append('e')
            return [oload(0, 2 * (T - 60))]
        return []

    def slot_e(T):
        if 2 <= T <= 9:
            G = T - 2
            vq.append('zt')
            return [f"buffer_store_dwordx2 {v(200+2*G,2)}, v216, {WS}, 0 offen offset:{512*G}{SC}"]
        if T in (48, 49):
            i = T - 48
            vq.append('q')
            return [f"buffer_load_dwordx4 {v(QR+4*i,4)}, v{GA+4}, s[52:55], 0 offen offset:{2048*i}{NT}"]
        if 52 <= T <= 55:
            return zload(T - 52)
        if T in (56, 57):
            return zload(5 + 2 * (T - 56))
        if T >= 60:
            vq.append('e')
            return [oload(0, 2 * (T - 60) + 1)] + ([fl] if T == 63 else [])
        return []

    def tile(B, T, grp):
        t = T % 16
        c, n = S[t & 1], S[(t + 1) & 1]
        kb, vp = KF[(t + 1) & 1], VF[(t + 1) & 1]
        do_qk = T < 63
        rk = rdK(t + 2) if T < 62 else []
        rv = rdV(t + 1) if T < 63 else []
        E = lambda r: f"v_exp_f32 v{c+r}, v{c+r}"
        C = lambda r: f"v_cvt_pk_bf16_f32 v{P+r}, v{c+2*r}, v{c+2*r+1}"
        B("s_setprio 0")
        if T in (0, 48, 56):
            stamp2(B, {0: 1, 48: 5, 56: 7}[T])
        B("s_waitcnt lgkmcnt(0)")
        if do_qk:
            B(mfma32(n, kb, Q, NM))
        if T == TI and INC1:
            B(vwait('f1'))
            check_or_poll(B, 'POLL1B', WS, FA, 's42', GA + 5)
            for x in st2:
                B(x)
            vq.extend([('kv', 2)] * 2)
        if T == 52:
            B(vwait('cz'))
            check_or_poll(B, 'POLLZ', WS, FA, 's56', GA + 5)
        if T == 60:
            B(vwait('f2'))
            B("s_movk_i32 s24, 0x1111")
            avail(B)
            B("s_and_b32 s25, s25, s63")
            B("s_cselect_b32 s62, 1, 0")
            B("s_cbranch_scc0 NOE")
            pick(0, B)
            B("NOE:")
        for x in slot_a(T):
            B(x)
        if T > 0:
            B(mfma32(O, vp, P, O if T > 1 else '0'))
            B(mfma32(O, vp + 4, P + 4, O))
        for x in rk:
            B(x)
        if do_qk:
            B(mfma32(n, kb + 4, Q + 4, n))
        for x in rv:
            B(x)
        if T > 0:
            B(SM)
        for x in slot_e(T):
            B(x)
        if T == 13:
            B(vwait('zt'))
        if T == 15:
            setflag(B, 's57', 12)
            vq.append('fl')
        nb = t % 4 == 1 and T + 1 < 62
        if nb:
            w = vwait(('kv', (T + 3) // 4))
            if grp == 'mid':
                w = "s_waitcnt vmcnt(4)"
            B(f"s_cbranch_vccnz SKB_{grp}_{t}")
            B(w)
            B("s_barrier")
            B(f"SKB_{grp}_{t}:")
        for r in range(8):
            B(E(2 * r)); B(E(2 * r + 1))
            if 1 <= r < 7:
                B(C(r - 1))
            if r == 1:
                B("s_setprio 2")
        B(C(6))
        B(C(7))
        if nb:
            B(f"s_cbranch_vccz SKA_{grp}_{t}")
            B(w)
            B("s_barrier")
            B(f"SKA_{grp}_{t}:")

    for T in range(16):
        tile(A, T, 'first')
    stamp2(A, 3)
    A("P2_LOOP:")
    n0 = len(A.ins)
    for T in range(16, 32):
        tile(A, T, 'mid')
    body = [i.text for i in A.ins[n0:]]
    B2 = Asm()
    for T in range(32, 48):
        tile(B2, T, 'mid')
    assert body == [i.text for i in B2.ins]
    A("s_add_u32 s14, s14, 1")
    A("s_cmp_lt_u32 s14, 2")
    A("s_cbranch_scc1 P2_LOOP")
    for T in range(48, 64):
        tile(A, T, 'last')
    A("s_setprio 0")
    A("s_waitcnt lgkmcnt(0)")
    A(mfma32(O, VF[1], P, O))
    A(mfma32(O, VF[1] + 4, P + 4, O))
    A(SM)
    stamp2(A, 9)
    stamp(A, 8)
    srd(A, 52, P_OUT, 8 * MB)
    A(f"s_mov_b32 s50, {L_THR:#x}")
    A("s_lshr_b32 s5, s3, 2")
    A("s_and_b32 s4, s3, 3")
    A("s_nop 0")
    A(f"v_add_f32 v{L}, v{L}, v{L+1}")
    A(f"v_cmp_nge_f32 vcc, s50, v{L}")
    A(f"v_rcp_f32 v12, v{L}")
    A("s_nop 1")
    A("s_cbranch_vccnz P2_SLOW")
    A("P2_FIN:")
    for r in range(16):
        A(f"v_mul_f32 v{O+r}, v{O+r}, v12")
    for r in range(8):
        A(f"v_cvt_pk_bf16_f32 v{OS+r}, v{O+2*r}, v{O+2*r+1}")
    A(f"buffer_store_dwordx4 {v(OS,4)}, v1, {WS}, s15 offen{SC}")
    A(f"buffer_store_dwordx4 {v(OS+4,4)}, v1, {WS}, s15 offen offset:1024{SC}")

    ACC = 32
    WF = [16, 24]

    def issue3(r):
        pick(r)
        for i in range(8):
            A(oload(r, i))

    A("s_barrier")
    for i in range(4):
        A(f"ds_write_b128 v{GA}, {v(WL+4*i,4)} offset:{8192*i}")
    A("v_lshrrev_b32 v4, 5, v0")
    A("v_bfe_u32 v5, v0, 2, 2")
    A("v_lshl_add_u32 v5, v4, 2, v5")
    A("v_lshlrev_b32 v5, 7, v5")
    A("v_and_b32 v6, 1, v0")
    A("v_lshl_add_u32 v5, v6, 5, v5")
    A("v_bfe_u32 v6, v0, 4, 1")
    A("v_lshl_add_u32 v5, v6, 4, v5")
    A("v_bfe_u32 v6, v0, 1, 1")
    A("v_lshl_add_u32 v5, v6, 3, v5")
    A("v_bfe_u32 v6, v0, 3, 1")
    A("v_xor_b32 v6, s5, v6")
    A("v_lshl_add_u32 v5, v6, 6, v5")
    A("s_lshl_b32 s13, s5, 16")
    A("v_add_u32 v12, s13, v5")
    A("v_xor_b32 v13, 64, v12")
    A("s_lshl_b32 s13, s3, 12")
    A(f"s_add_u32 s13, s13, {RING+32768}")
    A("v_add_u32 v6, s13, v1")
    A("v_xor_b32 v7, 0x4000, v6")
    A("v_bfe_u32 v8, v0, 1, 2")
    A("v_lshlrev_b32 v4, 1, v4")
    A("v_xor_b32 v8, v8, v4")
    A("v_lshlrev_b32 v8, 4, v8")
    A("v_and_b32 v4, 31, v0")
    A("v_lshl_add_u32 v8, v4, 6, v8")
    A("s_xor_b32 s13, s13, 0x4000")
    A("v_add_u32 v8, s13, v8")
    A("v_xor_b32 v9, 16, v8")
    A("v_bfe_u32 v4, v0, 3, 2")
    A("v_and_b32 v5, 3, v0")
    A("v_xor_b32 v4, v4, v5")
    A("v_lshlrev_b32 v4, 4, v4")
    A("v_lshrrev_b32 v5, 2, v0")
    A("v_lshl_add_u32 v5, v5, 12, v4")
    A("s_lshl_b32 s14, s40, 19")
    A("s_lshl_b32 s13, s4, 17")
    A("s_add_u32 s14, s14, s13")
    A("s_lshl_b32 s13, s41, 7")
    A("s_add_u32 s14, s14, s13")
    A("s_lshl_b32 s13, s5, 6")
    A("s_add_u32 s14, s14, s13")
    A("s_add_u32 s14, s14, 2048")
    A("s_add_u32 s15, s14, 65536")
    A("s_movk_i32 s13, 0x1000")
    A("s_mov_b32 s98, 0")

    PD3 = int(os.environ.get('PD3', 2))
    WF = [16, 24, 152]

    def reads3(step):
        b = step % 3
        return [f"ds_read_b64_tr_b16 {v(WF[b]+4*nt+2*j,2)}, v{14+nt} offset:{(16*step+8*j)*128}"
                for nt in range(2) for j in range(2)]

    T = 112
    gat = []
    for i in range(2):
        for dw in range(4):
            for hi in range(2):
                zr = ZR + 2 * dw + hi
                gat.append(f"v_and_b32 v{T+hi}, 0xffff0000, v{zr}" if i else f"v_lshlrev_b32 v{T+hi}, 16, v{zr}")
            gat.append(f"v_lshlrev_b32 v{T+2}, 16, v{QR+4*i+dw}")
            gat.append(f"v_and_b32 v{T+3}, 0xffff0000, v{QR+4*i+dw}")
            gat.append(f"v_mul_f32 v{T}, v{T}, v{T+2}")
            gat.append(f"v_mul_f32 v{T+1}, v{T+1}, v{T+3}")
            gat.append(f"v_cvt_pk_bf16_f32 v{QR+4*i+dw}, v{T}, v{T+1}")

    def consume(c, y):
        stamp3(A, 5 + c)
        A(f"v_add_u32 v14, s{16+c}, v12")
        A(f"v_add_u32 v15, s{16+c}, v13")
        for k in range(PD3):
            for x in reads3(k):
                A(x)
        for step in range(8):
            nxt = reads3(step + PD3) if step + PD3 < 8 else []
            for x in nxt:
                A(x)
            A((f"s_waitcnt vmcnt({y+7-step}) " if y is not None else "s_waitcnt ") +
              f"lgkmcnt({4*min(PD3, 7-step)})")
            for nt in range(2):
                A(mfma32(ACC + 16 * nt, WF[step % 3] + 4 * nt, ofr(8 * c + step),
                         '0' if (c == 0 and step == 0) else ACC + 16 * nt))
                if c == GC:
                    for x in gat[7 * step + 4 * nt:7 * step + 4 + 3 * nt]:
                        A(x)
        if c == GC:
            A(f"buffer_store_dwordx4 {v(QR,4)}, v{GA+3}, s[52:55], 0 offen{OM}")
            A(f"buffer_store_dwordx4 {v(QR+4,4)}, v{GA+3}, s[52:55], s13 offen{OM}")

    A("s_waitcnt vmcnt(2)")
    avail()
    stamp3(A, 2)
    A("s_cmp_eq_u32 s62, 0")
    A("s_cbranch_scc1 P3_W0")
    A("s_cmp_eq_u32 s25, 0")
    A("s_cbranch_scc1 P3_E1")
    issue3(1)
    A("s_mov_b32 s62, 2")
    A("P3_E1:")
    consume(0, None)
    A("s_cmp_eq_u32 s62, 2")
    A("s_cbranch_scc1 P3_E2")
    A("s_waitcnt vmcnt(0)")
    A("P3_E2:")
    A("s_waitcnt vmcnt(8)")
    A("s_barrier")
    setflag(A, 's58', 10)
    stamp(A, 9)
    A("s_cmp_eq_u32 s62, 2")
    A("s_cbranch_scc1 TRY_1_2")
    A("s_branch TRY_1_1")
    A("P3_W0:")
    A("s_waitcnt vmcnt(0) lgkmcnt(0)")
    A("s_barrier")
    setflag(A, 's58', 10)
    stamp(A, 9)

    LK = int(os.environ.get('LK', 2))

    def state(c, n):
        A(f"TRY_{c}_{n}:")
        can = n < 4 and n - c < LK
        if can:
            A("s_cmp_lg_u32 s25, 0")
            A(f"s_cbranch_scc1 ISS_{c}_{n}")
            if c == n:
                A(f"POL_{c}:")
                A(fl)
                A("s_waitcnt vmcnt(0)")
                avail()
                A(f"s_cbranch_scc1 ISS_{c}_{n}")
                A(f"s_sleep {SLP3}")
                A("s_add_u32 s98, s98, 1")
                A("s_cmp_lt_u32 s98, 0x80000")
                A(f"s_cbranch_scc1 POL_{c}")
                A("s_branch P3_RED")
        if c < n:
            y = 8 * (n - 1 - c)
            if n < 4:
                A(fl)
                y += 1
            consume(c, y)
            if n < 4:
                A("s_cmp_lg_u32 s25, 0")
                A(f"s_cbranch_scc1 ISS_{c+1}_{n}")
                A("s_waitcnt vmcnt(0)")
                avail()
            if (c + 1, n) != (4, 4):
                if not (n == 4):
                    A(f"s_branch TRY_{c+1}_{n}")
        if can:
            A(f"ISS_{c}_{n}:")
            issue3(n)
            A(f"s_branch TRY_{c}_{n+1}")

    for n in range(4):
        for c in range(n + 1):
            if n - c <= LK:
                state(c, n)
    for c in range(4):
        if 4 - c <= LK:
            state(c, 4)
    A("P3_RED:")
    stamp3(A, 9)
    A("s_nop 7")
    A("s_nop 3")
    for i in range(4):
        A(f"ds_write_b128 v6, {v(ACC+16+4*i,4)} offset:{1024*i}")
    A("s_waitcnt lgkmcnt(0)")
    A("s_barrier")
    stamp3(A, 10)
    for i in range(4):
        A(f"ds_read_b128 {v(64+4*i,4)}, v7 offset:{1024*i}")
    for i in range(4):
        A(f"s_waitcnt lgkmcnt({3-i})")
        for r in range(4):
            A(f"v_add_f32 v{ACC+4*i+r}, v{ACC+4*i+r}, v{64+4*i+r}")
    for r in range(8):
        A(f"v_cvt_pk_bf16_f32 v{16+r}, v{ACC+2*r}, v{ACC+2*r+1}")
    A("ds_write_b128 v8, v[16:19]")
    A("ds_write_b128 v9, v[20:23]")
    A("ds_read_b128 v[24:27], v7")
    A("ds_read_b128 v[28:31], v7 offset:1024")
    A("s_waitcnt lgkmcnt(1)")
    A(f"buffer_store_dwordx4 v[24:27], v5, s[52:55], s14 offen{OM}")
    A("s_waitcnt lgkmcnt(0)")
    A(f"buffer_store_dwordx4 v[28:31], v5, s[52:55], s15 offen{OM}")
    stamp(A, 11)
    dump_stamps(A, 12, 8)
    A("K_END:")
    A("s_endpgm")

    A("P2_SLOW:")
    A("v_mov_b32 v12, 0xff7fffff")
    A("s_mov_b32 s50, s6")
    A("s_mov_b32 s49, 0")
    A("P2_SLOW1:")
    A(f"buffer_load_dwordx4 {v(KF[0],4)}, v1, {WS}, s50 offen{SC}")
    A(f"buffer_load_dwordx4 {v(KF[0]+4,4)}, v1, {WS}, s50 offen offset:1024{SC}")
    A("s_waitcnt vmcnt(0)")
    A(mfma32(s1, KF[0], Q, '0'))
    A(mfma32(s1, KF[0] + 4, Q + 4, s1))
    A("s_nop 7")
    A("s_nop 3")
    for r in range(0, 16, 2):
        A(f"v_max3_f32 v12, v12, v{s1+r}, v{s1+r+1}")
    A("s_add_u32 s50, s50, 4096")
    A("s_add_u32 s49, s49, 1")
    A("s_cmp_lt_u32 s49, 64")
    A("s_cbranch_scc1 P2_SLOW1")
    A("v_mov_b32 v13, v12")
    A("s_nop 1")
    A("v_permlane32_swap_b32 v12, v13")
    A("v_max_f32 v12, v12, v13")
    for r in range(16):
        A(f"v_xor_b32 v{NM+r}, 0x80000000, v12")
        A(f"v_mov_b32 v{O+r}, 0")
    for r in range(4):
        A(f"v_mov_b32 v{L+r}, 0")
    A("s_mov_b32 s50, s6")
    A("s_mov_b32 s49, 0")
    A("P2_SLOW2:")
    A(f"buffer_load_dwordx4 {v(KF[0],4)}, v1, {WS}, s50 offen{SC}")
    A(f"buffer_load_dwordx4 {v(KF[0]+4,4)}, v1, {WS}, s50 offen offset:1024{SC}")
    A(f"buffer_load_dwordx4 {v(VF[0],4)}, v1, {WS}, s50 offen offset:2048{SC}")
    A(f"buffer_load_dwordx4 {v(VF[0]+4,4)}, v1, {WS}, s50 offen offset:3072{SC}")
    A("s_waitcnt vmcnt(0)")
    A(mfma32(s1, KF[0], Q, NM))
    A(mfma32(s1, KF[0] + 4, Q + 4, s1))
    A("s_nop 7")
    A("s_nop 3")
    for r in range(16):
        A(f"v_exp_f32 v{s1+r}, v{s1+r}")
    A("s_nop 0")
    for r in range(8):
        A(f"v_cvt_pk_bf16_f32 v{P+r}, v{s1+2*r}, v{s1+2*r+1}")
    A("s_nop 1")
    A(mfma32(O, VF[0], P, O))
    A(mfma32(O, VF[0] + 4, P + 4, O))
    A(SM)
    A("s_add_u32 s50, s50, 4096")
    A("s_add_u32 s49, s49, 1")
    A("s_cmp_lt_u32 s49, 64")
    A("s_cbranch_scc1 P2_SLOW2")
    A("s_nop 7")
    A("s_nop 3")
    A(f"v_add_f32 v{L}, v{L}, v{L+1}")
    A(f"v_rcp_f32 v12, v{L}")
    A("s_nop 0")
    A("s_branch P2_FIN")
    A("K_LAST:")
    return kd(NAME, 256, 102)


def build(path):
    hdr = open('concat_heads__ssm_conv_h3__mha_block__prompt.s.ref').read().split('\n')
    hdr = [l for l in hdr if l.startswith(';') and '@launch' not in l]
    A = Asm()
    k = gen(A)
    A.check()
    out = '\n'.join(hdr) + '\n' + f"; @launch grid=(256,1,1) block=(512,1,1) lds={LDS}\n"
    out += '.amdgcn_target "amdgcn-amd-amdhsa--gfx950"\n.text\n' + A.text()
    out += '.section .rodata,"a"\n' + k
    import subprocess
    open(path, 'w').write(out.replace('CODE_CHUNKS', '0'))
    subprocess.run(['clang', '-x', 'assembler', '-target', 'amdgcn-amd-amdhsa', '-mcpu=gfx950', '-c',
                    path, '-o', '_sz.o'], check=True)
    sz = int([l for l in subprocess.run(['llvm-objdump', '-h', '_sz.o'], capture_output=True,
                                        text=True).stdout.split('\n') if '.text' in l][0].split()[2], 16)
    pad = (-(sz - 256)) % 8192
    chunks = (sz - 256 + pad) // 8192
    out = out.replace('CODE_CHUNKS', str(chunks - 1))
    out = out.replace('K_LAST:\n', f'K_LAST:\n.fill {pad//4+64}, 4, 0xbf810000\n')
    open(path, 'w').write(out)
    print('code bytes', sz, 'chunks', chunks)
    ok = {x: True for x in ('POLLU_OK', 'POLL1_OK', 'POLL1B_OK', 'POLLZ_OK', 'INITP_OK')}
    loop = {'P2_LOOP': lambda c: c < 1, 'P1_LOOP': lambda c: c < 2, 'CONV_LOOP': lambda c: c < 2}
    skb = {f'SKB_{g}_{t}': True for g in ('first', 'mid', 'last') for t in range(16)}
    ska = {f'SKA_{g}_{t}': True for g in ('first', 'mid', 'last') for t in range(16)}
    iss_all = {f'ISS_{c}_{n}': True for c in range(4) for n in range(4)}
    iss_late = {f'ISS_{c}_{c}': True for c in range(4)}
    e2 = {'P3_E2': True, 'TRY_1_2': True}
    A.check_trace(NAME, {**ok, **loop, **skb, **iss_all, **e2}, 'compute init, all ready')
    A.check_trace(NAME, {**ok, **loop, **skb, **iss_late, 'NOINIT': True, 'P1_COMPUTE': True, 'NOPOLL1': True,
                         'NOE': True, 'P3_W0': True}, 'compute one by one')
    A.check_trace(NAME, {**ok, **loop, **ska, 'P1_LOADER': True, 'NOUT': True, 'NOSIGU': True, 'NOE': True, 'P3_W0': True,
                         'ISS_0_0': True, 'ISS_0_1': True, 'ISS_2_2': True, 'ISS_2_3': True}, 'loader late, 2+2')
    A.check_trace(NAME, {**ok, **loop, **ska, 'P1_LOADER': True, 'U_EARLY': True, 'P3_E1': True, 'ISS_1_1': True,
                         'ISS_1_2': True, 'ISS_3_3': True}, 'loader early')
    A.check_trace(NAME, {**ok, **loop, **ska, **iss_all, **e2, 'P1_LOADER': True, 'P2_SLOW': True,
                         'P2_SLOW1': lambda c: c < 2, 'P2_SLOW2': lambda c: c < 2}, 'slow')
    return A


if __name__ == '__main__':
    build(sys.argv[1] if len(sys.argv) > 1 else 'f.s')
```

```python
import sys, struct, math, os
sys.path.insert(0, 'dev')
from asmlib import *

OPT = set(os.environ.get('OPT', '').split(',')) | {'hall', 'norot3'} | ({'nodpp'} if 'dpp' not in os.environ.get('OPT', '').split(',') else set())
PROF = 'prof' in OPT
NAME = 'concat_heads__ssm_conv_h3__mha_block__prompt_kernel'
LA = int(os.environ.get('LA', 3))
SLP = int(os.environ.get('SLP', 2))
SLP3 = int(os.environ.get('SLP3', 3))

MB = 1 << 20
WS_QF = 0
WS_KV = 4 * MB
WS_OF = 12 * MB
WS_UT = 16 * MB
WS_ZT = 20 * MB
WS_SYNC = 24 * MB
F1 = WS_SYNC
FU = WS_SYNC + 32768
FZ = WS_SYNC + 65536
F2 = WS_SYNC + 98304
CNT_LDS = 4 * (4 * 4160 + 64) + 4 * 4608
WS_SIZE = 24 * MB + 131072
WS_PROF = 32 * MB

P_Q, P_K, P_V, P_SH, P_SSMK, P_D, P_X, P_W, P_WO, P_OUT, P_DBG, P_WS = [16 + 2 * i for i in range(12)]
SRD_WS = 8
WS = f"s[{SRD_WS}:{SRD_WS+3}]"


def f32bits(x):
    return struct.unpack('<I', struct.pack('<f', x))[0]


QSCALE = f32bits(math.log2(math.e) / math.sqrt(32.0))
L_THR = f32bits(2.0 ** 60)

SLOT = 40960
LDS = 163840
HCS = 4160
HC_STRIDE = 4 * HCS + 64
U_BASE = 4 * HC_STRIDE
U_SZ = 4608
RING = 98304
SC = ' sc1'
NT = ' nt' if 'nont' not in OPT else ''
NTX = ' nt' if 'ntx' in OPT else ''
NTW = ' nt' if 'ntw' in OPT else ''
NTU = ' nt' if 'ntu' in OPT else ''
NTS = ' nt' if 'nts' in OPT else ''
NTL = ' nt' if 'ntl' in OPT else ''
NT2 = ' nt' if 'nt2' in OPT else ''
NTZ = ' nt' if 'ntz' in OPT else ''
NTO = ' nt' if 'nto' in OPT else ''
OM = ' ' + os.environ.get('OM', 'sc1')
GC = int(os.environ.get('GC', 3))
MT = 's_memrealtime' if 'rt' in OPT else 's_memtime'
MK = "s[100:101]"


def srd(A, d, p, size):
    A(f"s_mov_b32 s{d}, s{p}")
    A(f"s_and_b32 s{d+1}, s{p+1}, 0xffff")
    A(f"s_mov_b32 s{d+2}, {size}")
    A(f"s_mov_b32 s{d+3}, 0x00020000")


def mfma32(d, a, b, c):
    cs = c if isinstance(c, str) else v(c, 16)
    return f"v_mfma_f32_32x32x16_bf16 {v(d,16)}, {v(a,4)}, {v(b,4)}, {cs}"


def mfma16(d, a, b, c):
    cs = c if isinstance(c, str) else v(c, 4)
    return f"v_mfma_f32_16x16x32_bf16 {v(d,4)}, {v(a,4)}, {v(b,4)}, {cs}"


def stamp1(A, idx):
    if PROF and 'p1' in OPT:
        A(f"{MT} s[{70+2*idx}:{71+2*idx}]")


def stamp2(A, idx):
    if PROF and 'p2' in OPT:
        A(f"s_memrealtime s[{70+2*idx}:{71+2*idx}]")
        A(f"s_memtime s[{72+2*idx}:{73+2*idx}]")


def stamp3(A, idx):
    if PROF and 'p3' in OPT:
        A(f"s_memrealtime s[{70+2*idx}:{71+2*idx}]")
        A("s_waitcnt lgkmcnt(0)")


def stamp(A, idx):
    if PROF and ('p1' in OPT or 'p2' in OPT) and idx != 0:
        return
    if PROF and 'p3' in OPT:
        idx = {0: 0, 8: 1, 9: 3, 10: 4, 11: 11}.get(idx)
        if idx is None:
            return
    if PROF:
        A(f"{MT} s[{70+2*idx}:{71+2*idx}]")
        if idx == 0:
            A("s_memrealtime s[68:69]")
        else:
            A("s_waitcnt lgkmcnt(0)")


def dump_stamps(A, n, vt=2):
    if not PROF:
        return
    if 'dbg' in OPT:
        srd(A, 64, P_DBG, 256)
        A("s_cmp_ge_u32 s3, 4")
        A("s_cbranch_scc1 K_END")
        A("s_mov_b64 exec, 1")
        A("s_not_b32 s60, s70")
        A(f"v_mov_b32 v{vt}, s60")
        A(f"buffer_atomic_umax v{vt}, v2, s[64:67], 0 offen offset:4")
        for i in range(n):
            if i in (10,):
                continue
            A(f"v_mov_b32 v{vt+1+i}, s{70+2*i}")
            A(f"buffer_atomic_umax v{vt+1+i}, v2, s[64:67], 0 offen offset:{8+4*i}")
        return
    A("s_memrealtime s[62:63]")
    A("s_waitcnt lgkmcnt(0)")
    A(f"s_add_u32 s64, s{P_WS}, {WS_PROF}")
    A(f"s_addc_u32 s65, s{P_WS+1}, 0")
    A("s_and_b32 s65, s65, 0xffff")
    A(f"s_mov_b32 s66, {MB}")
    A("s_mov_b32 s67, 0x00020000")
    A("s_lshl_b32 s60, s2, 10")
    A("s_lshl_b32 s61, s3, 6")
    A("s_add_u32 s60, s60, s61")
    A(f"v_mov_b32 v{vt+1}, 0")
    for i in range(n):
        A(f"v_mov_b32 v{vt}, s{70+2*i}")
        A(f"buffer_store_dword v{vt}, v{vt+1}, s[64:67], s60 offen offset:{4*i}")
    A(f"v_mov_b32 v{vt}, s68")
    A(f"buffer_store_dword v{vt}, v{vt+1}, s[64:67], s60 offen offset:56")
    A(f"v_mov_b32 v{vt}, s62")
    A(f"buffer_store_dword v{vt}, v{vt+1}, s[64:67], s60 offen offset:60")
    A("s_waitcnt vmcnt(0)")


FA = 254


def all_set(A, vt, val=1):
    A(f"v_cmp_eq_u32 {MK}, 1, v{vt}" if val == 1 else f"v_cmp_le_u32 {MK}, {val}, v{vt}")
    A(f"s_cmp_eq_u64 {MK}, -1")


def poll(A, name, srds, va, soff, vt, val=1):
    A("s_mov_b32 s98, 0")
    A(f"{name}:")
    A(f"buffer_load_dword v{vt}, v{va}, {srds}, {soff} offen sc1")
    A("s_waitcnt vmcnt(0)")
    all_set(A, vt, val)
    A(f"s_cbranch_scc1 {name}_OK")
    A(f"s_sleep {SLP}")
    A("s_add_u32 s98, s98, 1")
    A("s_cmp_lt_u32 s98, 0x80000")
    A(f"s_cbranch_scc1 {name}")
    A(f"{name}_OK:")


def check_or_poll(A, name, srds, va, soff, vt, val=1):
    all_set(A, vt, val)
    A(f"s_cbranch_scc1 {name}_OK")
    poll(A, name, srds, va, soff, vt, val)


def setflag(A, soff, vt, srds=WS):
    A("s_mov_b64 exec, 1")
    A(f"v_mov_b32 v{vt}, 1")
    A(f"buffer_store_dword v{vt}, v2, {srds}, {soff} offen sc1")
    A("s_mov_b64 exec, -1")


def gen(A):
    Q, NM, S, P, O, L, KF, VF, ON = 4, 16, [32, 48], 64, 72, 88, [92, 100], [108, 116], 124
    RB, WOA, IDX = 128, 129, 15
    GA = 130
    ZR, QR, WL, OS = 136, 144, 152, 168
    SM = f"v_smfmac_f32_16x16x64_bf16 {v(L,4)}, {v(ON,4)}, {v(P,8)}, v{IDX}"

    def att_ids():
        A("s_and_b32 s4, s2, 6")
        A("s_lshl_b32 s4, s4, 2")
        A("s_lshr_b32 s5, s2, 6")
        A("s_lshl_b32 s5, s5, 1")
        A("s_or_b32 s4, s4, s5")
        A("s_bfe_u32 s5, s2, 0x10003")
        A("s_or_b32 s4, s4, s5")
        A("s_and_b32 s5, s2, 1")
        A("s_lshl_b32 s5, s5, 2")
        A("s_bfe_u32 s6, s2, 0x20004")
        A("s_or_b32 s5, s5, s6")

    def p2_setup():
        att_ids()
        A("s_lshl_b32 s6, s4, 18")
        A(f"s_add_u32 s6, s6, {WS_KV}")
        A("s_lshl_b32 s13, s3, 11")
        A("s_add_u32 s12, s6, s13")
        A("s_add_u32 s12, s12, 32768")
        A(f"s_add_u32 s13, s13, {RING}")
        A("s_lshl_b32 s14, s5, 3")
        A("s_add_u32 s14, s14, s3")
        A("s_lshl_b32 s15, s14, 5")
        A("s_add_u32 s15, s15, s4")
        A("s_lshl_b32 s58, s5, 5")
        A("s_add_u32 s58, s58, s4")
        A("s_lshl_b32 s58, s58, 7")
        A(f"s_add_u32 s58, s58, {F2}")
        A("s_lshl_b32 s57, s2, 7")
        A(f"s_add_u32 s57, s57, {FZ}")
        A("s_cmp_eq_u32 s3, 4")
        A("s_cselect_b32 s57, s57, 0x7fff0000")
        A("s_cselect_b32 s58, s58, 0x7fff0000")
        A("s_lshl_b32 s15, s15, 11")
        A(f"s_add_u32 s15, s15, {WS_OF}")
        A(f"v_add_u32 v{RB}, {RING}, v1")
        A(f"v_add_u32 v3, s13, v1")
        A("s_bfe_u32 s40, s2, 0x20001")
        A("s_lshl_b32 s40, s40, 2")
        A("s_bfe_u32 s41, s2, 0x20003")
        A("s_or_b32 s40, s40, s41")
        A("s_and_b32 s41, s2, 1")
        A("s_lshl_b32 s41, s41, 3")
        A("s_lshr_b32 s42, s2, 5")
        A("s_or_b32 s41, s41, s42")
        srd(A, 44, P_WO, 2 * MB)
        srd(A, 52, P_Q, 4 * MB)
        A("v_lshrrev_b32 v5, 3, v0")
        A("v_and_b32 v6, 7, v0")
        A("v_bfe_u32 v7, v0, 4, 1")
        A("v_lshlrev_b32 v7, 2, v7")
        A("v_xor_b32 v7, v7, v6")
        A("v_lshlrev_b32 v7, 4, v7")
        A(f"v_lshl_add_u32 v{WOA}, v5, 11, v7")
        A("s_lshl_b32 s48, s3, 14")
        A("s_lshl_b32 s49, s41, 7")
        A("s_add_u32 s48, s48, s49")
        A("s_lshl_b32 s49, s3, 10")
        A("s_mov_b32 s43, s49")
        A("s_and_b32 s59, s3, 3")
        A("s_lshl_b32 s50, s40, 2")
        A("s_add_u32 s59, s59, s50")
        A("s_lshl_b32 s59, s59, 1")
        A("s_lshr_b32 s50, s3, 2")
        A("s_add_u32 s59, s59, s50")
        A("s_lshl_b32 s60, s59, 15")
        A(f"s_add_u32 s60, s60, {WS_OF}")
        A("s_lshr_b32 s59, s40, 1")
        A("s_lshl_b32 s59, s59, 1")
        A("s_add_u32 s59, s59, s50")
        A("s_lshl_b32 s59, s59, 11")
        A(f"s_add_u32 s59, s59, {F2}")
        A("s_lshr_b32 s50, s2, 4")
        A("s_lshl_b32 s50, s50, 7")
        A("s_lshl_b32 s51, s3, 4")
        A("s_add_u32 s50, s50, s51")
        A("s_and_b32 s51, s2, 15")
        A("s_lshl_b32 s56, s51, 11")
        A(f"s_add_u32 s56, s56, {FZ}")
        A("s_lshl_b32 s51, s51, 6")
        A(f"v_lshl_add_u32 v5, v5, 1, s50")
        A(f"v_lshl_add_u32 v6, v6, 3, s51")
        A(f"v_lshlrev_b32 v{GA+2}, 1, v5")
        A(f"v_lshl_add_u32 v{GA+2}, v6, 12, v{GA+2}")
        A(f"v_lshlrev_b32 v{GA+3}, 1, v6")
        A(f"v_lshl_add_u32 v{GA+4}, v5, 11, v{GA+3}")
        A(f"v_lshl_add_u32 v{GA+3}, v5, 12, v{GA+3}")
        A("s_and_b32 s61, s41, 3" if 'norot3' not in OPT else "s_mov_b32 s61, 0")
        A("s_lshl_b32 s61, s61, 2")
        A(f"v_add_u32 v{GA+1}, s61, v0")
        A(f"v_and_b32 v{GA+1}, 15, v{GA+1}")
        A(f"v_lshlrev_b32 v{GA+1}, 7, v{GA+1}")
        A(f"v_add_u32 v{GA}, s43, v{RB}")
        A("s_lshr_b32 s63, 0x00110011, s61")
        A("s_and_b32 s63, s63, 0x1111")
        A("s_cmp_lt_u32 s3, 4")
        A("s_cselect_b32 s63, 0x1111, s63")
        A("s_mov_b32 s27, 0x7fff0000")
        A("s_mov_b32 s28, 0x7fff0000")
        A("v_bfe_u32 v5, v0, 2, 1")
        A("v_cmp_eq_u32 vcc, 0, v5")
        A("v_mov_b32 v6, 0x3f803f80")
        A("v_and_b32 v5, 1, v0")
        A(f"v_cndmask_b32 v{ON}, 0, v6, vcc")
        A(f"v_xor_b32 v{ON+2}, v6, v{ON}")
        A(f"v_mov_b32 v{ON+1}, v{ON}")
        A(f"v_mov_b32 v{ON+3}, v{ON+2}")
        A(f"v_mul_u32_u24 v{IDX}, 0xaaaa, v5")
        A(f"v_add_u32 v{IDX}, 0x4444, v{IDX}")
        for r in range(4):
            A(f"v_mov_b32 v{L+r}, 0")


    A(f".globl {NAME}")
    A(".p2align 8")
    A(f".type {NAME},@function")
    A(f"{NAME}:")
    A("s_cmp_ge_u32 s2, 256")
    A("s_cbranch_scc1 K_END")
    A("s_load_dwordx16 s[16:31], s[0:1], 0")
    A("s_load_dwordx8 s[32:39], s[0:1], 64")
    A("v_lshrrev_b32 v1, 6, v0")
    A("v_and_b32 v0, 63, v0")
    A("v_readfirstlane_b32 s3, v1")
    stamp(A, 0)
    A("s_and_b32 s4, s2, 1")
    A("s_lshl_b32 s4, s4, 3")
    A("s_bfe_u32 s5, s2, 0x30003")
    A("s_or_b32 s4, s4, s5")
    A("s_bfe_u32 s5, s2, 0x20001")
    A("s_lshl_b32 s5, s5, 2")
    A("s_lshr_b32 s6, s2, 6")
    A("s_or_b32 s5, s5, s6")
    A("v_lshlrev_b32 v1, 4, v0")
    A("v_mov_b32 v2, 0")
    A(f"v_and_b32 v{FA}, 15, v0")
    A(f"v_lshlrev_b32 v{FA}, 7, v{FA}")
    A("s_cmp_lt_u32 s3, 4")
    A("s_cbranch_scc0 P1_LOADER")
    if 'nocp' not in OPT:
        A("s_and_b32 s6, s2, 0x30")
        A("s_cbranch_scc1 P1_COMPUTE")
        A("s_getpc_b64 s[40:41]")
        A("s_bfe_u32 s6, s2, 0x10003")
        A("s_lshl_b32 s6, s6, 2")
        A("s_add_u32 s6, s6, s3")
        A("s_min_u32 s6, s6, CODE_CHUNKS")
        A("s_lshl_b32 s6, s6, 13")
        A("v_lshl_add_u32 v3, v0, 7, s6")
        A("global_load_dword v255, v3, s[40:41]")
    A("s_branch P1_COMPUTE")

    A("P1_LOADER:")
    A("s_sub_u32 s6, s3, 4")
    A("v_lshrrev_b32 v3, 3, v0")
    A("v_and_b32 v4, 7, v0")
    A("v_lshrrev_b32 v11, 4, v0")
    A("v_xor_b32 v5, v4, v11")
    A("v_lshlrev_b32 v5, 4, v5")
    A("v_lshl_add_u32 v5, v3, 11, v5")
    A("v_xor_b32 v6, 64, v5")
    A(f"v_add_u32 v6, {15360}, v6")
    A(f"v_add_u32 v7, {2*15360}, v5")
    A(f"v_add_u32 v8, {2*15360}, v6")
    A("v_and_b32 v9, 1, v11")
    A("v_lshlrev_b32 v9, 2, v9")
    A("v_xor_b32 v9, v9, v4")
    A("v_lshlrev_b32 v9, 4, v9")
    A("v_mul_u32_u24 v10, 6144, v3")
    A("v_add_u32 v9, v9, v10")
    A(f"v_add_u32 v10, {49152-1024}, v9")
    A("s_lshl_b32 s12, s4, 18")
    A("s_lshl_b32 s13, s6, 16")
    A("s_add_u32 s96, s12, s13")
    A(f"s_mul_i32 s13, s6, {16*6144}")
    A("s_lshl_b32 s14, s5, 7")
    A("s_add_u32 s97, s13, s14")
    A("s_add_u32 s95, s4, s5")
    A("s_add_u32 s94, s95, s5")
    A("s_and_b32 s94, s94, 7")
    A(f"s_and_b32 s95, s95, {os.environ.get('XM', 3)}")
    A("s_mul_i32 s15, s6, 10240")
    A("s_waitcnt lgkmcnt(0)")
    srd(A, 40, P_X, 4 * MB)
    srd(A, 44, P_W, 6 * MB)

    vm = []
    fill = []

    def F(n):
        for _ in range(n):
            if fill:
                A(fill.pop(0))

    def issue_stage(st, nf=0):
        slot = st % 4
        G8 = [int(x) for x in os.environ.get('G8', '').split(',') if x]
        A(f"s_xor_b32 s14, s{94 if st // 8 in G8 else 95}, {st}")
        A("s_lshl_b32 s12, s14, 7")
        A(f"s_add_u32 m0, s15, {slot*SLOT}")
        A("s_add_u32 s12, s12, s96")
        for j in range(4):
            A(f"buffer_load_dwordx4 v{5+j}, s[40:43], s12 offen offset:{j*1024}{NTX} lds")
            F(nf)
        A(f"s_mul_i32 s14, s14, {64*6144}")
        A(f"s_add_u32 m0, s15, {slot*SLOT+4096}")
        A("s_add_u32 s13, s14, s97")
        for t in range(4):
            A(f"buffer_load_dwordx4 v{9+(t&1)}, s[44:47], s13 offen offset:{t*1024}{NTW} lds")
            F(nf)
        A(f"s_add_u32 m0, s15, {slot*SLOT+8192}")
        A("s_add_u32 s13, s13, 4096")
        for t in range(2):
            A(f"buffer_load_dwordx4 v{9+t}, s[44:47], s13 offen offset:{t*1024}{NTW} lds")
            F(nf)
        vm.extend([('st', st)] * 10)

    def wait_tag(tag):
        last = max(i for i, t in enumerate(vm) if t == tag)
        A(f"s_waitcnt vmcnt({len(vm) - 1 - last})")
        del vm[:last + 1]

    issue_stage(0)
    issue_stage(1)

    KR, VR, WR, T, OUT = 20, 42, 60, 68, 104
    srd(A, 48, P_K, 4 * MB)
    srd(A, 52, P_V, 4 * MB)
    srd(A, 60, P_SH, 8192)
    A("s_lshr_b32 s7, s2, 4")
    A("s_lshl_b32 s7, s7, 7")
    A("s_lshl_b32 s64, s6, 5")
    A("s_add_u32 s7, s7, s64")
    A("s_and_b32 s64, s2, 15")
    A("s_lshl_b32 s64, s64, 6")
    A("v_lshl_add_u32 v11, v11, 3, s7")
    A("v_and_b32 v12, 15, v0")
    A("v_lshl_add_u32 v12, v12, 2, s64")
    A("v_lshlrev_b32 v13, 1, v12")
    A("v_lshl_add_u32 v15, v11, 11, v13")
    A("v_subrev_u32 v13, 6144, v15")
    A("v_subrev_u32 v14, 2048, v15")
    A("v_lshlrev_b32 v17, 3, v12")
    A("s_movk_i32 s64, 0x1000")
    A("s_movk_i32 s65, 0x2000")
    A("s_movk_i32 s66, 0x3000")
    so4 = ['0', 's64', 's65', 's66']
    rows = [(13, '0', 0), (13, '0', 2048), (14, '0', 0)] + [(15, so4[i // 2], 2048 * (i & 1)) for i in range(8)]

    def prep_loads():
        if 'nopl' in OPT:
            return
        for i in range(2):
            A(f"buffer_load_dwordx4 {v(WR+4*i,4)}, v17, s[60:63], 0 offen offset:{16*i}")
        for i, (a, so, o) in enumerate(rows):
            A(f"buffer_load_dwordx2 {v(KR+2*i,2)}, v{a}, s[48:51], {so} offen offset:{o}{NT}")
        for i, (a, so, o) in enumerate(rows[3:]):
            A(f"buffer_load_dwordx2 {v(VR+2*i,2)}, v{a}, s[52:55], {so} offen offset:{o}{NT}")
        vm.extend(['prep'] * 21)
    ST_PL = int(os.environ.get('ST_PL', -1))
    if ST_PL < 0:
        prep_loads()
    A("v_sub_u32 v18, 2040, v11")
    A("v_lshlrev_b32 v18, 1, v18")
    A("v_lshl_add_u32 v18, v12, 12, v18")
    A(f"v_add_u32 v18, {WS_UT}, v18")
    srd(A, SRD_WS, P_WS, WS_SIZE)
    srd(A, 56, P_DBG, 256)

    prep = []
    for j in range(4):
        dw, hi = j // 2, j & 1

        def unp(dst, src):
            return f"v_and_b32 v{dst}, 0xffff0000, v{src}" if hi else f"v_lshlrev_b32 v{dst}, 16, v{src}"
        for i in range(11):
            prep.append(unp(T + i, KR + 2 * i + dw))
        prep.append(f"v_lshlrev_b32 v{T+11}, 16, v{WR+2*j}")
        prep.append(f"v_and_b32 v{T+12}, 0xffff0000, v{WR+2*j}")
        prep.append(f"v_lshlrev_b32 v{T+13}, 16, v{WR+2*j+1}")
        prep.append(f"v_and_b32 v{T+14}, 0xffff0000, v{WR+2*j+1}")
        for i in range(8):
            prep.append(f"v_mul_f32 v{T+15+i}, v{T+i}, v{T+14}")
        for t in (2, 1, 0):
            for i in range(8):
                prep.append(f"v_fmac_f32 v{T+15+i}, v{T+3+i-t}, v{T+11+t}")
        for i in range(8):
            prep.append(unp(T + i, VR + 2 * i + dw))
        for i in range(8):
            prep.append(f"v_mul_f32 v{T+15+i}, v{T+15+i}, v{T+i}")
        for i in range(4):
            prep.append(f"v_cvt_pk_bf16_f32 v{OUT+4*j+i}, v{T+15+7-2*i}, v{T+15+6-2*i}")

    def h_loads():
        A("s_lshl_b32 s7, s2, 2")
        A("s_add_u32 s7, s7, s6")
        A("s_lshl_b32 s64, s7, 12")
        A(f"s_mul_i32 s65, s6, {HCS}")
        A(f"s_mul_i32 s66, s6, {U_SZ}")
        A(f"s_add_u32 s66, s66, {U_BASE}")
        srd(A, 48, P_SSMK, 4 * MB)
        srd(A, 52, P_D, 2048)
        A("v_add_u32 v205, s65, v1")

    def h_loads2():
        if 'nohl' in OPT:
            return
        A("s_lshr_b32 s7, s64, 12")
        HN = NT if ('hnt' in OPT or 'hall' in OPT) else ''
        for j in range(4):
            A(f"buffer_load_dwordx4 {v(HD+8*j,4)}, v1, s[48:51], s64 offen offset:{1024*j}{HN}")
        if 'nodpp' in OPT:
            for j in range(4):
                A(f"buffer_load_dwordx2 {v(HD+8*j+4,2)}, v1, s[48:51], s64 offen offset:{1024*j+16}{HN}")
            A("buffer_load_dwordx2 v[200:201], v2, s[48:51], s64 offen")
            vm.extend(['h'] * 5)
        A("s_lshl_b32 s7, s7, 1")
        A("buffer_load_ushort v202, v2, s[52:55], s7 offen")
        vm.extend(['h'] * 5)

    HD = 120

    def h_write(c):
        if 'hall' in OPT and not c & 1:
            for j in range(4):
                if c == 4:
                    src = HD + 8 * j + 2
                else:
                    src = 208 + 4 * (j & 1)
                    for i in range(4):
                        A(f"v_mov_b32 v{src+i}, v{HD+8*j+1+i}")
                A(f"ds_write_b128 v205, {v(src,4)} offset:{(c-1)*HC_STRIDE+32+1024*j}")
            return
        if c & 1:
            for j in range(4):
                d = HD + 8 * j + (c >> 1)
                o = 208 + 4 * (j & 1)
                for i in range(4):
                    A(f"v_alignbit_b32 v{o+i}, v{d+i+1}, v{d+i}, 16")
                A(f"ds_write_b128 v205, {v(o,4)} offset:{(c-1)*HC_STRIDE+32+1024*j}")
            return
        A(f"s_add_u32 s7, s64, {2*c}")
        A(f"s_add_u32 m0, s65, {(c-1)*HC_STRIDE+32}")
        A("s_nop 0")
        for j in range(4):
            A(f"buffer_load_dwordx4 v1, s[48:51], s7 offen offset:{j*1024} lds")
        vm.extend(['cv'] * 4)

    FR, UR, YR = [16, 92], [48, 136], 168
    csetup = [
        "v_lshrrev_b32 v221, 1, v0",
        f"v_mul_u32_u24 v221, {HC_STRIDE}, v221",
        "v_and_b32 v222, 1, v0",
        "v_lshl_add_u32 v221, v222, 4, v221",
        "v_add_u32 v221, s65, v221",
        "v_subrev_u32 v222, 8, v0",
        "v_min_u32 v222, 31, v222",
        "v_lshlrev_b32 v222, 4, v222",
        "v_add_u32 v222, 4096, v222",
        "v_add_u32 v222, s66, v222",
        "v_cmp_gt_u32 vcc, 8, v0"] + [f"v_mov_b32 v{YR+r}, 0" for r in range(32)] + [
        "v_cndmask_b32 v221, v222, v221, vcc",
        "v_and_b32 v222, 3, v0",
        f"v_mul_u32_u24 v223, {HC_STRIDE}, v222",
        "v_lshlrev_b32 v222, 1, v222",
        "v_sub_u32 v222, v223, v222",
        "v_add_u32 v222, 30, v222",
        "v_add_u32 v222, s65, v222",
        "v_lshrrev_b32 v224, 4, v0",
        "v_lshl_add_u32 v223, v224, 4, v223",
        "v_bfe_u32 v225, v0, 2, 2",
        "v_lshl_add_u32 v223, v225, 3, v223",
        "v_add_u32 v223, s65, v223",
        "v_and_b32 v225, 15, v0",
        "v_lshlrev_b32 v226, 5, v225",
        "v_lshlrev_b32 v227, 4, v224",
        "v_sub_u32 v227, v227, v226",
        "v_lshl_add_u32 v226, v224, 3, v226",
        "v_add_u32 v227, 480, v227",
        "v_add_u32 v224, s66, v227",
        f"v_sub_u32 v225, {4088-3584}, v226",
        "v_add_u32 v225, s66, v225",
        f"v_mov_b32 v227, {CNT_LDS}",
    ]
    if 'nodpp' not in OPT:
        for j in range(4):
            for i in range(2):
                csetup.append(f"v_mov_b32_dpp v{HD+8*j+4+i}, v{HD+8*j+i} wave_shl:1 row_mask:0xf bank_mask:0xf bound_ctrl:0")
        for j in range(4):
            for i in range(2):
                csetup.append(f"v_readlane_b32 s{60+i}, v{HD+8*j+i}, 0")
            csetup.append("s_nop 2")
            for i in range(2):
                csetup.append(f"v_writelane_b32 v{HD+8*(j-1)+4+i}, s{60+i}, 63" if j else f"v_mov_b32 v{200+i}, s{60+i}")
    ST_H = int(os.environ.get('ST_H', 0))
    ST_PC = ST_PL + LA + 1
    NF = int(os.environ.get('NF', 9))
    ST_UT = ST_PC + (268 + 10 * NF - 1) // (10 * NF) - 1
    ST_SIG = ST_UT + LA + 1
    ST_CU = int(os.environ.get('ST_CU', 10))
    ST_UCHK = int(os.environ.get('ST_UCHK', 14))
    assert ST_UCHK >= ST_CU + LA + 1
    assert ST_H >= ST_PL and ST_SIG < ST_CU and ST_CU + LA + 1 <= 15
    SPF = [int(x) for x in os.environ.get('SPF', '').split(',') if x]
    SPG = [int(x) for x in os.environ.get('SPG', '2,3').split(',')]

    def spf(grp):
        A(f"s_add_u32 s62, s2, {256*grp}")
        A("s_mul_i32 s62, s62, 6144")
        A("s_mul_i32 s63, s6, 1536")
        A("s_add_u32 s62, s62, s63")
        A(f"s_add_u32 s62, s62, s{P_W}")
        A(f"s_addc_u32 s63, s{P_W+1}, 0")
        for j in range(12):
            A(f"s_load_dword s99, s[62:63], {128*j}")

    if ST_H < 0:
        h_loads()
        h_loads2()
    for st in range(16):
        if st - 1 in SPF:
            spf(SPG[SPF.index(st - 1)])
        wait_tag(('st', st))
        A("s_barrier")
        if st == ST_PC:
            assert 'prep' not in vm
            fill.extend(prep)
        if st == 0:
            for k in range(2, LA + 1):
                issue_stage(k)
        elif st + LA < 16:
            issue_stage(st + LA, NF)
        if st == ST_PL:
            prep_loads()
        if st == max(ST_PL, 0) and ST_H >= 0:
            h_loads()
        if st == ST_H:
            h_loads2()
        if st == ST_UT:
            A("buffer_load_dword v19, v2, s[56:59], 0 offen sc1")
            vm.append('if')
            F(len(fill))
            A("s_movk_i32 s7, 0x1000")
            A("s_movk_i32 s12, 0x2000")
            A("s_movk_i32 s13, 0x3000")
            for j, so in enumerate(['0', 's7', 's12', 's13'] if 'nout' not in OPT else []):
                A(f"buffer_store_dwordx4 {v(OUT+4*j,4)}, v18, {WS}, {so} offen{SC}{NTU}")
                vm.append('ut')
        if st == ST_SIG:
            assert 'ut' not in vm and 'if' not in vm
            check_or_poll(A, 'INITP', 's[56:59]', 2, '0', 19, 16)
            A("s_cmp_lg_u32 s6, 0")
            A("s_cbranch_scc1 NOSIGU")
            A("s_and_b32 s7, s2, 15")
            A("s_lshl_b32 s7, s7, 4")
            A("s_lshr_b32 s12, s2, 4")
            A("s_add_u32 s7, s7, s12")
            A("s_lshl_b32 s7, s7, 7")
            A(f"s_add_u32 s7, s7, {FU}")
            setflag(A, 's7', 11)
            A("NOSIGU:")
        if st == ST_CU:
            A("s_lshr_b32 s7, s2, 4")
            A("s_lshl_b32 s7, s7, 11")
            A(f"s_add_u32 s67, s7, {FU}")
            A(f"buffer_load_dword v19, v{FA}, {WS}, s67 offen sc1")
            vm.append('cu')
        if st == ST_UCHK:
            assert 'cu' not in vm
            all_set(A, 19)
            A("s_cbranch_scc0 NOUT")
            A(f"s_add_u32 s12, s64, {WS_UT}")
            A("v_min_u32 v203, 31, v0")
            A("v_lshlrev_b32 v203, 7, v203")
            A(f"buffer_load_dword v204, v203, {WS}, s12 offen sc1{NTU}")
            A("NOUT:")
        if st == ST_UT + 1:
            assert 'h' not in vm or 'nodpp' in OPT
            fill.extend(csetup)
        if st == 14:
            A(f"buffer_load_dword v19, v{FA}, {WS}, s67 offen sc1")
            vm.append('cu2')
            F(len(fill))
            if 'h' not in vm:
                for c in (2, 4, 1, 3):
                    h_write(c)
                hdone = True
            else:
                hdone = False
    A(f"ds_write_b128 v221, {v(YR,4)}")
    A("ds_write_b32 v227, v2")
    A(f"s_add_u32 s12, s64, {WS_UT}")
    A("s_mov_b32 m0, s66")
    wait_tag('cu2')
    all_set(A, 19)
    A("s_cbranch_scc1 U_EARLY")
    A("s_waitcnt lgkmcnt(0)")
    A("s_barrier")
    poll(A, 'POLLU', WS, FA, 's67', 19)
    for j in range(4):
        A(f"buffer_load_dwordx4 v1, {WS}, s12 offen offset:{j*1024}{SC}{NTL} lds")
    A("s_branch U_JOIN")
    A("U_EARLY:")
    for j in range(4):
        A(f"buffer_load_dwordx4 v1, {WS}, s12 offen offset:{j*1024}{SC}{NTL} lds")
    A("s_waitcnt lgkmcnt(0)")
    A("s_barrier")
    A("U_JOIN:")
    stamp(A, 1)
    A("s_waitcnt vmcnt(4)")
    if not hdone:
        for c in (2, 4, 1, 3):
            h_write(c)
    A("v_lshlrev_b32 v220, 16, v202")
    A("ds_write_b64 v222, v[200:201]")
    A(f"s_add_u32 s7, s64, {WS_ZT}")
    A("v_add_u32 v216, s7, v226")
    p2_setup()
    pairs = [(a, b) for a in range(8) for b in range(8) if a + b <= 7]

    def cF(rho):
        o = []
        for a in range(8):
            o.append(f"ds_read_b64 {v(FR[rho&1]+4*a,2)}, v223 offset:{512*a+64*rho}")
            o.append(f"ds_read_b64 {v(FR[rho&1]+4*a+2,2)}, v223 offset:{512*a+64*rho+8}")
        return o

    def cU(rho):
        return [f"ds_read_b128 {v(UR[rho&1]+4*b,4)}, v224 offset:{512*(7-b)+64*rho}" for b in range(8)]

    for x in cF(0):
        A(x)
    A("s_waitcnt vmcnt(0)")
    for x in cU(0):
        A(x)
    stamp(A, 2)
    A("s_mov_b32 s7, 0")
    A("CONV_LOOP:")
    for rho in range(2):
        A("s_waitcnt lgkmcnt(0)")
        nxt = cU(rho + 1) + cF(rho + 1)
        if rho == 1:
            nxt += ["v_add_u32 v223, 128, v223", "v_add_u32 v224, 128, v224", "s_add_u32 s7, s7, 1", "s_cmp_lt_u32 s7, 3"]
        for i, (a, b) in enumerate(pairs):
            G = a + b
            A(mfma16(YR + 4 * G, FR[rho] + 4 * a, UR[rho] + 4 * b, YR + 4 * G))
            if i < len(nxt):
                A(nxt[i])
    A("s_cbranch_scc1 CONV_LOOP")
    A("s_waitcnt lgkmcnt(0)")
    nxt = cU(1) + cF(1)
    for i, (a, b) in enumerate(pairs):
        A(mfma16(YR + 4 * (a + b), FR[0] + 4 * a, UR[0] + 4 * b, YR + 4 * (a + b)))
        if i < len(nxt):
            A(nxt[i])
    for G in range(8):
        A(f"ds_read_b64 {v(FR[0]+2*G,2)}, v225 offset:{512*(7-G)}")
    A("s_waitcnt lgkmcnt(8)")

    def cepi(G):
        y, t_, f = YR + 4 * G, UR[0] + 4 * (G & 1), FR[0]
        return [f"v_and_b32 v{t_}, 0xffff0000, v{f+2*G+1}", f"v_lshlrev_b32 v{t_+1}, 16, v{f+2*G+1}",
                f"v_and_b32 v{t_+2}, 0xffff0000, v{f+2*G}", f"v_lshlrev_b32 v{t_+3}, 16, v{f+2*G}"] + \
               [f"v_fmac_f32 v{y+r}, v{t_+r}, v220" for r in range(4)] + \
               [f"v_cvt_pk_bf16_f32 v{200+2*G}, v{y}, v{y+1}", f"v_cvt_pk_bf16_f32 v{201+2*G}, v{y+2}, v{y+3}"]

    last = [(a, G - a) for G in range(8) for a in range(G + 1)]
    done_at = {G: (G + 1) * (G + 2) // 2 - 1 for G in range(8)}
    q = []
    nextG = 0
    for i, (a, b) in enumerate(last):
        A(mfma16(YR + 4 * (a + b), FR[1] + 4 * a, UR[1] + 4 * b, YR + 4 * (a + b)))
        if i == 5:
            A("s_waitcnt lgkmcnt(0)")
        while nextG < 7 and i >= max(done_at[nextG] + 3, 6):
            q += cepi(nextG)
            nextG += 1
        for _ in range(2):
            if q:
                A(q.pop(0))
    for x in q:
        A(x)
    e7 = cepi(7)
    for x in e7:
        A(x)
    stamp(A, 3)
    A("s_branch P2_JOIN")

    A("P1_COMPUTE:")
    ACC = 64
    XF = [16, 40, 176, 200]
    WF = [24, 48, 184, 208]
    XA = 160
    WA = 168
    A("s_lshr_b32 s6, s3, 1")
    A("s_and_b32 s7, s3, 1")
    A("v_and_b32 v6, 31, v0")
    A("v_lshrrev_b32 v3, 5, v0")
    A("v_bfe_u32 v4, v0, 1, 3")
    A("v_xor_b32 v4, v4, v3")
    A("v_lshlrev_b32 v4, 4, v4")
    A("v_lshl_add_u32 v4, v6, 7, v4")
    A("s_mul_i32 s12, s6, 20480")
    A("v_add_u32 v4, s12, v4")
    for ks in range(4):
        if ks == 0:
            A(f"v_mov_b32 v{XA}, v4")
        else:
            A(f"v_xor_b32 v{XA+ks}, {32*ks}, v4")
        A(f"v_add_u32 v{XA+4+ks}, {2*SLOT}, v{XA+ks}")
    A("v_bfe_u32 v5, v0, 2, 2")
    A("v_lshlrev_b32 v6, 7, v5")
    A("v_lshl_add_u32 v6, v3, 10, v6")
    A("v_bfe_u32 v7, v0, 3, 1")
    A("v_xor_b32 v7, s7, v7")
    A("v_lshl_add_u32 v6, v7, 6, v6")
    A("v_bfe_u32 v7, v0, 4, 1")
    A("v_lshl_add_u32 v6, v7, 5, v6")
    A("v_and_b32 v7, 3, v0")
    A(f"v_lshl_add_u32 v{WA}, v7, 3, v6")
    for sl in range(1, 4):
        A(f"v_add_u32 v{WA+sl}, {sl*SLOT}, v{WA}")
    A("s_lshl_b32 s12, s5, 1")
    A("s_add_u32 s12, s12, s7")
    A("s_lshl_b32 s7, s5, 4")
    A("s_add_u32 s7, s7, s4")
    A("s_lshl_b32 s7, s7, 7")
    A(f"s_add_u32 s7, s7, {F1}")
    A("s_lshl_b32 s12, s12, 6")
    A("s_lshl_b32 s13, s4, 2")
    A("s_add_u32 s12, s12, s13")
    A("s_lshl_b32 s13, s6, 1")
    A("s_add_u32 s12, s12, s13")
    A("s_lshl_b32 s13, s12, 11")
    A("s_lshl_b32 s14, s12, 12")
    A(f"s_add_u32 s14, s14, {WS_KV}")
    A("s_add_u32 s15, s14, 4096")
    A("s_and_b32 s12, s4, 1")
    A("s_lshl_b32 s42, s12, 13")
    A("s_lshl_b32 s43, s6, 12")
    A("s_add_u32 s42, s42, s43")
    A(f"s_add_u32 s42, s42, {RING+3*16384}")
    A("s_sub_u32 s43, s42, 16384")
    A("s_and_b32 s44, s3, 1")
    A("s_cmp_eq_u32 s44, s12")
    A("s_cselect_b32 s42, s42, s43")
    A("s_cselect_b32 s13, 0x7fff0000, s13")
    A("v_add_u32 v10, s42, v1")
    A(f"s_mov_b32 s12, {QSCALE:#x}")
    A("s_waitcnt lgkmcnt(0)")
    srd(A, SRD_WS, P_WS, WS_SIZE)
    if os.environ.get('SPF'):
        A("s_lshl_b32 s42, s2, 14")
        A("s_lshl_b32 s43, s3, 12")
        A("s_add_u32 s42, s42, s43")
        A(f"s_add_u32 s42, s42, s{P_X}")
        A(f"s_addc_u32 s43, s{P_X+1}, 0")
        g0 = min(int(x) for x in os.environ.get('SPG', '2,3').split(','))
        for ln in range(4 * g0, 16):
            for r in range(2):
                A(f"s_load_dword s99, s[42:43], {2048*r+128*ln}")
    if 'tlb' in OPT:
        A("s_bfe_u32 s42, s2, 0x20004")
        A("s_lshl_b32 s42, s42, 2")
        A("s_add_u32 s42, s42, s3")
        for k, (p, stride) in enumerate([(P_WS, 393216 + 2048), (P_OUT, 131072), (P_Q, 65536), (P_WO, 32768),
                                         (P_W, 98304), (P_SSMK, 65536)]):
            A(f"s_cmp_lg_u32 s42, {4+k}")
            A(f"s_cbranch_scc1 NOTLB{k}")
            A(f"v_mul_u32_u24 v8, {stride}, v0")
            A(f"global_load_dword v255, v8, s[{p}:{p+1}] sc1")
            A(f"NOTLB{k}:")
    A("s_lshl_b32 s42, s3, 4")
    A("s_or_b32 s42, s42, s2")
    A("s_cmp_ge_u32 s42, 16")
    A("s_cbranch_scc1 NOINIT")
    srd(A, 56, P_DBG, 256)
    A("v_lshlrev_b32 v8, 7, v0")
    A("s_lshl_b32 s42, s2, 13")
    A(f"s_add_u32 s42, s42, {WS_SYNC}")
    A(f"buffer_store_dword v2, v8, {WS}, s42 offen sc1")
    A("v_mov_b32 v9, 1")
    A("s_waitcnt vmcnt(0)")
    A("s_mov_b64 exec, 1")
    A("buffer_atomic_add v9, v2, s[56:59], 0 offen")
    A("s_mov_b64 exec, -1")
    A("NOINIT:")

    def bufof(step):
        return step & 1 if step < 60 else {60: 0, 61: 2, 62: 3, 63: 1}[step]

    def reads(step):
        st, ks = divmod(step, 4)
        slot = st % 4
        b = bufof(step)
        out = []
        xa = XA + 4 * (slot >> 1) + ks
        out.append(f"ds_read_b128 {v(XF[b],4)}, v{xa} offset:{(slot&1)*SLOT}")
        for seg in range(3):
            for j in range(2):
                out.append(f"ds_read_b64_tr_b16 {v(WF[b]+4*seg+2*j,2)}, v{WA+slot} offset:{ks*10240+4096+seg*2048+j*512}")
            if seg == 0:
                out.append(f"ds_read_b128 {v(XF[b]+4,4)}, v{xa} offset:{(slot&1)*SLOT+10240}")
        return out

    def mf(step, seg, rt):
        b = bufof(step)
        d = ACC + 16 * (3 * rt + seg)
        c = d
        if seg < 2:
            return mfma32(d, WF[b] + 4 * seg, XF[b] + 4 * rt, c)
        return mfma32(d, XF[b] + 4 * rt, WF[b] + 4 * seg, c)

    def epi(seg, rt):
        d = ACC + 16 * (3 * rt + seg)
        out = []
        if seg == 0:
            for r in range(16):
                out.append(f"v_mul_f32 v{d+r}, s12, v{d+r}")
        for r in range(8):
            out.append(f"v_cvt_pk_bf16_f32 v{d+r}, v{d+2*r}, v{d+2*r+1}")
        so, off = [('s13', rt * 2048), (('s14', 's15')[rt], 0), (('s14', 's15')[rt], 2048)][seg]
        out.append(f"buffer_store_dwordx4 {v(d,4)}, v1, {WS}, {so} offen offset:{off}{SC}{NTS}")
        out.append(f"buffer_store_dwordx4 {v(d+4,4)}, v1, {WS}, {so} offen offset:{off+1024}{SC}{NTS}")
        if seg == 0:
            out.append(f"ds_write_b128 v10, {v(d,4)} offset:{off}")
            out.append(f"ds_write_b128 v10, {v(d+4,4)} offset:{off+1024}")
        return out

    for r in range(96):
        A(f"v_mov_b32 v{ACC+r}, 0")
    A("s_mov_b32 s6, 0")
    A("s_barrier")
    stamp(A, 1)
    stamp1(A, 1)
    for r in reads(0):
        A(r)

    def gstep(step):
        m = [mf(step, seg, rt) for seg in range(3) for rt in range(2)]
        nxt = reads(step + 1)
        A("s_waitcnt lgkmcnt(0)")
        A(m[0])
        if (step + 1) % 4 == 0:
            A("s_barrier")
            bs = (step + 1) // 4
            P1S = tuple(int(x) for x in os.environ.get('P1S', '2,4,6,8,9,10,11,12,14').split(','))
            if bs in P1S:
                stamp1(A, 2 + P1S.index(bs))
        if step == 59:
            nxt = reads(60) + reads(61) + reads(62)
            gaps = [nxt[0:4], nxt[4:8], nxt[8:12], nxt[12:16], nxt[16:20], nxt[20:24]]
        else:
            gaps = [nxt[0:3], nxt[3:5], nxt[5:7], nxt[7:8], [], []]
        if step == 15 and 'p1' not in OPT:
            gaps[4] = ["s_add_u32 s6, s6, 1", "s_cmp_lt_u32 s6, 3"]
        for x in gaps[0]:
            A(x)
        for k in range(1, 6):
            A(m[k])
            for x in gaps[k]:
                A(x)

    if 'p1' in OPT:
        for step in range(48):
            gstep(step)
    else:
        A("P1_LOOP:")
        for step in range(16):
            gstep(step)
        A("s_cbranch_scc1 P1_LOOP")
    for step in range(48, 60):
        gstep(step)
    for x in reads(63):
        A(x)
    order = [(0, 0), (0, 1), (1, 0), (1, 1), (2, 0), (2, 1)] if 'qlast' not in OPT else [(1, 0), (1, 1), (2, 0), (2, 1), (0, 0), (0, 1)]
    pend = []
    A("s_waitcnt lgkmcnt(8)" if 'p1' not in OPT else "s_waitcnt lgkmcnt(0)")
    for ti, (seg, rt) in enumerate(order):
        if ti >= 2:
            pend = epi(*order[ti - 2])
        for k, step in enumerate(range(60, 64)):
            if ti == 0 and k == 3:
                A("s_waitcnt lgkmcnt(0)")
            A(mf(step, seg, rt))
            if ti == 0 and k == 3:
                A("s_barrier")
                stamp1(A, 11)
            if ti == 1 and k in (1, 2):
                A("s_nop 3")
            n = (len(pend) + (3 - k)) // (4 - k)
            for x in pend[:n]:
                A(x)
            pend = pend[n:]
    stamp(A, 2)
    A("v_mov_b32 v216, 0x7fff0000")
    for x in epi(*order[4]) + ["s_nop 0"] + epi(*order[5]):
        A(x)
    att_ids()
    A("s_lshr_b32 s42, s4, 1")
    A("s_lshl_b32 s42, s42, 11")
    A(f"s_add_u32 s42, s42, {F1}")
    A("s_lshl_b32 s12, s4, 18")
    A("s_lshl_b32 s13, s3, 12")
    A("s_add_u32 s12, s12, s13")
    A(f"s_add_u32 s12, s12, {WS_KV}")
    A("s_andn2_b32 s15, 1, s4")
    A("s_lshl_b32 s15, s15, 2")
    A("s_add_u32 s15, s15, s3")
    A("s_lshl_b32 s15, s15, 11")
    A("s_lshl_b32 s14, s4, 17")
    A("s_lshl_b32 s6, s5, 14")
    A("s_add_u32 s14, s14, s6")
    A("s_add_u32 s14, s14, s15")
    A("s_waitcnt vmcnt(0)")
    A(f"v_mov_b32 v3, {CNT_LDS}")
    A("v_mov_b32 v4, 1")
    A("s_mov_b64 exec, 1")
    A("ds_add_rtn_u32 v5, v3, v4")
    A("s_waitcnt lgkmcnt(0)")
    A("v_readfirstlane_b32 s6, v5")
    A("s_mov_b64 exec, -1")
    stamp(A, 3)
    A("s_cmp_lg_u32 s6, 3")
    A("s_cbranch_scc1 NOPOLL1")
    setflag(A, 's7', 4)
    if 'noinc1' in OPT:
        poll(A, 'POLL1', WS, FA, 's42', 5)
    else:
        A("s_lshl_b32 s43, s5, 1")
        A("s_lshl_b32 s43, 3, s43")
        A("s_or_b32 s43, s43, 3")
        A("s_mov_b32 s98, 0")
        A("POLL1:")
        A(f"buffer_load_dword v5, v{FA}, {WS}, s42 offen sc1")
        A("s_waitcnt vmcnt(0)")
        A(f"v_cmp_eq_u32 {MK}, 1, v5")
        A("s_and_b32 s100, s100, s43")
        A("s_cmp_eq_u32 s100, s43")
        A("s_cbranch_scc1 POLL1_OK")
        A(f"s_sleep {SLP}")
        A("s_add_u32 s98, s98, 1")
        A("s_cmp_lt_u32 s98, 0x80000")
        A("s_cbranch_scc1 POLL1")
        A("POLL1_OK:")
    A("v_mov_b32 v4, 64")
    A("ds_write_b32 v3, v4")
    A("s_branch GO1")
    A("NOPOLL1:")
    A("s_mov_b32 s98, 0")
    A("LW1:")
    A("s_sleep 1")
    A("ds_read_b32 v5, v3")
    A("s_add_u32 s98, s98, 1")
    A("s_cmp_ge_u32 s98, 0x800000")
    A("s_cbranch_scc1 GO1")
    A("s_waitcnt lgkmcnt(0)")
    A("v_readfirstlane_b32 s6, v5")
    A("s_cmp_lg_u32 s6, 64")
    A("s_cbranch_scc1 LW1")
    A("GO1:")
    A("s_waitcnt lgkmcnt(0)")
    stamp(A, 4)
    A(f"s_add_u32 m0, s13, {RING}")
    A("s_nop 0")
    for j in range(4):
        A(f"buffer_load_dwordx4 v1, {WS}, s12 offen offset:{j*1024}{SC}{NTL} lds")
    A(f"s_add_u32 m0, s15, {RING+3*16384}")
    A("s_add_u32 s12, s12, 16384")
    for j in range(2):
        A(f"buffer_load_dwordx4 v1, {WS}, s14 offen offset:{j*1024}{SC}{NTL} lds")
    A(f"s_add_u32 m0, s13, {RING+16384}")
    A("s_nop 0")
    for j in range(4):
        A(f"buffer_load_dwordx4 v1, {WS}, s12 offen offset:{j*1024}{SC}{NTL} lds")

    p2_setup()
    A("P2_JOIN:")

    def rdK(t):
        b = t & 1
        o = (t % 16) * 4096
        return [f"ds_read_b128 {v(KF[b],4)}, v{RB} offset:{o}", f"ds_read_b128 {v(KF[b]+4,4)}, v{RB} offset:{o+1024}"]

    def rdV(t):
        b = t & 1
        o = (t % 16) * 4096 + 2048
        return [f"ds_read_b128 {v(VF[b],4)}, v{RB} offset:{o}", f"ds_read_b128 {v(VF[b]+4,4)}, v{RB} offset:{o+1024}"]

    A("s_cmp_lt_u32 s3, 4")
    A("s_cselect_b64 vcc, -1, 0")
    A("s_waitcnt vmcnt(4)")
    stamp(A, 5)
    A("s_barrier")
    stamp(A, 6)
    A(f"ds_read_b128 {v(Q,4)}, v3 offset:{3*16384}")
    A(f"ds_read_b128 {v(Q+4,4)}, v3 offset:{3*16384+1024}")
    for x in rdK(0) + rdK(1) + rdV(0):
        A(x)
    A("s_mov_b32 s14, 0")
    INC1 = 'noinc1' not in OPT
    st2 = [f"s_add_u32 m0, s13, {2*16384}", "s_nop 0", f"buffer_load_dwordx4 v1, {WS}, s12 offen{SC}{NTL} lds",
           f"buffer_load_dwordx4 v1, {WS}, s12 offen offset:1024{SC}{NTL} lds", "s_add_u32 s12, s12, 16384"]
    if INC1:
        A("s_lshr_b32 s42, s4, 1")
        A("s_lshl_b32 s42, s42, 11")
        A(f"s_add_u32 s42, s42, {F1}")
        A(f"buffer_load_dword v{GA+5}, v{FA}, {WS}, s42 offen sc1")
    else:
        for x in st2:
            A(x)
    A("s_waitcnt lgkmcnt(4)")
    A(mfma32(S[1], KF[0], Q, '0'))
    A(mfma32(S[1], KF[0] + 4, Q + 4, S[1]))
    A("s_nop 7")
    A("s_nop 3")
    s1 = S[1]
    A(f"v_max3_f32 v12, v{s1}, v{s1+1}, v{s1+2}")
    for r in range(3, 15, 2):
        A(f"v_max3_f32 v12, v12, v{s1+r}, v{s1+r+1}")
    A(f"v_max_f32 v12, v12, v{s1+15}")
    A("v_mov_b32 v13, v12")
    A("s_nop 1")
    A("v_permlane32_swap_b32 v12, v13")
    A("v_max_f32 v12, v12, v13")
    for r in range(16):
        A(f"v_sub_f32 v{S[0]+r}, v{s1+r}, v12")
    for r in range(16):
        A(f"v_xor_b32 v{NM+r}, 0x80000000, v12")
    stamp(A, 7)

    vq = [('kv', 1)] * 4 + ([('kv', 2)] * 2 if not INC1 else ['f1'])
    TI = int(os.environ.get('TI', 1))

    def vwait(tag):
        if tag not in vq:
            return "s_nop 0"
        lastp = max(i for i, x in enumerate(vq) if x == tag)
        n_ = len(vq) - 1 - lastp
        del vq[:lastp + 1]
        return f"s_waitcnt vmcnt({n_})"

    def ofr(i):
        return 176 + 4 * i if i < 16 else (64 + 4 * (i - 16) if i < 28 else 240 + 4 * (i - 28))

    def avail(B=A):
        B(f"v_cmp_eq_u32 {MK}, 1, v{GA+5}")
        B("s_lshr_b32 s25, s100, 1")
        B("s_and_b32 s25, s25, s100")
        B("s_lshr_b32 s26, s25, 2")
        if FIXED:
            B("s_and_b32 s29, s25, s26")
            nextbit(B)
        else:
            B("s_and_b32 s25, s25, s26")
            B("s_and_b32 s25, s25, s24")

    FIXED = 'dyn' not in OPT

    def nextbit(B):
        B("s_sub_u32 s25, 0, s24")
        B("s_and_b32 s25, s25, s24")
        B("s_and_b32 s25, s25, s29")

    def pick(r, B=A):
        B("s_ff1_i32_b32 s26, s25")
        B("s_bitset0_b32 s24, s26")
        if FIXED:
            nextbit(B)
        else:
            B("s_bitset0_b32 s25, s26")
        B("s_add_u32 s26, s26, s61")
        B("s_and_b32 s26, s26, 15")
        B("s_lshl_b32 s27, s26, 11")
        B("s_add_u32 s27, s27, s60")
        B("s_add_u32 s28, s27, 4096")
        B(f"s_lshl_b32 s{16+r}, s26, 12")

    def oload(r, i):
        return f"buffer_load_dwordx4 {v(ofr(8*r+i),4)}, v1, {WS}, s{27+i//4} offen offset:{(i%4)*1024}{SC}{NT2}"

    def zload(j2):
        vq.append('z')
        return [f"s_mov_b32 s51, {WS_ZT+4096*j2}", f"buffer_load_dword v{ZR+j2}, v{GA+2}, {WS}, s51 offen sc1{NTZ}"]

    fl = f"buffer_load_dword v{GA+5}, v{GA+1}, {WS}, s59 offen sc1"

    def slot_a(T):
        j = (T + 2) // 4 + 2
        if T % 4 == 2 and j <= 15:
            vq.append(('kv', j))
            return [f"s_add_u32 m0, s13, {(j%4)*16384}", "s_nop 0", f"buffer_load_dwordx4 v1, {WS}, s12 offen{SC}{NTL} lds"]
        if T % 4 == 3 and (T + 1) // 4 + 2 <= 15:
            vq.append(('kv', (T + 1) // 4 + 2))
            return [f"buffer_load_dwordx4 v1, {WS}, s12 offen offset:1024{SC}{NTL} lds", "s_add_u32 s12, s12, 16384"]
        if T % 4 == 0 and 4 <= T <= 48:
            vq.append('wo')
            return ["s_mov_b32 m0, s49", "s_add_u32 s49, s49, 8192",
                    f"buffer_load_dwordx4 v{WOA}, s[44:47], s48 offen{NTO} lds", f"s_add_u32 s48, s48, {64*2048}"]
        if T == 49:
            vq.append('cz')
            return [f"buffer_load_dword v{GA+5}, v{FA}, {WS}, s56 offen sc1"]
        if 52 <= T <= 55:
            vq.append('wl')
            return [f"buffer_load_dwordx4 {v(WL+4*(T-52),4)}, v{WOA}, s[44:47], s48 offen",
                    f"s_add_u32 s48, s48, {64*2048}"]
        if T in (56, 57):
            return zload(4 + 2 * (T - 56))
        if T == 58:
            vq.append('f2')
            return [fl]
        if T >= 60:
            vq.append('e')
            return [oload(0, 2 * (T - 60))]
        return []

    def slot_e(T):
        if 2 <= T <= 9:
            G = T - 2
            vq.append('zt')
            return [f"buffer_store_dwordx2 {v(200+2*G,2)}, v216, {WS}, 0 offen offset:{512*G}{SC}{NTZ}"]
        if T in (48, 49):
            i = T - 48
            vq.append('q')
            return [f"buffer_load_dwordx4 {v(QR+4*i,4)}, v{GA+4}, s[52:55], 0 offen offset:{2048*i}{NT}"]
        if 52 <= T <= 55:
            return zload(T - 52)
        if T in (56, 57):
            return zload(5 + 2 * (T - 56))
        if T >= 60:
            vq.append('e')
            return [oload(0, 2 * (T - 60) + 1)] + ([fl] if T == 63 else [])
        return []

    def tile(B, T, grp):
        t = T % 16
        c, n = S[t & 1], S[(t + 1) & 1]
        kb, vp = KF[(t + 1) & 1], VF[(t + 1) & 1]
        do_qk = T < 63
        rk = rdK(t + 2) if T < 62 else []
        rv = rdV(t + 1) if T < 63 else []
        E = lambda r: f"v_exp_f32 v{c+r}, v{c+r}"
        C = lambda r: f"v_cvt_pk_bf16_f32 v{P+r}, v{c+2*r}, v{c+2*r+1}"
        B("s_setprio 0")
        if T in (0, 48, 56):
            stamp2(B, {0: 1, 48: 5, 56: 7}[T])
        B("s_waitcnt lgkmcnt(0)")
        if do_qk:
            B(mfma32(n, kb, Q, NM))
        if T == TI and INC1:
            B(vwait('f1'))
            check_or_poll(B, 'POLL1B', WS, FA, 's42', GA + 5)
            for x in st2:
                B(x)
            vq.extend([('kv', 2)] * 2)
        if T == 52:
            B(vwait('cz'))
            check_or_poll(B, 'POLLZ', WS, FA, 's56', GA + 5)
        if T == 60:
            B(vwait('f2'))
            B("s_movk_i32 s24, 0x1111")
            avail(B)
            B("s_and_b32 s25, s25, s63")
            B("s_cselect_b32 s62, 1, 0")
            B("s_cbranch_scc0 NOE")
            pick(0, B)
            B("NOE:")
        for x in slot_a(T):
            B(x)
        if T > 0:
            B(mfma32(O, vp, P, O if T > 1 else '0'))
            B(mfma32(O, vp + 4, P + 4, O))
        for x in rk:
            B(x)
        if do_qk:
            B(mfma32(n, kb + 4, Q + 4, n))
        for x in rv:
            B(x)
        if T > 0:
            B(SM)
        for x in slot_e(T):
            B(x)
        if T == 13:
            B(vwait('zt'))
        if T == 15:
            setflag(B, 's57', 12)
            vq.append('fl')
        nb = t % 4 == 1 and T + 1 < 62
        if nb:
            w = vwait(('kv', (T + 3) // 4))
            if grp == 'mid':
                w = "s_waitcnt vmcnt(4)"
            B(f"s_cbranch_vccnz SKB_{grp}_{t}")
            B(w)
            B("s_barrier")
            B(f"SKB_{grp}_{t}:")
        for r in range(8):
            B(E(2 * r)); B(E(2 * r + 1))
            if 1 <= r < 7:
                B(C(r - 1))
            if r == 1:
                B("s_setprio 2")
        B(C(6))
        B(C(7))
        if nb:
            B(f"s_cbranch_vccz SKA_{grp}_{t}")
            B(w)
            B("s_barrier")
            B(f"SKA_{grp}_{t}:")

    for T in range(16):
        tile(A, T, 'first')
    stamp2(A, 3)
    A("P2_LOOP:")
    n0 = len(A.ins)
    for T in range(16, 32):
        tile(A, T, 'mid')
    body = [i.text for i in A.ins[n0:]]
    B2 = Asm()
    for T in range(32, 48):
        tile(B2, T, 'mid')
    assert body == [i.text for i in B2.ins]
    A("s_add_u32 s14, s14, 1")
    A("s_cmp_lt_u32 s14, 2")
    A("s_cbranch_scc1 P2_LOOP")
    for T in range(48, 64):
        tile(A, T, 'last')
    A("s_setprio 0")
    A("s_waitcnt lgkmcnt(0)")
    A(mfma32(O, VF[1], P, O))
    A(mfma32(O, VF[1] + 4, P + 4, O))
    A(SM)
    stamp2(A, 9)
    stamp(A, 8)
    srd(A, 52, P_OUT, 8 * MB)
    A(f"s_mov_b32 s50, {L_THR:#x}")
    A("s_lshr_b32 s5, s3, 2")
    A("s_and_b32 s4, s3, 3")
    A("s_nop 0")
    A(f"v_add_f32 v{L}, v{L}, v{L+1}")
    A(f"v_cmp_nge_f32 vcc, s50, v{L}")
    A(f"v_rcp_f32 v12, v{L}")
    A("s_nop 1")
    A("s_cbranch_vccnz P2_SLOW")
    A("P2_FIN:")
    for r in range(16):
        A(f"v_mul_f32 v{O+r}, v{O+r}, v12")
    for r in range(8):
        A(f"v_cvt_pk_bf16_f32 v{OS+r}, v{O+2*r}, v{O+2*r+1}")
    A(f"buffer_store_dwordx4 {v(OS,4)}, v1, {WS}, s15 offen{SC}{NT2}")
    A(f"buffer_store_dwordx4 {v(OS+4,4)}, v1, {WS}, s15 offen offset:1024{SC}{NT2}")

    ACC = 32
    WF = [16, 24]

    def issue3(r):
        pick(r)
        for i in range(8):
            A(oload(r, i))

    A("s_barrier")
    for i in range(4):
        A(f"ds_write_b128 v{GA}, {v(WL+4*i,4)} offset:{8192*i}")
    A("v_lshrrev_b32 v4, 5, v0")
    A("v_bfe_u32 v5, v0, 2, 2")
    A("v_lshl_add_u32 v5, v4, 2, v5")
    A("v_lshlrev_b32 v5, 7, v5")
    A("v_and_b32 v6, 1, v0")
    A("v_lshl_add_u32 v5, v6, 5, v5")
    A("v_bfe_u32 v6, v0, 4, 1")
    A("v_lshl_add_u32 v5, v6, 4, v5")
    A("v_bfe_u32 v6, v0, 1, 1")
    A("v_lshl_add_u32 v5, v6, 3, v5")
    A("v_bfe_u32 v6, v0, 3, 1")
    A("v_xor_b32 v6, s5, v6")
    A("v_lshl_add_u32 v5, v6, 6, v5")
    A("s_lshl_b32 s13, s5, 16")
    A("v_add_u32 v12, s13, v5")
    A("v_xor_b32 v13, 64, v12")
    A("s_lshl_b32 s13, s3, 12")
    A(f"s_add_u32 s13, s13, {RING+32768}")
    A("v_add_u32 v6, s13, v1")
    A("v_xor_b32 v7, 0x4000, v6")
    A("v_bfe_u32 v8, v0, 1, 2")
    A("v_lshlrev_b32 v4, 1, v4")
    A("v_xor_b32 v8, v8, v4")
    A("v_lshlrev_b32 v8, 4, v8")
    A("v_and_b32 v4, 31, v0")
    A("v_lshl_add_u32 v8, v4, 6, v8")
    A("s_xor_b32 s13, s13, 0x4000")
    A("v_add_u32 v8, s13, v8")
    A("v_xor_b32 v9, 16, v8")
    A("v_bfe_u32 v4, v0, 3, 2")
    A("v_and_b32 v5, 3, v0")
    A("v_xor_b32 v4, v4, v5")
    A("v_lshlrev_b32 v4, 4, v4")
    A("v_lshrrev_b32 v5, 2, v0")
    A("v_lshl_add_u32 v5, v5, 12, v4")
    A("s_lshl_b32 s14, s40, 19")
    A("s_lshl_b32 s13, s4, 17")
    A("s_add_u32 s14, s14, s13")
    A("s_lshl_b32 s13, s41, 7")
    A("s_add_u32 s14, s14, s13")
    A("s_lshl_b32 s13, s5, 6")
    A("s_add_u32 s14, s14, s13")
    A("s_add_u32 s14, s14, 2048")
    A("s_add_u32 s15, s14, 65536")
    A("s_movk_i32 s13, 0x1000")
    A("s_mov_b32 s98, 0")

    PD3 = int(os.environ.get('PD3', 2))
    WF = [16, 24, 152]

    def reads3(step):
        b = step % 3
        return [f"ds_read_b64_tr_b16 {v(WF[b]+4*nt+2*j,2)}, v{14+nt} offset:{(16*step+8*j)*128}"
                for nt in range(2) for j in range(2)]

    T = 112
    gat = []
    for i in range(2):
        for dw in range(4):
            for hi in range(2):
                zr = ZR + 2 * dw + hi
                gat.append(f"v_and_b32 v{T+hi}, 0xffff0000, v{zr}" if i else f"v_lshlrev_b32 v{T+hi}, 16, v{zr}")
            gat.append(f"v_lshlrev_b32 v{T+2}, 16, v{QR+4*i+dw}")
            gat.append(f"v_and_b32 v{T+3}, 0xffff0000, v{QR+4*i+dw}")
            gat.append(f"v_mul_f32 v{T}, v{T}, v{T+2}")
            gat.append(f"v_mul_f32 v{T+1}, v{T+1}, v{T+3}")
            gat.append(f"v_cvt_pk_bf16_f32 v{QR+4*i+dw}, v{T}, v{T+1}")

    def consume(c, y):
        stamp3(A, 5 + c)
        A(f"v_add_u32 v14, s{16+c}, v12")
        A(f"v_add_u32 v15, s{16+c}, v13")
        for k in range(PD3):
            for x in reads3(k):
                A(x)
        for step in range(8):
            nxt = reads3(step + PD3) if step + PD3 < 8 else []
            for x in nxt:
                A(x)
            A((f"s_waitcnt vmcnt({y+7-step}) " if y is not None else "s_waitcnt ") +
              f"lgkmcnt({4*min(PD3, 7-step)})")
            for nt in range(2):
                A(mfma32(ACC + 16 * nt, WF[step % 3] + 4 * nt, ofr(8 * c + step),
                         '0' if (c == 0 and step == 0) else ACC + 16 * nt))
                if c == GC:
                    for x in gat[7 * step + 4 * nt:7 * step + 4 + 3 * nt]:
                        A(x)
        if c == GC:
            A(f"buffer_store_dwordx4 {v(QR,4)}, v{GA+3}, s[52:55], 0 offen{OM}")
            A(f"buffer_store_dwordx4 {v(QR+4,4)}, v{GA+3}, s[52:55], s13 offen{OM}")

    A("s_waitcnt vmcnt(2)")
    avail()
    stamp3(A, 2)
    A("s_cmp_eq_u32 s62, 0")
    A("s_cbranch_scc1 P3_W0")
    A("s_cmp_eq_u32 s25, 0")
    A("s_cbranch_scc1 P3_E1")
    issue3(1)
    A("s_mov_b32 s62, 2")
    A("P3_E1:")
    consume(0, None)
    A("s_cmp_eq_u32 s62, 2")
    A("s_cbranch_scc1 P3_E2")
    A("s_waitcnt vmcnt(0)")
    A("P3_E2:")
    A("s_waitcnt vmcnt(8)")
    A("s_barrier")
    setflag(A, 's58', 10)
    stamp(A, 9)
    A("s_cmp_eq_u32 s62, 2")
    A("s_cbranch_scc1 TRY_1_2")
    A("s_branch TRY_1_1")
    A("P3_W0:")
    A("s_waitcnt vmcnt(0) lgkmcnt(0)")
    A("s_barrier")
    setflag(A, 's58', 10)
    stamp(A, 9)

    LK = int(os.environ.get('LK', 2))

    def state(c, n):
        A(f"TRY_{c}_{n}:")
        can = n < 4 and n - c < LK
        if can:
            A("s_cmp_lg_u32 s25, 0")
            A(f"s_cbranch_scc1 ISS_{c}_{n}")
            if c == n:
                A(f"POL_{c}:")
                A(fl)
                A("s_waitcnt vmcnt(0)")
                avail()
                A(f"s_cbranch_scc1 ISS_{c}_{n}")
                A(f"s_sleep {SLP3}")
                A("s_add_u32 s98, s98, 1")
                A("s_cmp_lt_u32 s98, 0x80000")
                A(f"s_cbranch_scc1 POL_{c}")
                A("s_branch P3_RED")
        if c < n:
            y = 8 * (n - 1 - c)
            if n < 4:
                A(fl)
                y += 1
            consume(c, y)
            if n < 4:
                A("s_cmp_lg_u32 s25, 0")
                A(f"s_cbranch_scc1 ISS_{c+1}_{n}")
                A("s_waitcnt vmcnt(0)")
                avail()
            if (c + 1, n) != (4, 4):
                if not (n == 4):
                    A(f"s_branch TRY_{c+1}_{n}")
        if can:
            A(f"ISS_{c}_{n}:")
            issue3(n)
            A(f"s_branch TRY_{c}_{n+1}")

    for n in range(4):
        for c in range(n + 1):
            if n - c <= LK:
                state(c, n)
    for c in range(4):
        if 4 - c <= LK:
            state(c, 4)
    A("P3_RED:")
    stamp3(A, 9)
    A("s_nop 7")
    A("s_nop 3")
    for i in range(4):
        A(f"ds_write_b128 v6, {v(ACC+16+4*i,4)} offset:{1024*i}")
    A("s_waitcnt lgkmcnt(0)")
    A("s_barrier")
    stamp3(A, 10)
    for i in range(4):
        A(f"ds_read_b128 {v(64+4*i,4)}, v7 offset:{1024*i}")
    for i in range(4):
        A(f"s_waitcnt lgkmcnt({3-i})")
        for r in range(4):
            A(f"v_add_f32 v{ACC+4*i+r}, v{ACC+4*i+r}, v{64+4*i+r}")
    for r in range(8):
        A(f"v_cvt_pk_bf16_f32 v{16+r}, v{ACC+2*r}, v{ACC+2*r+1}")
    A("ds_write_b128 v8, v[16:19]")
    A("ds_write_b128 v9, v[20:23]")
    A("ds_read_b128 v[24:27], v7")
    A("ds_read_b128 v[28:31], v7 offset:1024")
    A("s_waitcnt lgkmcnt(1)")
    A(f"buffer_store_dwordx4 v[24:27], v5, s[52:55], s14 offen{OM}")
    A("s_waitcnt lgkmcnt(0)")
    A(f"buffer_store_dwordx4 v[28:31], v5, s[52:55], s15 offen{OM}")
    stamp(A, 11)
    dump_stamps(A, 12, 8)
    A("K_END:")
    A("s_endpgm")

    A("P2_SLOW:")
    A("v_mov_b32 v12, 0xff7fffff")
    A("s_mov_b32 s50, s6")
    A("s_mov_b32 s49, 0")
    A("P2_SLOW1:")
    A(f"buffer_load_dwordx4 {v(KF[0],4)}, v1, {WS}, s50 offen{SC}")
    A(f"buffer_load_dwordx4 {v(KF[0]+4,4)}, v1, {WS}, s50 offen offset:1024{SC}")
    A("s_waitcnt vmcnt(0)")
    A(mfma32(s1, KF[0], Q, '0'))
    A(mfma32(s1, KF[0] + 4, Q + 4, s1))
    A("s_nop 7")
    A("s_nop 3")
    for r in range(0, 16, 2):
        A(f"v_max3_f32 v12, v12, v{s1+r}, v{s1+r+1}")
    A("s_add_u32 s50, s50, 4096")
    A("s_add_u32 s49, s49, 1")
    A("s_cmp_lt_u32 s49, 64")
    A("s_cbranch_scc1 P2_SLOW1")
    A("v_mov_b32 v13, v12")
    A("s_nop 1")
    A("v_permlane32_swap_b32 v12, v13")
    A("v_max_f32 v12, v12, v13")
    for r in range(16):
        A(f"v_xor_b32 v{NM+r}, 0x80000000, v12")
        A(f"v_mov_b32 v{O+r}, 0")
    for r in range(4):
        A(f"v_mov_b32 v{L+r}, 0")
    A("s_mov_b32 s50, s6")
    A("s_mov_b32 s49, 0")
    A("P2_SLOW2:")
    A(f"buffer_load_dwordx4 {v(KF[0],4)}, v1, {WS}, s50 offen{SC}")
    A(f"buffer_load_dwordx4 {v(KF[0]+4,4)}, v1, {WS}, s50 offen offset:1024{SC}")
    A(f"buffer_load_dwordx4 {v(VF[0],4)}, v1, {WS}, s50 offen offset:2048{SC}")
    A(f"buffer_load_dwordx4 {v(VF[0]+4,4)}, v1, {WS}, s50 offen offset:3072{SC}")
    A("s_waitcnt vmcnt(0)")
    A(mfma32(s1, KF[0], Q, NM))
    A(mfma32(s1, KF[0] + 4, Q + 4, s1))
    A("s_nop 7")
    A("s_nop 3")
    for r in range(16):
        A(f"v_exp_f32 v{s1+r}, v{s1+r}")
    A("s_nop 0")
    for r in range(8):
        A(f"v_cvt_pk_bf16_f32 v{P+r}, v{s1+2*r}, v{s1+2*r+1}")
    A("s_nop 1")
    A(mfma32(O, VF[0], P, O))
    A(mfma32(O, VF[0] + 4, P + 4, O))
    A(SM)
    A("s_add_u32 s50, s50, 4096")
    A("s_add_u32 s49, s49, 1")
    A("s_cmp_lt_u32 s49, 64")
    A("s_cbranch_scc1 P2_SLOW2")
    A("s_nop 7")
    A("s_nop 3")
    A(f"v_add_f32 v{L}, v{L}, v{L+1}")
    A(f"v_rcp_f32 v12, v{L}")
    A("s_nop 0")
    A("s_branch P2_FIN")
    A("K_LAST:")
    return kd(NAME, 256, 102)


def build(path):
    hdr = open('concat_heads__ssm_conv_h3__mha_block__prompt.s.ref').read().split('\n')
    hdr = [l for l in hdr if l.startswith(';') and '@launch' not in l]
    A = Asm()
    k = gen(A)
    A.check()
    out = '\n'.join(hdr) + '\n' + f"; @launch grid=(256,1,1) block=(512,1,1) lds={LDS}\n"
    out += '.amdgcn_target "amdgcn-amd-amdhsa--gfx950"\n.text\n' + A.text()
    out += '.section .rodata,"a"\n' + k
    import subprocess
    open(path, 'w').write(out.replace('CODE_CHUNKS', '0'))
    subprocess.run(['clang', '-x', 'assembler', '-target', 'amdgcn-amd-amdhsa', '-mcpu=gfx950', '-c',
                    path, '-o', '_sz.o'], check=True)
    sz = int([l for l in subprocess.run(['llvm-objdump', '-h', '_sz.o'], capture_output=True,
                                        text=True).stdout.split('\n') if '.text' in l][0].split()[2], 16)
    pad = (-(sz - 256)) % 8192
    chunks = (sz - 256 + pad) // 8192
    out = out.replace('CODE_CHUNKS', str(chunks - 1))
    out = out.replace('K_LAST:\n', f'K_LAST:\n.fill {pad//4+64}, 4, 0xbf810000\n')
    open(path, 'w').write(out)
    print('code bytes', sz, 'chunks', chunks)
    ok = {x: True for x in ('POLLU_OK', 'POLL1_OK', 'POLL1B_OK', 'POLLZ_OK', 'INITP_OK')}
    loop = {'P2_LOOP': lambda c: c < 1, 'P1_LOOP': lambda c: c < 2, 'CONV_LOOP': lambda c: c < 2}
    skb = {f'SKB_{g}_{t}': True for g in ('first', 'mid', 'last') for t in range(16)}
    ska = {f'SKA_{g}_{t}': True for g in ('first', 'mid', 'last') for t in range(16)}
    iss_all = {f'ISS_{c}_{n}': True for c in range(4) for n in range(4)}
    iss_late = {f'ISS_{c}_{c}': True for c in range(4)}
    e2 = {'P3_E2': True, 'TRY_1_2': True}
    A.check_trace(NAME, {**ok, **loop, **skb, **iss_all, **e2}, 'compute init, all ready')
    A.check_trace(NAME, {**ok, **loop, **skb, **iss_late, 'NOINIT': True, 'P1_COMPUTE': True, 'NOPOLL1': True,
                         'NOE': True, 'P3_W0': True}, 'compute one by one')
    A.check_trace(NAME, {**ok, **loop, **ska, 'P1_LOADER': True, 'NOUT': True, 'NOSIGU': True, 'NOE': True, 'P3_W0': True,
                         'ISS_0_0': True, 'ISS_0_1': True, 'ISS_2_2': True, 'ISS_2_3': True}, 'loader late, 2+2')
    A.check_trace(NAME, {**ok, **loop, **ska, 'P1_LOADER': True, 'U_EARLY': True, 'P3_E1': True, 'ISS_1_1': True,
                         'ISS_1_2': True, 'ISS_3_3': True}, 'loader early')
    A.check_trace(NAME, {**ok, **loop, **ska, **iss_all, **e2, 'P1_LOADER': True, 'P2_SLOW': True,
                         'P2_SLOW1': lambda c: c < 2, 'P2_SLOW2': lambda c: c < 2}, 'slow')
    return A


if __name__ == '__main__':
    build(sys.argv[1] if len(sys.argv) > 1 else 'f.s')
```

```python
import sys, struct, math, os
sys.path.insert(0, 'dev')
from asmlib import *

OPT = set(os.environ.get('OPT', '').split(',')) | {'hall', 'norot3', 'h3'} | ({'nodpp'} if 'dpp' not in os.environ.get('OPT', '').split(',') else set())
PROF = 'prof' in OPT
MIX = 'nomix' not in OPT
NAME = 'concat_heads__ssm_conv_h3__mha_block__prompt_kernel'
LA = int(os.environ.get('LA', 3))
SLP = int(os.environ.get('SLP', 2))
SLP3 = int(os.environ.get('SLP3', 3))

MB = 1 << 20
WS_QF = 0
WS_KV = 4 * MB
WS_OF = 12 * MB
WS_UT = 16 * MB
WS_ZT = 20 * MB
WS_SYNC = 24 * MB
F1 = WS_SYNC
FU = WS_SYNC + 32768
FZ = WS_SYNC + 65536
F2 = WS_SYNC + 98304
CNT_LDS = 4 * (4 * 4160 + 64) + 4 * 4608
WS_SIZE = 24 * MB + 131072
WS_PROF = 32 * MB

P_Q, P_K, P_V, P_SH, P_SSMK, P_D, P_X, P_W, P_WO, P_OUT, P_DBG, P_WS = [16 + 2 * i for i in range(12)]
SRD_WS = 8
WS = f"s[{SRD_WS}:{SRD_WS+3}]"


def f32bits(x):
    return struct.unpack('<I', struct.pack('<f', x))[0]


QSCALE = f32bits(math.log2(math.e) / math.sqrt(32.0))
L_THR = f32bits(float(os.environ.get('THR', 2.0 ** 60)))

SLOT = 40960
LDS = 163840
HCS = 4160
HC_STRIDE = 4 * HCS + 64
U_BASE = 4 * HC_STRIDE
U_SZ = 4608
RING = 98304
SC = ' sc1'
NT = ' nt' if 'nont' not in OPT else ''
NTX = ' nt' if 'ntx' in OPT else ''
NTW = ' nt' if 'ntw' in OPT else ''
NTU = ' nt' if 'ntu' in OPT else ''
NTS = ' nt' if 'nts' in OPT else ''
NTL = ' nt' if 'ntl' in OPT else ''
NT2 = ' nt' if 'nt2' in OPT else ''
NTZ = ' nt' if 'ntz' in OPT else ''
NTO = ' nt' if 'nto' in OPT else ''
OM = ' ' + os.environ.get('OM', 'sc1')
GC = int(os.environ.get('GC', 3))
MT = 's_memrealtime' if 'rt' in OPT else 's_memtime'
MK = "s[100:101]"


def srd(A, d, p, size):
    A(f"s_mov_b32 s{d}, s{p}")
    A(f"s_and_b32 s{d+1}, s{p+1}, 0xffff")
    A(f"s_mov_b32 s{d+2}, {size}")
    A(f"s_mov_b32 s{d+3}, 0x00020000")


def mfma32(d, a, b, c):
    cs = c if isinstance(c, str) else v(c, 16)
    return f"v_mfma_f32_32x32x16_bf16 {v(d,16)}, {v(a,4)}, {v(b,4)}, {cs}"


def mfma16(d, a, b, c):
    cs = c if isinstance(c, str) else v(c, 4)
    return f"v_mfma_f32_16x16x32_bf16 {v(d,4)}, {v(a,4)}, {v(b,4)}, {cs}"


def stamp1(A, idx):
    if PROF and 'p1' in OPT:
        A(f"{MT} s[{70+2*idx}:{71+2*idx}]")


def stamp2(A, idx):
    if PROF and 'p2' in OPT:
        A(f"s_memrealtime s[{70+2*idx}:{71+2*idx}]")
        A(f"s_memtime s[{72+2*idx}:{73+2*idx}]")


def stamp3(A, idx):
    if PROF and 'p3' in OPT:
        A(f"s_memrealtime s[{70+2*idx}:{71+2*idx}]")
        A("s_waitcnt lgkmcnt(0)")


def stamp(A, idx):
    if PROF and ('p1' in OPT or 'p2' in OPT) and idx != 0:
        return
    if PROF and 'p3' in OPT:
        idx = {0: 0, 8: 1, 9: 3, 10: 4, 11: 11}.get(idx)
        if idx is None:
            return
    if PROF:
        A(f"{MT} s[{70+2*idx}:{71+2*idx}]")
        if idx == 0:
            A("s_memrealtime s[68:69]")
        else:
            A("s_waitcnt lgkmcnt(0)")


def dump_stamps(A, n, vt=2):
    if not PROF:
        return
    if 'dbg' in OPT:
        srd(A, 64, P_DBG, 256)
        A("s_cmp_ge_u32 s3, 4")
        A("s_cbranch_scc1 K_END")
        A("s_mov_b64 exec, 1")
        A("s_not_b32 s60, s70")
        A(f"v_mov_b32 v{vt}, s60")
        A(f"buffer_atomic_umax v{vt}, v2, s[64:67], 0 offen offset:4")
        for i in range(n):
            if i in (10,):
                continue
            A(f"v_mov_b32 v{vt+1+i}, s{70+2*i}")
            A(f"buffer_atomic_umax v{vt+1+i}, v2, s[64:67], 0 offen offset:{8+4*i}")
        return
    A("s_memrealtime s[62:63]")
    A("s_waitcnt lgkmcnt(0)")
    A(f"s_add_u32 s64, s{P_WS}, {WS_PROF}")
    A(f"s_addc_u32 s65, s{P_WS+1}, 0")
    A("s_and_b32 s65, s65, 0xffff")
    A(f"s_mov_b32 s66, {MB}")
    A("s_mov_b32 s67, 0x00020000")
    A("s_lshl_b32 s60, s2, 10")
    A("s_lshl_b32 s61, s3, 6")
    A("s_add_u32 s60, s60, s61")
    A(f"v_mov_b32 v{vt+1}, 0")
    for i in range(n):
        A(f"v_mov_b32 v{vt}, s{70+2*i}")
        A(f"buffer_store_dword v{vt}, v{vt+1}, s[64:67], s60 offen offset:{4*i}")
    A(f"v_mov_b32 v{vt}, s68")
    A(f"buffer_store_dword v{vt}, v{vt+1}, s[64:67], s60 offen offset:56")
    A(f"v_mov_b32 v{vt}, s62")
    A(f"buffer_store_dword v{vt}, v{vt+1}, s[64:67], s60 offen offset:60")
    A("s_waitcnt vmcnt(0)")


FA = 254


def all_set(A, vt, val=1):
    A(f"v_cmp_eq_u32 {MK}, 1, v{vt}" if val == 1 else f"v_cmp_le_u32 {MK}, {val}, v{vt}")
    A(f"s_cmp_eq_u64 {MK}, -1")


def poll(A, name, srds, va, soff, vt, val=1):
    A("s_mov_b32 s98, 0")
    A(f"{name}:")
    A(f"buffer_load_dword v{vt}, v{va}, {srds}, {soff} offen sc1")
    A("s_waitcnt vmcnt(0)")
    all_set(A, vt, val)
    A(f"s_cbranch_scc1 {name}_OK")
    A(f"s_sleep {SLP}")
    A("s_add_u32 s98, s98, 1")
    A("s_cmp_lt_u32 s98, 0x80000")
    A(f"s_cbranch_scc1 {name}")
    A(f"{name}_OK:")


def check_or_poll(A, name, srds, va, soff, vt, val=1):
    all_set(A, vt, val)
    A(f"s_cbranch_scc1 {name}_OK")
    poll(A, name, srds, va, soff, vt, val)


def setflag(A, soff, vt, srds=WS):
    A("s_mov_b64 exec, 1")
    A(f"v_mov_b32 v{vt}, 1")
    A(f"buffer_store_dword v{vt}, v2, {srds}, {soff} offen sc1")
    A("s_mov_b64 exec, -1")


def gen(A):
    Q, NM, S, P, O, L, KF, VF, ON = 4, 16, [32, 48], 64, 72, 88, [92, 100], [108, 116], 124
    RB, WOA, IDX = 128, 129, 15
    GA = 130
    ZR, QR, WL, OS = 136, 144, 152, 168
    SM = f"v_smfmac_f32_16x16x64_bf16 {v(L,4)}, {v(ON,4)}, {v(P,8)}, v{IDX}"

    def att_ids():
        A("s_and_b32 s4, s2, 6")
        A("s_lshl_b32 s4, s4, 2")
        A("s_lshr_b32 s5, s2, 6")
        A("s_lshl_b32 s5, s5, 1")
        A("s_or_b32 s4, s4, s5")
        A("s_bfe_u32 s5, s2, 0x10003")
        A("s_or_b32 s4, s4, s5")
        if MIX:
            A("s_lshr_b32 s5, s2, 1")
            A("s_xor_b32 s5, s5, s2")
            A("s_and_b32 s5, s5, 1")
        else:
            A("s_and_b32 s5, s2, 1")
        A("s_lshl_b32 s5, s5, 2")
        A("s_bfe_u32 s6, s2, 0x20004")
        A("s_or_b32 s5, s5, s6")

    def p2_setup():
        att_ids()
        A("s_lshl_b32 s6, s4, 18")
        A(f"s_add_u32 s6, s6, {WS_KV}")
        A("s_lshl_b32 s13, s3, 11")
        A("s_add_u32 s12, s6, s13")
        A("s_add_u32 s12, s12, 32768")
        A(f"s_add_u32 s13, s13, {RING}")
        A("s_lshl_b32 s14, s5, 3")
        A("s_add_u32 s14, s14, s3")
        A("s_lshl_b32 s15, s14, 5")
        A("s_add_u32 s15, s15, s4")
        A("s_lshl_b32 s58, s5, 5")
        A("s_add_u32 s58, s58, s4")
        A("s_lshl_b32 s58, s58, 7")
        A(f"s_add_u32 s58, s58, {F2}")
        A("s_lshl_b32 s57, s2, 7")
        A(f"s_add_u32 s57, s57, {FZ}")
        A("s_cmp_eq_u32 s3, 4")
        A("s_cselect_b32 s57, s57, 0x7fff0000")
        A("s_cselect_b32 s58, s58, 0x7fff0000")
        A("s_lshl_b32 s15, s15, 11")
        A(f"s_add_u32 s15, s15, {WS_OF}")
        A(f"v_add_u32 v{RB}, {RING}, v1")
        A(f"v_add_u32 v3, s13, v1")
        if 'map48' in OPT:
            A("s_bfe_u32 s40, s2, 0x20001")
            A("s_lshl_b32 s40, s40, 2")
            A("s_bfe_u32 s41, s2, 0x20003")
            A("s_or_b32 s40, s40, s41")
            A("s_and_b32 s41, s2, 1")
            A("s_lshl_b32 s41, s41, 3")
            A("s_lshr_b32 s42, s2, 5")
            A("s_or_b32 s41, s41, s42")
        else:
            A("s_and_b32 s40, s2, 7")
            A("s_lshl_b32 s40, s40, 1")
            A("s_bfe_u32 s41, s2, 0x10003")
            A("s_or_b32 s40, s40, s41")
            A("s_lshr_b32 s41, s2, 4")
        srd(A, 44, P_WO, 2 * MB)
        srd(A, 52, P_Q, 4 * MB)
        A("v_lshrrev_b32 v5, 3, v0")
        A("v_and_b32 v6, 7, v0")
        A("v_bfe_u32 v7, v0, 4, 1")
        A("v_lshlrev_b32 v7, 2, v7")
        A("v_xor_b32 v7, v7, v6")
        A("v_lshlrev_b32 v7, 4, v7")
        A(f"v_lshl_add_u32 v{WOA}, v5, 11, v7")
        A("s_lshl_b32 s48, s3, 14")
        A("s_lshl_b32 s49, s41, 7")
        A("s_add_u32 s48, s48, s49")
        A("s_lshl_b32 s49, s3, 10")
        A("s_mov_b32 s43, s49")
        A("s_and_b32 s59, s3, 3")
        A("s_lshl_b32 s50, s40, 2")
        A("s_add_u32 s59, s59, s50")
        A("s_lshl_b32 s59, s59, 1")
        A("s_lshr_b32 s50, s3, 2")
        A("s_add_u32 s59, s59, s50")
        A("s_lshl_b32 s60, s59, 15")
        A(f"s_add_u32 s60, s60, {WS_OF}")
        A("s_lshr_b32 s59, s40, 1")
        A("s_lshl_b32 s59, s59, 1")
        A("s_add_u32 s59, s59, s50")
        A("s_lshl_b32 s59, s59, 11")
        A(f"s_add_u32 s59, s59, {F2}")
        A("s_lshr_b32 s50, s2, 4")
        A("s_lshl_b32 s50, s50, 7")
        A("s_lshl_b32 s51, s3, 4")
        A("s_add_u32 s50, s50, s51")
        A("s_and_b32 s51, s2, 15")
        A("s_lshl_b32 s56, s51, 11")
        A(f"s_add_u32 s56, s56, {FZ}")
        A("s_lshl_b32 s51, s51, 6")
        A(f"v_lshl_add_u32 v5, v5, 1, s50")
        A(f"v_lshl_add_u32 v6, v6, 3, s51")
        A(f"v_lshlrev_b32 v{GA+2}, 1, v5")
        A(f"v_lshl_add_u32 v{GA+2}, v6, 12, v{GA+2}")
        A(f"v_lshlrev_b32 v{GA+3}, 1, v6")
        A(f"v_lshl_add_u32 v{GA+4}, v5, 11, v{GA+3}")
        A(f"v_lshl_add_u32 v{GA+3}, v5, 12, v{GA+3}")
        if MIX:
            A("s_lshr_b32 s61, s40, 3")
            if 'mixinv' in OPT:
                A("s_xor_b32 s61, s61, 1")
            A("s_lshl_b32 s61, s61, 1")
            if 'x3' in OPT:
                A("s_and_b32 s63, s41, 1")
                A("s_or_b32 s61, s61, s63")
        else:
            A("s_and_b32 s61, s41, 3" if 'norot3' not in OPT else "s_mov_b32 s61, 0")
        A("s_lshl_b32 s61, s61, 2")
        A(f"v_xor_b32 v{GA+1}, s61, v0")
        A(f"v_and_b32 v{GA+1}, 15, v{GA+1}")
        A(f"v_lshlrev_b32 v{GA+1}, 7, v{GA+1}")
        A(f"v_add_u32 v{GA}, s43, v{RB}")
        A("s_and_b32 s63, s61, 8")
        A("s_lshl_b32 s63, 0x11, s63")
        A("s_and_b32 s30, s41, 2" if 'h3' in OPT else "s_mov_b32 s30, 0")
        A("s_lshl_b32 s30, s30, 11")
        A("s_cmp_lt_u32 s3, 4")
        A("s_cselect_b32 s63, 0x1111, s63")
        A("s_mov_b32 s27, 0x7fff0000")
        A("s_mov_b32 s28, 0x7fff0000")
        A("v_bfe_u32 v5, v0, 2, 1")
        A("v_cmp_eq_u32 vcc, 0, v5")
        A("v_mov_b32 v6, 0x3f803f80")
        A("v_and_b32 v5, 1, v0")
        A(f"v_cndmask_b32 v{ON}, 0, v6, vcc")
        A(f"v_xor_b32 v{ON+2}, v6, v{ON}")
        A(f"v_mov_b32 v{ON+1}, v{ON}")
        A(f"v_mov_b32 v{ON+3}, v{ON+2}")
        A(f"v_mul_u32_u24 v{IDX}, 0xaaaa, v5")
        A(f"v_add_u32 v{IDX}, 0x4444, v{IDX}")
        for r in range(4):
            A(f"v_mov_b32 v{L+r}, 0")


    A(f".globl {NAME}")
    A(".p2align 8")
    A(f".type {NAME},@function")
    A(f"{NAME}:")
    A("s_cmp_ge_u32 s2, 256")
    A("s_cbranch_scc1 K_END")
    A("s_load_dwordx16 s[16:31], s[0:1], 0")
    A("s_load_dwordx8 s[32:39], s[0:1], 64")
    A("v_lshrrev_b32 v1, 6, v0")
    A("v_and_b32 v0, 63, v0")
    A("v_readfirstlane_b32 s3, v1")
    stamp(A, 0)
    if MIX:
        A("s_lshr_b32 s4, s2, 1")
        A("s_xor_b32 s4, s4, s2")
        A("s_and_b32 s4, s4, 1")
    else:
        A("s_and_b32 s4, s2, 1")
    A("s_lshl_b32 s4, s4, 3")
    A("s_bfe_u32 s5, s2, 0x30003")
    A("s_or_b32 s4, s4, s5")
    A("s_bfe_u32 s5, s2, 0x20001")
    A("s_lshl_b32 s5, s5, 2")
    A("s_lshr_b32 s6, s2, 6")
    A("s_or_b32 s5, s5, s6")
    A("v_lshlrev_b32 v1, 4, v0")
    A("v_mov_b32 v2, 0")
    A(f"v_and_b32 v{FA}, 15, v0")
    A(f"v_lshlrev_b32 v{FA}, 7, v{FA}")
    A("s_cmp_lt_u32 s3, 4")
    A("s_cbranch_scc0 P1_LOADER")
    if 'nocp' not in OPT:
        A("s_and_b32 s6, s2, 0x30")
        A("s_cbranch_scc1 P1_COMPUTE")
        A("s_getpc_b64 s[40:41]")
        A("s_bfe_u32 s6, s2, 0x10003")
        A("s_lshl_b32 s6, s6, 2")
        A("s_add_u32 s6, s6, s3")
        A("s_min_u32 s6, s6, CODE_CHUNKS")
        A("s_lshl_b32 s6, s6, 13")
        A("v_lshl_add_u32 v3, v0, 7, s6")
        A("global_load_dword v255, v3, s[40:41]")
    A("s_branch P1_COMPUTE")

    A("P1_LOADER:")
    A("s_sub_u32 s6, s3, 4")
    A("v_lshrrev_b32 v3, 3, v0")
    A("v_and_b32 v4, 7, v0")
    A("v_lshrrev_b32 v11, 4, v0")
    A("v_xor_b32 v5, v4, v11")
    A("v_lshlrev_b32 v5, 4, v5")
    A("v_lshl_add_u32 v5, v3, 11, v5")
    A("v_xor_b32 v6, 64, v5")
    A(f"v_add_u32 v6, {15360}, v6")
    A(f"v_add_u32 v7, {2*15360}, v5")
    A(f"v_add_u32 v8, {2*15360}, v6")
    A("v_and_b32 v9, 1, v11")
    A("v_lshlrev_b32 v9, 2, v9")
    A("v_xor_b32 v9, v9, v4")
    A("v_lshlrev_b32 v9, 4, v9")
    A("v_mul_u32_u24 v10, 6144, v3")
    A("v_add_u32 v9, v9, v10")
    A(f"v_add_u32 v10, {49152-1024}, v9")
    A("s_lshl_b32 s12, s4, 18")
    A("s_lshl_b32 s13, s6, 16")
    A("s_add_u32 s96, s12, s13")
    A(f"s_mul_i32 s13, s6, {16*6144}")
    A("s_lshl_b32 s14, s5, 7")
    A("s_add_u32 s97, s13, s14")
    A("s_add_u32 s95, s4, s5")
    A("s_add_u32 s94, s95, s5")
    A("s_and_b32 s94, s94, 7")
    A(f"s_and_b32 s95, s95, {os.environ.get('XM', 3)}")
    A("s_mul_i32 s15, s6, 10240")
    A("s_waitcnt lgkmcnt(0)")
    srd(A, 40, P_X, 4 * MB)
    srd(A, 44, P_W, 6 * MB)

    vm = []
    fill = []

    def F(n):
        for _ in range(n):
            if fill:
                A(fill.pop(0))

    def issue_stage(st, nf=0):
        slot = st % 4
        G8 = [int(x) for x in os.environ.get('G8', '').split(',') if x]
        A(f"s_xor_b32 s14, s{94 if st // 8 in G8 else 95}, {st}")
        A("s_lshl_b32 s12, s14, 7")
        A(f"s_add_u32 m0, s15, {slot*SLOT}")
        A("s_add_u32 s12, s12, s96")
        for j in range(4):
            A(f"buffer_load_dwordx4 v{5+j}, s[40:43], s12 offen offset:{j*1024}{NTX} lds")
            F(nf)
        A(f"s_mul_i32 s14, s14, {64*6144}")
        A(f"s_add_u32 m0, s15, {slot*SLOT+4096}")
        A("s_add_u32 s13, s14, s97")
        for t in range(4):
            A(f"buffer_load_dwordx4 v{9+(t&1)}, s[44:47], s13 offen offset:{t*1024}{NTW} lds")
            F(nf)
        A(f"s_add_u32 m0, s15, {slot*SLOT+8192}")
        A("s_add_u32 s13, s13, 4096")
        for t in range(2):
            A(f"buffer_load_dwordx4 v{9+t}, s[44:47], s13 offen offset:{t*1024}{NTW} lds")
            F(nf)
        vm.extend([('st', st)] * 10)

    def wait_tag(tag):
        last = max(i for i, t in enumerate(vm) if t == tag)
        A(f"s_waitcnt vmcnt({len(vm) - 1 - last})")
        del vm[:last + 1]

    issue_stage(0)
    issue_stage(1)

    KR, VR, WR, T, OUT = 20, 42, 60, 68, 104
    srd(A, 48, P_K, 4 * MB)
    srd(A, 52, P_V, 4 * MB)
    srd(A, 60, P_SH, 8192)
    A("s_lshr_b32 s7, s2, 4")
    A("s_lshl_b32 s7, s7, 7")
    A("s_lshl_b32 s64, s6, 5")
    A("s_add_u32 s7, s7, s64")
    A("s_and_b32 s64, s2, 15")
    A("s_lshl_b32 s64, s64, 6")
    A("v_lshl_add_u32 v11, v11, 3, s7")
    A("v_and_b32 v12, 15, v0")
    A("v_lshl_add_u32 v12, v12, 2, s64")
    A("v_lshlrev_b32 v13, 1, v12")
    A("v_lshl_add_u32 v15, v11, 11, v13")
    A("v_subrev_u32 v13, 6144, v15")
    A("v_subrev_u32 v14, 2048, v15")
    A("v_lshlrev_b32 v17, 3, v12")
    A("s_movk_i32 s64, 0x1000")
    A("s_movk_i32 s65, 0x2000")
    A("s_movk_i32 s66, 0x3000")
    so4 = ['0', 's64', 's65', 's66']
    rows = [(13, '0', 0), (13, '0', 2048), (14, '0', 0)] + [(15, so4[i // 2], 2048 * (i & 1)) for i in range(8)]

    def prep_loads():
        if 'nopl' in OPT:
            return
        for i in range(2):
            A(f"buffer_load_dwordx4 {v(WR+4*i,4)}, v17, s[60:63], 0 offen offset:{16*i}")
        for i, (a, so, o) in enumerate(rows):
            A(f"buffer_load_dwordx2 {v(KR+2*i,2)}, v{a}, s[48:51], {so} offen offset:{o}{NT}")
        for i, (a, so, o) in enumerate(rows[3:]):
            A(f"buffer_load_dwordx2 {v(VR+2*i,2)}, v{a}, s[52:55], {so} offen offset:{o}{NT}")
        vm.extend(['prep'] * 21)
    ST_PL = int(os.environ.get('ST_PL', -1))
    if ST_PL < 0:
        prep_loads()
    A("v_sub_u32 v18, 2040, v11")
    A("v_lshlrev_b32 v18, 1, v18")
    A("v_lshl_add_u32 v18, v12, 12, v18")
    A(f"v_add_u32 v18, {WS_UT}, v18")
    srd(A, SRD_WS, P_WS, WS_SIZE)
    srd(A, 56, P_DBG, 256)

    prep = []
    for j in range(4):
        dw, hi = j // 2, j & 1

        def unp(dst, src):
            return f"v_and_b32 v{dst}, 0xffff0000, v{src}" if hi else f"v_lshlrev_b32 v{dst}, 16, v{src}"
        for i in range(11):
            prep.append(unp(T + i, KR + 2 * i + dw))
        prep.append(f"v_lshlrev_b32 v{T+11}, 16, v{WR+2*j}")
        prep.append(f"v_and_b32 v{T+12}, 0xffff0000, v{WR+2*j}")
        prep.append(f"v_lshlrev_b32 v{T+13}, 16, v{WR+2*j+1}")
        prep.append(f"v_and_b32 v{T+14}, 0xffff0000, v{WR+2*j+1}")
        for i in range(8):
            prep.append(f"v_mul_f32 v{T+15+i}, v{T+i}, v{T+14}")
        for t in (2, 1, 0):
            for i in range(8):
                prep.append(f"v_fmac_f32 v{T+15+i}, v{T+3+i-t}, v{T+11+t}")
        for i in range(8):
            prep.append(unp(T + i, VR + 2 * i + dw))
        for i in range(8):
            prep.append(f"v_mul_f32 v{T+15+i}, v{T+15+i}, v{T+i}")
        for i in range(4):
            prep.append(f"v_cvt_pk_bf16_f32 v{OUT+4*j+i}, v{T+15+7-2*i}, v{T+15+6-2*i}")

    def h_loads():
        A("s_lshl_b32 s7, s2, 2")
        A("s_add_u32 s7, s7, s6")
        A("s_lshl_b32 s64, s7, 12")
        A(f"s_mul_i32 s65, s6, {HCS}")
        A(f"s_mul_i32 s66, s6, {U_SZ}")
        A(f"s_add_u32 s66, s66, {U_BASE}")
        srd(A, 48, P_SSMK, 4 * MB)
        srd(A, 52, P_D, 2048)
        A("v_add_u32 v205, s65, v1")

    def h_loads2():
        if 'nohl' in OPT:
            return
        A("s_lshr_b32 s7, s64, 12")
        HN = NT if ('hnt' in OPT or 'hall' in OPT) else ''
        for j in range(4):
            A(f"buffer_load_dwordx4 {v(HD+8*j,4)}, v1, s[48:51], s64 offen offset:{1024*j}{HN}")
        if 'nodpp' in OPT:
            for j in range(4):
                A(f"buffer_load_dwordx2 {v(HD+8*j+4,2)}, v1, s[48:51], s64 offen offset:{1024*j+16}{HN}")
            A("buffer_load_dwordx2 v[200:201], v2, s[48:51], s64 offen")
            vm.extend(['h'] * 5)
        A("s_lshl_b32 s7, s7, 1")
        A("buffer_load_ushort v202, v2, s[52:55], s7 offen")
        vm.extend(['h'] * 5)

    HD = 120

    def h_write(c):
        if 'hall' in OPT and not c & 1:
            for j in range(4):
                if c == 4:
                    src = HD + 8 * j + 2
                else:
                    src = 208 + 4 * (j & 1)
                    for i in range(4):
                        A(f"v_mov_b32 v{src+i}, v{HD+8*j+1+i}")
                A(f"ds_write_b128 v205, {v(src,4)} offset:{(c-1)*HC_STRIDE+32+1024*j}")
            return
        if c & 1:
            for j in range(4):
                d = HD + 8 * j + (c >> 1)
                o = 208 + 4 * (j & 1)
                for i in range(4):
                    A(f"v_alignbit_b32 v{o+i}, v{d+i+1}, v{d+i}, 16")
                A(f"ds_write_b128 v205, {v(o,4)} offset:{(c-1)*HC_STRIDE+32+1024*j}")
            return
        A(f"s_add_u32 s7, s64, {2*c}")
        A(f"s_add_u32 m0, s65, {(c-1)*HC_STRIDE+32}")
        A("s_nop 0")
        for j in range(4):
            A(f"buffer_load_dwordx4 v1, s[48:51], s7 offen offset:{j*1024} lds")
        vm.extend(['cv'] * 4)

    FR, UR, YR = [16, 92], [48, 136], 168
    csetup = [
        "v_lshrrev_b32 v221, 1, v0",
        f"v_mul_u32_u24 v221, {HC_STRIDE}, v221",
        "v_and_b32 v222, 1, v0",
        "v_lshl_add_u32 v221, v222, 4, v221",
        "v_add_u32 v221, s65, v221",
        "v_subrev_u32 v222, 8, v0",
        "v_min_u32 v222, 31, v222",
        "v_lshlrev_b32 v222, 4, v222",
        "v_add_u32 v222, 4096, v222",
        "v_add_u32 v222, s66, v222",
        "v_cmp_gt_u32 vcc, 8, v0"] + [f"v_mov_b32 v{YR+r}, 0" for r in range(32)] + [
        "v_cndmask_b32 v221, v222, v221, vcc",
        "v_and_b32 v222, 3, v0",
        f"v_mul_u32_u24 v223, {HC_STRIDE}, v222",
        "v_lshlrev_b32 v222, 1, v222",
        "v_sub_u32 v222, v223, v222",
        "v_add_u32 v222, 30, v222",
        "v_add_u32 v222, s65, v222",
        "v_lshrrev_b32 v224, 4, v0",
        "v_lshl_add_u32 v223, v224, 4, v223",
        "v_bfe_u32 v225, v0, 2, 2",
        "v_lshl_add_u32 v223, v225, 3, v223",
        "v_add_u32 v223, s65, v223",
        "v_and_b32 v225, 15, v0",
        "v_lshlrev_b32 v226, 5, v225",
        "v_lshlrev_b32 v227, 4, v224",
        "v_sub_u32 v227, v227, v226",
        "v_lshl_add_u32 v226, v224, 3, v226",
        "v_add_u32 v227, 480, v227",
        "v_add_u32 v224, s66, v227",
        f"v_sub_u32 v225, {4088-3584}, v226",
        "v_add_u32 v225, s66, v225",
        f"v_mov_b32 v227, {CNT_LDS}",
    ]
    if 'nodpp' not in OPT:
        for j in range(4):
            for i in range(2):
                csetup.append(f"v_mov_b32_dpp v{HD+8*j+4+i}, v{HD+8*j+i} wave_shl:1 row_mask:0xf bank_mask:0xf bound_ctrl:0")
        for j in range(4):
            for i in range(2):
                csetup.append(f"v_readlane_b32 s{60+i}, v{HD+8*j+i}, 0")
            csetup.append("s_nop 2")
            for i in range(2):
                csetup.append(f"v_writelane_b32 v{HD+8*(j-1)+4+i}, s{60+i}, 63" if j else f"v_mov_b32 v{200+i}, s{60+i}")
    ST_H = int(os.environ.get('ST_H', 0))
    ST_PC = ST_PL + LA + 1
    NF = int(os.environ.get('NF', 9))
    ST_UT = ST_PC + (268 + 10 * NF - 1) // (10 * NF) - 1
    ST_SIG = ST_UT + LA + 1
    ST_CU = int(os.environ.get('ST_CU', 10))
    ST_UCHK = int(os.environ.get('ST_UCHK', 14))
    assert ST_UCHK >= ST_CU + LA + 1
    assert ST_H >= ST_PL and ST_SIG < ST_CU and ST_CU + LA + 1 <= 15
    SPF = [int(x) for x in os.environ.get('SPF', '').split(',') if x]
    SPG = [int(x) for x in os.environ.get('SPG', '2,3').split(',')]

    def spf(grp):
        A(f"s_add_u32 s62, s2, {256*grp}")
        A("s_mul_i32 s62, s62, 6144")
        A("s_mul_i32 s63, s6, 1536")
        A("s_add_u32 s62, s62, s63")
        A(f"s_add_u32 s62, s62, s{P_W}")
        A(f"s_addc_u32 s63, s{P_W+1}, 0")
        for j in range(12):
            A(f"s_load_dword s99, s[62:63], {128*j}")

    if ST_H < 0:
        h_loads()
        h_loads2()
    for st in range(16):
        if st - 1 in SPF:
            spf(SPG[SPF.index(st - 1)])
        wait_tag(('st', st))
        A("s_barrier")
        if st == ST_PC:
            assert 'prep' not in vm
            fill.extend(prep)
        if st == 0:
            for k in range(2, LA + 1):
                issue_stage(k)
        elif st + LA < 16:
            issue_stage(st + LA, NF)
        if st == ST_PL:
            prep_loads()
        if st == max(ST_PL, 0) and ST_H >= 0:
            h_loads()
        if st == ST_H:
            h_loads2()
        if st == ST_UT:
            A("buffer_load_dword v19, v2, s[56:59], 0 offen sc1")
            vm.append('if')
            F(len(fill))
            A("s_movk_i32 s7, 0x1000")
            A("s_movk_i32 s12, 0x2000")
            A("s_movk_i32 s13, 0x3000")
            for j, so in enumerate(['0', 's7', 's12', 's13'] if 'nout' not in OPT else []):
                A(f"buffer_store_dwordx4 {v(OUT+4*j,4)}, v18, {WS}, {so} offen{SC}{NTU}")
                vm.append('ut')
        if st == ST_SIG:
            assert 'ut' not in vm and 'if' not in vm
            check_or_poll(A, 'INITP', 's[56:59]', 2, '0', 19, 16)
            A("s_cmp_lg_u32 s6, 0")
            A("s_cbranch_scc1 NOSIGU")
            A("s_and_b32 s7, s2, 15")
            A("s_lshl_b32 s7, s7, 4")
            A("s_lshr_b32 s12, s2, 4")
            A("s_add_u32 s7, s7, s12")
            A("s_lshl_b32 s7, s7, 7")
            A(f"s_add_u32 s7, s7, {FU}")
            setflag(A, 's7', 11)
            A("NOSIGU:")
        if st == ST_CU:
            A("s_lshr_b32 s7, s2, 4")
            A("s_lshl_b32 s7, s7, 11")
            A(f"s_add_u32 s67, s7, {FU}")
            A(f"buffer_load_dword v19, v{FA}, {WS}, s67 offen sc1")
            vm.append('cu')
        if st == ST_UCHK:
            assert 'cu' not in vm
            all_set(A, 19)
            A("s_cbranch_scc0 NOUT")
            A(f"s_add_u32 s12, s64, {WS_UT}")
            A("v_min_u32 v203, 31, v0")
            A("v_lshlrev_b32 v203, 7, v203")
            A(f"buffer_load_dword v204, v203, {WS}, s12 offen sc1{NTU}")
            A("NOUT:")
        if st == ST_UT + 1:
            assert 'h' not in vm or 'nodpp' in OPT
            fill.extend(csetup)
        if st == 14:
            A(f"buffer_load_dword v19, v{FA}, {WS}, s67 offen sc1")
            vm.append('cu2')
            F(len(fill))
            if 'h' not in vm:
                for c in (2, 4, 1, 3):
                    h_write(c)
                hdone = True
            else:
                hdone = False
    A(f"ds_write_b128 v221, {v(YR,4)}")
    A("ds_write_b32 v227, v2")
    A(f"s_add_u32 s12, s64, {WS_UT}")
    A("s_mov_b32 m0, s66")
    wait_tag('cu2')
    all_set(A, 19)
    A("s_cbranch_scc1 U_EARLY")
    A("s_waitcnt lgkmcnt(0)")
    A("s_barrier")
    poll(A, 'POLLU', WS, FA, 's67', 19)
    for j in range(4):
        A(f"buffer_load_dwordx4 v1, {WS}, s12 offen offset:{j*1024}{SC}{NTL} lds")
    A("s_branch U_JOIN")
    A("U_EARLY:")
    for j in range(4):
        A(f"buffer_load_dwordx4 v1, {WS}, s12 offen offset:{j*1024}{SC}{NTL} lds")
    A("s_waitcnt lgkmcnt(0)")
    A("s_barrier")
    A("U_JOIN:")
    stamp(A, 1)
    A("s_waitcnt vmcnt(4)")
    if not hdone:
        for c in (2, 4, 1, 3):
            h_write(c)
    A("v_lshlrev_b32 v220, 16, v202")
    A("ds_write_b64 v222, v[200:201]")
    A(f"s_add_u32 s7, s64, {WS_ZT}")
    A("v_add_u32 v216, s7, v226")
    p2_setup()
    pairs = [(a, b) for a in range(8) for b in range(8) if a + b <= 7]

    def cF(rho):
        o = []
        for a in range(8):
            o.append(f"ds_read_b64 {v(FR[rho&1]+4*a,2)}, v223 offset:{512*a+64*rho}")
            o.append(f"ds_read_b64 {v(FR[rho&1]+4*a+2,2)}, v223 offset:{512*a+64*rho+8}")
        return o

    def cU(rho):
        return [f"ds_read_b128 {v(UR[rho&1]+4*b,4)}, v224 offset:{512*(7-b)+64*rho}" for b in range(8)]

    for x in cF(0):
        A(x)
    A("s_waitcnt vmcnt(0)")
    for x in cU(0):
        A(x)
    stamp(A, 2)
    A("s_mov_b32 s7, 0")
    A("CONV_LOOP:")
    for rho in range(2):
        A("s_waitcnt lgkmcnt(0)")
        nxt = cU(rho + 1) + cF(rho + 1)
        if rho == 1:
            nxt += ["v_add_u32 v223, 128, v223", "v_add_u32 v224, 128, v224", "s_add_u32 s7, s7, 1", "s_cmp_lt_u32 s7, 3"]
        for i, (a, b) in enumerate(pairs):
            G = a + b
            A(mfma16(YR + 4 * G, FR[rho] + 4 * a, UR[rho] + 4 * b, YR + 4 * G))
            if i < len(nxt):
                A(nxt[i])
    A("s_cbranch_scc1 CONV_LOOP")
    A("s_waitcnt lgkmcnt(0)")
    nxt = cU(1) + cF(1)
    for i, (a, b) in enumerate(pairs):
        A(mfma16(YR + 4 * (a + b), FR[0] + 4 * a, UR[0] + 4 * b, YR + 4 * (a + b)))
        if i < len(nxt):
            A(nxt[i])
    for G in range(8):
        A(f"ds_read_b64 {v(FR[0]+2*G,2)}, v225 offset:{512*(7-G)}")
    A("s_waitcnt lgkmcnt(8)")

    def cepi(G):
        y, t_, f = YR + 4 * G, UR[0] + 4 * (G & 1), FR[0]
        return [f"v_and_b32 v{t_}, 0xffff0000, v{f+2*G+1}", f"v_lshlrev_b32 v{t_+1}, 16, v{f+2*G+1}",
                f"v_and_b32 v{t_+2}, 0xffff0000, v{f+2*G}", f"v_lshlrev_b32 v{t_+3}, 16, v{f+2*G}"] + \
               [f"v_fmac_f32 v{y+r}, v{t_+r}, v220" for r in range(4)] + \
               [f"v_cvt_pk_bf16_f32 v{200+2*G}, v{y}, v{y+1}", f"v_cvt_pk_bf16_f32 v{201+2*G}, v{y+2}, v{y+3}"]

    last = [(a, G - a) for G in range(8) for a in range(G + 1)]
    done_at = {G: (G + 1) * (G + 2) // 2 - 1 for G in range(8)}
    q = []
    nextG = 0
    for i, (a, b) in enumerate(last):
        A(mfma16(YR + 4 * (a + b), FR[1] + 4 * a, UR[1] + 4 * b, YR + 4 * (a + b)))
        if i == 5:
            A("s_waitcnt lgkmcnt(0)")
        while nextG < 7 and i >= max(done_at[nextG] + 3, 6):
            q += cepi(nextG)
            nextG += 1
        for _ in range(2):
            if q:
                A(q.pop(0))
    for x in q:
        A(x)
    e7 = cepi(7)
    for x in e7:
        A(x)
    stamp(A, 3)
    A("s_branch P2_JOIN")

    A("P1_COMPUTE:")
    ACC = 64
    XF = [16, 40, 176, 200]
    WF = [24, 48, 184, 208]
    XA = 160
    WA = 168
    A("s_lshr_b32 s6, s3, 1")
    A("s_and_b32 s7, s3, 1")
    A("v_and_b32 v6, 31, v0")
    A("v_lshrrev_b32 v3, 5, v0")
    A("v_bfe_u32 v4, v0, 1, 3")
    A("v_xor_b32 v4, v4, v3")
    A("v_lshlrev_b32 v4, 4, v4")
    A("v_lshl_add_u32 v4, v6, 7, v4")
    A("s_mul_i32 s12, s6, 20480")
    A("v_add_u32 v4, s12, v4")
    for ks in range(4):
        if ks == 0:
            A(f"v_mov_b32 v{XA}, v4")
        else:
            A(f"v_xor_b32 v{XA+ks}, {32*ks}, v4")
        A(f"v_add_u32 v{XA+4+ks}, {2*SLOT}, v{XA+ks}")
    A("v_bfe_u32 v5, v0, 2, 2")
    A("v_lshlrev_b32 v6, 7, v5")
    A("v_lshl_add_u32 v6, v3, 10, v6")
    A("v_bfe_u32 v7, v0, 3, 1")
    A("v_xor_b32 v7, s7, v7")
    A("v_lshl_add_u32 v6, v7, 6, v6")
    A("v_bfe_u32 v7, v0, 4, 1")
    A("v_lshl_add_u32 v6, v7, 5, v6")
    A("v_and_b32 v7, 3, v0")
    A(f"v_lshl_add_u32 v{WA}, v7, 3, v6")
    for sl in range(1, 4):
        A(f"v_add_u32 v{WA+sl}, {sl*SLOT}, v{WA}")
    A("s_lshl_b32 s12, s5, 1")
    A("s_add_u32 s12, s12, s7")
    A("s_lshl_b32 s7, s5, 4")
    A("s_add_u32 s7, s7, s4")
    A("s_lshl_b32 s7, s7, 7")
    A(f"s_add_u32 s7, s7, {F1}")
    A("s_lshl_b32 s12, s12, 6")
    A("s_lshl_b32 s13, s4, 2")
    A("s_add_u32 s12, s12, s13")
    A("s_lshl_b32 s13, s6, 1")
    A("s_add_u32 s12, s12, s13")
    A("s_lshl_b32 s13, s12, 11")
    A("s_lshl_b32 s14, s12, 12")
    A(f"s_add_u32 s14, s14, {WS_KV}")
    A("s_add_u32 s15, s14, 4096")
    A("s_and_b32 s12, s4, 1")
    A("s_lshl_b32 s42, s12, 13")
    A("s_lshl_b32 s43, s6, 12")
    A("s_add_u32 s42, s42, s43")
    A(f"s_add_u32 s42, s42, {RING+3*16384}")
    A("s_sub_u32 s43, s42, 16384")
    A("s_and_b32 s44, s3, 1")
    A("s_cmp_eq_u32 s44, s12")
    A("s_cselect_b32 s42, s42, s43")
    A("s_cselect_b32 s13, 0x7fff0000, s13")
    A("v_add_u32 v10, s42, v1")
    A(f"s_mov_b32 s12, {QSCALE:#x}")
    A("s_waitcnt lgkmcnt(0)")
    srd(A, SRD_WS, P_WS, WS_SIZE)
    if os.environ.get('SPF'):
        A("s_lshl_b32 s42, s2, 14")
        A("s_lshl_b32 s43, s3, 12")
        A("s_add_u32 s42, s42, s43")
        A(f"s_add_u32 s42, s42, s{P_X}")
        A(f"s_addc_u32 s43, s{P_X+1}, 0")
        g0 = min(int(x) for x in os.environ.get('SPG', '2,3').split(','))
        for ln in range(4 * g0, 16):
            for r in range(2):
                A(f"s_load_dword s99, s[42:43], {2048*r+128*ln}")
    if 'tlb' in OPT:
        A("s_bfe_u32 s42, s2, 0x20004")
        A("s_lshl_b32 s42, s42, 2")
        A("s_add_u32 s42, s42, s3")
        for k, (p, stride) in enumerate([(P_WS, 393216 + 2048), (P_OUT, 131072), (P_Q, 65536), (P_WO, 32768),
                                         (P_W, 98304), (P_SSMK, 65536)]):
            A(f"s_cmp_lg_u32 s42, {4+k}")
            A(f"s_cbranch_scc1 NOTLB{k}")
            A(f"v_mul_u32_u24 v8, {stride}, v0")
            A(f"global_load_dword v255, v8, s[{p}:{p+1}] sc1")
            A(f"NOTLB{k}:")
    A("s_lshl_b32 s42, s3, 4")
    A("s_or_b32 s42, s42, s2")
    A("s_cmp_ge_u32 s42, 16")
    A("s_cbranch_scc1 NOINIT")
    srd(A, 56, P_DBG, 256)
    A("v_lshlrev_b32 v8, 7, v0")
    A("s_lshl_b32 s42, s2, 13")
    A(f"s_add_u32 s42, s42, {WS_SYNC}")
    A(f"buffer_store_dword v2, v8, {WS}, s42 offen sc1")
    A("v_mov_b32 v9, 1")
    A("s_waitcnt vmcnt(0)")
    A("s_mov_b64 exec, 1")
    A("buffer_atomic_add v9, v2, s[56:59], 0 offen")
    A("s_mov_b64 exec, -1")
    A("NOINIT:")

    def bufof(step):
        return step & 1 if step < 60 else {60: 0, 61: 2, 62: 3, 63: 1}[step]

    def reads(step):
        st, ks = divmod(step, 4)
        slot = st % 4
        b = bufof(step)
        out = []
        xa = XA + 4 * (slot >> 1) + ks
        out.append(f"ds_read_b128 {v(XF[b],4)}, v{xa} offset:{(slot&1)*SLOT}")
        for seg in range(3):
            for j in range(2):
                out.append(f"ds_read_b64_tr_b16 {v(WF[b]+4*seg+2*j,2)}, v{WA+slot} offset:{ks*10240+4096+seg*2048+j*512}")
            if seg == 0:
                out.append(f"ds_read_b128 {v(XF[b]+4,4)}, v{xa} offset:{(slot&1)*SLOT+10240}")
        return out

    def mf(step, seg, rt):
        b = bufof(step)
        d = ACC + 16 * (3 * rt + seg)
        c = d
        if seg < 2:
            return mfma32(d, WF[b] + 4 * seg, XF[b] + 4 * rt, c)
        return mfma32(d, XF[b] + 4 * rt, WF[b] + 4 * seg, c)

    def epi(seg, rt):
        d = ACC + 16 * (3 * rt + seg)
        out = []
        if seg == 0:
            for r in range(16):
                out.append(f"v_mul_f32 v{d+r}, s12, v{d+r}")
        for r in range(8):
            out.append(f"v_cvt_pk_bf16_f32 v{d+r}, v{d+2*r}, v{d+2*r+1}")
        so, off = [('s13', rt * 2048), (('s14', 's15')[rt], 0), (('s14', 's15')[rt], 2048)][seg]
        out.append(f"buffer_store_dwordx4 {v(d,4)}, v1, {WS}, {so} offen offset:{off}{SC}{NTS}")
        out.append(f"buffer_store_dwordx4 {v(d+4,4)}, v1, {WS}, {so} offen offset:{off+1024}{SC}{NTS}")
        if seg == 0:
            out.append(f"ds_write_b128 v10, {v(d,4)} offset:{off}")
            out.append(f"ds_write_b128 v10, {v(d+4,4)} offset:{off+1024}")
        return out

    for r in range(96):
        A(f"v_mov_b32 v{ACC+r}, 0")
    A("s_mov_b32 s6, 0")
    A("s_barrier")
    stamp(A, 1)
    stamp1(A, 1)
    for r in reads(0):
        A(r)

    def gstep(step):
        m = [mf(step, seg, rt) for seg in range(3) for rt in range(2)]
        nxt = reads(step + 1)
        A("s_waitcnt lgkmcnt(0)")
        A(m[0])
        if (step + 1) % 4 == 0:
            A("s_barrier")
            bs = (step + 1) // 4
            P1S = tuple(int(x) for x in os.environ.get('P1S', '2,4,6,8,9,10,11,12,14').split(','))
            if bs in P1S:
                stamp1(A, 2 + P1S.index(bs))
        if step == 59:
            nxt = reads(60) + reads(61) + reads(62)
            gaps = [nxt[0:4], nxt[4:8], nxt[8:12], nxt[12:16], nxt[16:20], nxt[20:24]]
        else:
            gaps = [nxt[0:3], nxt[3:5], nxt[5:7], nxt[7:8], [], []]
        if step == 15 and 'p1' not in OPT:
            gaps[4] = ["s_add_u32 s6, s6, 1", "s_cmp_lt_u32 s6, 3"]
        for x in gaps[0]:
            A(x)
        for k in range(1, 6):
            A(m[k])
            for x in gaps[k]:
                A(x)

    if 'p1' in OPT:
        for step in range(48):
            gstep(step)
    else:
        A("P1_LOOP:")
        for step in range(16):
            gstep(step)
        A("s_cbranch_scc1 P1_LOOP")
    for step in range(48, 60):
        gstep(step)
    for x in reads(63):
        A(x)
    order = [(0, 0), (0, 1), (1, 0), (1, 1), (2, 0), (2, 1)] if 'qlast' not in OPT else [(1, 0), (1, 1), (2, 0), (2, 1), (0, 0), (0, 1)]
    pend = []
    A("s_waitcnt lgkmcnt(8)" if 'p1' not in OPT else "s_waitcnt lgkmcnt(0)")
    for ti, (seg, rt) in enumerate(order):
        if ti >= 2:
            pend = epi(*order[ti - 2])
        for k, step in enumerate(range(60, 64)):
            if ti == 0 and k == 3:
                A("s_waitcnt lgkmcnt(0)")
            A(mf(step, seg, rt))
            if ti == 0 and k == 3:
                A("s_barrier")
                stamp1(A, 11)
            if ti == 1 and k in (1, 2):
                A("s_nop 3")
            n = (len(pend) + (3 - k)) // (4 - k)
            for x in pend[:n]:
                A(x)
            pend = pend[n:]
    stamp(A, 2)
    A("v_mov_b32 v216, 0x7fff0000")
    for x in epi(*order[4]) + ["s_nop 0"] + epi(*order[5]):
        A(x)
    att_ids()
    A("s_lshr_b32 s42, s4, 1")
    A("s_lshl_b32 s42, s42, 11")
    A(f"s_add_u32 s42, s42, {F1}")
    A("s_lshl_b32 s12, s4, 18")
    A("s_lshl_b32 s13, s3, 12")
    A("s_add_u32 s12, s12, s13")
    A(f"s_add_u32 s12, s12, {WS_KV}")
    A("s_andn2_b32 s15, 1, s4")
    A("s_lshl_b32 s15, s15, 2")
    A("s_add_u32 s15, s15, s3")
    A("s_lshl_b32 s15, s15, 11")
    A("s_lshl_b32 s14, s4, 17")
    A("s_lshl_b32 s6, s5, 14")
    A("s_add_u32 s14, s14, s6")
    A("s_add_u32 s14, s14, s15")
    A("s_waitcnt vmcnt(0)")
    A(f"v_mov_b32 v3, {CNT_LDS}")
    A("v_mov_b32 v4, 1")
    A("s_mov_b64 exec, 1")
    A("ds_add_rtn_u32 v5, v3, v4")
    A("s_waitcnt lgkmcnt(0)")
    A("v_readfirstlane_b32 s6, v5")
    A("s_mov_b64 exec, -1")
    stamp(A, 3)
    A("s_cmp_lg_u32 s6, 3")
    A("s_cbranch_scc1 NOPOLL1")
    setflag(A, 's7', 4)
    if 'noinc1' in OPT:
        poll(A, 'POLL1', WS, FA, 's42', 5)
    else:
        A("s_lshl_b32 s43, s5, 1")
        A("s_lshl_b32 s43, 3, s43")
        A("s_or_b32 s43, s43, 3")
        A("s_mov_b32 s98, 0")
        A("POLL1:")
        A(f"buffer_load_dword v5, v{FA}, {WS}, s42 offen sc1")
        A("s_waitcnt vmcnt(0)")
        A(f"v_cmp_eq_u32 {MK}, 1, v5")
        A("s_and_b32 s100, s100, s43")
        A("s_cmp_eq_u32 s100, s43")
        A("s_cbranch_scc1 POLL1_OK")
        A(f"s_sleep {SLP}")
        A("s_add_u32 s98, s98, 1")
        A("s_cmp_lt_u32 s98, 0x80000")
        A("s_cbranch_scc1 POLL1")
        A("POLL1_OK:")
    A("v_mov_b32 v4, 64")
    A("ds_write_b32 v3, v4")
    A("s_branch GO1")
    A("NOPOLL1:")
    A("s_mov_b32 s98, 0")
    A("LW1:")
    A("s_sleep 1")
    A("ds_read_b32 v5, v3")
    A("s_add_u32 s98, s98, 1")
    A("s_cmp_ge_u32 s98, 0x800000")
    A("s_cbranch_scc1 GO1")
    A("s_waitcnt lgkmcnt(0)")
    A("v_readfirstlane_b32 s6, v5")
    A("s_cmp_lg_u32 s6, 64")
    A("s_cbranch_scc1 LW1")
    A("GO1:")
    A("s_waitcnt lgkmcnt(0)")
    stamp(A, 4)
    A(f"s_add_u32 m0, s13, {RING}")
    A("s_nop 0")
    for j in range(4):
        A(f"buffer_load_dwordx4 v1, {WS}, s12 offen offset:{j*1024}{SC}{NTL} lds")
    A(f"s_add_u32 m0, s15, {RING+3*16384}")
    A("s_add_u32 s12, s12, 16384")
    for j in range(2):
        A(f"buffer_load_dwordx4 v1, {WS}, s14 offen offset:{j*1024}{SC}{NTL} lds")
    A(f"s_add_u32 m0, s13, {RING+16384}")
    A("s_nop 0")
    for j in range(4):
        A(f"buffer_load_dwordx4 v1, {WS}, s12 offen offset:{j*1024}{SC}{NTL} lds")

    p2_setup()
    A("P2_JOIN:")

    def rdK(t):
        b = t & 1
        o = (t % 16) * 4096
        return [f"ds_read_b128 {v(KF[b],4)}, v{RB} offset:{o}", f"ds_read_b128 {v(KF[b]+4,4)}, v{RB} offset:{o+1024}"]

    def rdV(t):
        b = t & 1
        o = (t % 16) * 4096 + 2048
        return [f"ds_read_b128 {v(VF[b],4)}, v{RB} offset:{o}", f"ds_read_b128 {v(VF[b]+4,4)}, v{RB} offset:{o+1024}"]

    A("s_cmp_lt_u32 s3, 4")
    A("s_cselect_b64 vcc, -1, 0")
    A("s_waitcnt vmcnt(4)")
    stamp(A, 5)
    A("s_barrier")
    stamp(A, 6)
    A(f"ds_read_b128 {v(Q,4)}, v3 offset:{3*16384}")
    A(f"ds_read_b128 {v(Q+4,4)}, v3 offset:{3*16384+1024}")
    for x in rdK(0) + rdK(1) + rdV(0):
        A(x)
    A("s_mov_b32 s14, 0")
    INC1 = 'noinc1' not in OPT
    st2 = [f"s_add_u32 m0, s13, {2*16384}", "s_nop 0", f"buffer_load_dwordx4 v1, {WS}, s12 offen{SC}{NTL} lds",
           f"buffer_load_dwordx4 v1, {WS}, s12 offen offset:1024{SC}{NTL} lds", "s_add_u32 s12, s12, 16384"]
    if INC1:
        A("s_lshr_b32 s42, s4, 1")
        A("s_lshl_b32 s42, s42, 11")
        A(f"s_add_u32 s42, s42, {F1}")
        A(f"buffer_load_dword v{GA+5}, v{FA}, {WS}, s42 offen sc1")
    else:
        for x in st2:
            A(x)
    A("s_waitcnt lgkmcnt(4)")
    A(mfma32(S[1], KF[0], Q, '0'))
    A(mfma32(S[1], KF[0] + 4, Q + 4, S[1]))
    A("s_nop 7")
    A("s_nop 3")
    s1 = S[1]
    A(f"v_max3_f32 v12, v{s1}, v{s1+1}, v{s1+2}")
    for r in range(3, 15, 2):
        A(f"v_max3_f32 v12, v12, v{s1+r}, v{s1+r+1}")
    A(f"v_max_f32 v12, v12, v{s1+15}")
    A("v_mov_b32 v13, v12")
    A("s_nop 1")
    A("v_permlane32_swap_b32 v12, v13")
    A("v_max_f32 v12, v12, v13")
    for r in range(16):
        A(f"v_sub_f32 v{S[0]+r}, v{s1+r}, v12")
    for r in range(16):
        A(f"v_xor_b32 v{NM+r}, 0x80000000, v12")
    stamp(A, 7)

    vq = [('kv', 1)] * 4 + ([('kv', 2)] * 2 if not INC1 else ['f1'])
    TI = int(os.environ.get('TI', 1))

    def vwait(tag):
        if tag not in vq:
            return "s_nop 0"
        lastp = max(i for i, x in enumerate(vq) if x == tag)
        n_ = len(vq) - 1 - lastp
        del vq[:lastp + 1]
        return f"s_waitcnt vmcnt({n_})"

    def ofr(i):
        return 176 + 4 * i if i < 16 else (64 + 4 * (i - 16) if i < 28 else 240 + 4 * (i - 28))

    def avail(B=A):
        B(f"v_cmp_eq_u32 {MK}, 1, v{GA+5}")
        B("s_lshr_b32 s25, s100, 1")
        B("s_and_b32 s25, s25, s100")
        B("s_lshr_b32 s26, s25, 2")
        if FIXED:
            B("s_and_b32 s29, s25, s26")
            nextbit(B)
        else:
            B("s_and_b32 s25, s25, s26")
            B("s_and_b32 s25, s25, s24")

    FIXED = 'dyn' not in OPT

    def nextbit(B):
        B("s_sub_u32 s25, 0, s24")
        B("s_and_b32 s25, s25, s24")
        B("s_and_b32 s25, s25, s29")

    def pick(r, B=A):
        B("s_ff1_i32_b32 s26, s25")
        B("s_bitset0_b32 s24, s26")
        if FIXED:
            nextbit(B)
        else:
            B("s_bitset0_b32 s25, s26")
        B("s_xor_b32 s26, s26, s61")
        B("s_lshl_b32 s27, s26, 11")
        B("s_add_u32 s27, s27, s60")
        B("s_add_u32 s27, s27, s30")
        B("s_xor_b32 s28, s27, 4096")
        B(f"s_lshl_b32 s{16+r}, s26, 12")

    def oload(r, i):
        return f"buffer_load_dwordx4 {v(ofr(8*r+i),4)}, v1, {WS}, s{27+i//4} offen offset:{(i%4)*1024}{SC}{NT2}"

    def zload(j2):
        vq.append('z')
        return [f"s_mov_b32 s51, {WS_ZT+4096*j2}", f"buffer_load_dword v{ZR+j2}, v{GA+2}, {WS}, s51 offen sc1{NTZ}"]

    fl = f"buffer_load_dword v{GA+5}, v{GA+1}, {WS}, s59 offen sc1"

    def slot_a(T):
        j = (T + 2) // 4 + 2
        if T % 4 == 2 and j <= 15:
            vq.append(('kv', j))
            return [f"s_add_u32 m0, s13, {(j%4)*16384}", "s_nop 0", f"buffer_load_dwordx4 v1, {WS}, s12 offen{SC}{NTL} lds"]
        if T % 4 == 3 and (T + 1) // 4 + 2 <= 15:
            vq.append(('kv', (T + 1) // 4 + 2))
            return [f"buffer_load_dwordx4 v1, {WS}, s12 offen offset:1024{SC}{NTL} lds", "s_add_u32 s12, s12, 16384"]
        if T % 4 == 0 and 4 <= T <= 48:
            vq.append('wo')
            return ["s_mov_b32 m0, s49", "s_add_u32 s49, s49, 8192",
                    f"buffer_load_dwordx4 v{WOA}, s[44:47], s48 offen{NTO} lds", f"s_add_u32 s48, s48, {64*2048}"]
        if T == 49:
            vq.append('cz')
            return [f"buffer_load_dword v{GA+5}, v{FA}, {WS}, s56 offen sc1"]
        if 52 <= T <= 55:
            vq.append('wl')
            return [f"buffer_load_dwordx4 {v(WL+4*(T-52),4)}, v{WOA}, s[44:47], s48 offen",
                    f"s_add_u32 s48, s48, {64*2048}"]
        if T in (56, 57):
            return zload(4 + 2 * (T - 56))
        if T == 58:
            vq.append('f2')
            return [fl]
        if T >= 60:
            vq.append('e')
            return [oload(0, 2 * (T - 60))]
        return []

    def slot_e(T):
        if 2 <= T <= 9:
            G = T - 2
            vq.append('zt')
            return [f"buffer_store_dwordx2 {v(200+2*G,2)}, v216, {WS}, 0 offen offset:{512*G}{SC}{NTZ}"]
        if T in (48, 49):
            i = T - 48
            vq.append('q')
            return [f"buffer_load_dwordx4 {v(QR+4*i,4)}, v{GA+4}, s[52:55], 0 offen offset:{2048*i}{NT}"]
        if 52 <= T <= 55:
            return zload(T - 52)
        if T in (56, 57):
            return zload(5 + 2 * (T - 56))
        if T >= 60:
            vq.append('e')
            return [oload(0, 2 * (T - 60) + 1)] + ([fl] if T == 63 else [])
        return []

    def tile(B, T, grp):
        t = T % 16
        c, n = S[t & 1], S[(t + 1) & 1]
        kb, vp = KF[(t + 1) & 1], VF[(t + 1) & 1]
        do_qk = T < 63
        rk = rdK(t + 2) if T < 62 else []
        rv = rdV(t + 1) if T < 63 else []
        E = lambda r: f"v_exp_f32 v{c+r}, v{c+r}"
        C = lambda r: f"v_cvt_pk_bf16_f32 v{P+r}, v{c+2*r}, v{c+2*r+1}"
        B("s_setprio 0")
        if T in (0, 48, 56):
            stamp2(B, {0: 1, 48: 5, 56: 7}[T])
        B("s_waitcnt lgkmcnt(0)")
        if do_qk:
            B(mfma32(n, kb, Q, NM))
        if T == TI and INC1:
            B(vwait('f1'))
            check_or_poll(B, 'POLL1B', WS, FA, 's42', GA + 5)
            for x in st2:
                B(x)
            vq.extend([('kv', 2)] * 2)
        if T == 52:
            B(vwait('cz'))
            check_or_poll(B, 'POLLZ', WS, FA, 's56', GA + 5)
        if T == 60:
            B(vwait('f2'))
            B("s_movk_i32 s24, 0x1111")
            avail(B)
            B("s_and_b32 s25, s25, s63")
            B("s_cselect_b32 s62, 1, 0")
            B("s_cbranch_scc0 NOE")
            pick(0, B)
            B("NOE:")
        for x in slot_a(T):
            B(x)
        if T > 0:
            B(mfma32(O, vp, P, O if T > 1 else '0'))
            B(mfma32(O, vp + 4, P + 4, O))
        for x in rk:
            B(x)
        if do_qk:
            B(mfma32(n, kb + 4, Q + 4, n))
        for x in rv:
            B(x)
        if T > 0:
            B(SM)
        for x in slot_e(T):
            B(x)
        if T == 13:
            B(vwait('zt'))
        if T == 15:
            setflag(B, 's57', 12)
            vq.append('fl')
        nb = t % 4 == 1 and T + 1 < 62
        if nb:
            w = vwait(('kv', (T + 3) // 4))
            if grp == 'mid':
                w = "s_waitcnt vmcnt(4)"
            B(f"s_cbranch_vccnz SKB_{grp}_{t}")
            B(w)
            B("s_barrier")
            B(f"SKB_{grp}_{t}:")
        for r in range(8):
            B(E(2 * r)); B(E(2 * r + 1))
            if 1 <= r < 7:
                B(C(r - 1))
            if r == 1:
                B("s_setprio 2")
        B(C(6))
        B(C(7))
        if nb:
            B(f"s_cbranch_vccz SKA_{grp}_{t}")
            B(w)
            B("s_barrier")
            B(f"SKA_{grp}_{t}:")

    for T in range(16):
        tile(A, T, 'first')
    stamp2(A, 3)
    A("P2_LOOP:")
    n0 = len(A.ins)
    for T in range(16, 32):
        tile(A, T, 'mid')
    body = [i.text for i in A.ins[n0:]]
    B2 = Asm()
    for T in range(32, 48):
        tile(B2, T, 'mid')
    assert body == [i.text for i in B2.ins]
    A("s_add_u32 s14, s14, 1")
    A("s_cmp_lt_u32 s14, 2")
    A("s_cbranch_scc1 P2_LOOP")
    for T in range(48, 64):
        tile(A, T, 'last')
    A("s_setprio 0")
    A("s_waitcnt lgkmcnt(0)")
    A(mfma32(O, VF[1], P, O))
    A(mfma32(O, VF[1] + 4, P + 4, O))
    A(SM)
    stamp2(A, 9)
    stamp(A, 8)
    srd(A, 52, P_OUT, 8 * MB)
    A(f"s_mov_b32 s50, {L_THR:#x}")
    A("s_lshr_b32 s5, s3, 2")
    A("s_and_b32 s4, s3, 3")
    A("s_nop 0")
    A(f"v_add_f32 v{L}, v{L}, v{L+1}")
    A(f"v_cmp_nge_f32 vcc, s50, v{L}")
    A(f"v_rcp_f32 v12, v{L}")
    A("s_nop 1")
    A("s_cbranch_vccnz P2_SLOW")
    A("P2_FIN:")
    for r in range(16):
        A(f"v_mul_f32 v{O+r}, v{O+r}, v12")
    for r in range(8):
        A(f"v_cvt_pk_bf16_f32 v{OS+r}, v{O+2*r}, v{O+2*r+1}")
    A(f"buffer_store_dwordx4 {v(OS,4)}, v1, {WS}, s15 offen{SC}{NT2}")
    A(f"buffer_store_dwordx4 {v(OS+4,4)}, v1, {WS}, s15 offen offset:1024{SC}{NT2}")

    ACC = 32
    WF = [16, 24]

    def issue3(r):
        pick(r)
        for i in range(8):
            A(oload(r, i))

    A("s_barrier")
    for i in range(4):
        A(f"ds_write_b128 v{GA}, {v(WL+4*i,4)} offset:{8192*i}")
    A("v_lshrrev_b32 v4, 5, v0")
    A("v_bfe_u32 v5, v0, 2, 2")
    A("v_lshl_add_u32 v5, v4, 2, v5")
    A("v_lshlrev_b32 v5, 7, v5")
    A("v_and_b32 v6, 1, v0")
    A("v_lshl_add_u32 v5, v6, 5, v5")
    A("v_bfe_u32 v6, v0, 4, 1")
    A("v_lshl_add_u32 v5, v6, 4, v5")
    A("v_bfe_u32 v6, v0, 1, 1")
    A("v_lshl_add_u32 v5, v6, 3, v5")
    A("v_bfe_u32 v6, v0, 3, 1")
    A("v_xor_b32 v6, s5, v6")
    A("v_lshl_add_u32 v5, v6, 6, v5")
    A("s_lshl_b32 s13, s5, 16")
    A("s_lshl1_add_u32 s13, s30, s13")
    A("v_add_u32 v12, s13, v5")
    A("v_xor_b32 v13, 64, v12")
    A("s_lshl_b32 s13, s3, 12")
    A(f"s_add_u32 s13, s13, {RING+32768}")
    A("v_add_u32 v6, s13, v1")
    A("v_xor_b32 v7, 0x4000, v6")
    A("v_bfe_u32 v8, v0, 1, 2")
    A("v_lshlrev_b32 v4, 1, v4")
    A("v_xor_b32 v8, v8, v4")
    A("v_lshlrev_b32 v8, 4, v8")
    A("v_and_b32 v4, 31, v0")
    A("v_lshl_add_u32 v8, v4, 6, v8")
    A("s_xor_b32 s13, s13, 0x4000")
    A("v_add_u32 v8, s13, v8")
    A("v_xor_b32 v9, 16, v8")
    A("v_bfe_u32 v4, v0, 3, 2")
    A("v_and_b32 v5, 3, v0")
    A("v_xor_b32 v4, v4, v5")
    A("v_lshlrev_b32 v4, 4, v4")
    A("v_lshrrev_b32 v5, 2, v0")
    A("v_lshl_add_u32 v5, v5, 12, v4")
    A("s_lshl_b32 s14, s40, 19")
    A("s_lshl_b32 s13, s4, 17")
    A("s_add_u32 s14, s14, s13")
    A("s_lshl_b32 s13, s41, 7")
    A("s_add_u32 s14, s14, s13")
    A("s_lshl_b32 s13, s5, 6")
    A("s_add_u32 s14, s14, s13")
    A("s_add_u32 s14, s14, 2048")
    A("s_add_u32 s15, s14, 65536")
    A("s_movk_i32 s13, 0x1000")
    A("s_mov_b32 s98, 0")

    PD3 = int(os.environ.get('PD3', 2))
    WF = [16, 24, 152]

    CONT = 'nocont' not in OPT and FIXED

    def reads3(gs):
        step = gs % 8
        b = gs % 3
        return [f"ds_read_b64_tr_b16 {v(WF[b]+4*nt+2*j,2)}, v{(14 if step < 4 else 10)+nt} offset:{(16*(step%4)+8*j)*128}"
                for nt in range(2) for j in range(2)]

    T = 112
    gat = []
    for i in range(2):
        for dw in range(4):
            for hi in range(2):
                zr = ZR + 2 * dw + hi
                gat.append(f"v_and_b32 v{T+hi}, 0xffff0000, v{zr}" if i else f"v_lshlrev_b32 v{T+hi}, 16, v{zr}")
            gat.append(f"v_lshlrev_b32 v{T+2}, 16, v{QR+4*i+dw}")
            gat.append(f"v_and_b32 v{T+3}, 0xffff0000, v{QR+4*i+dw}")
            gat.append(f"v_mul_f32 v{T}, v{T}, v{T+2}")
            gat.append(f"v_mul_f32 v{T+1}, v{T+1}, v{T+3}")
            gat.append(f"v_cvt_pk_bf16_f32 v{QR+4*i+dw}, v{T}, v{T+1}")

    def consume(c, y, first=None, pre_next=True):
        stamp3(A, 5 + c)
        first = (c == 0 or not CONT) if first is None else first
        nxt_ok = CONT and c < 3 and pre_next
        if first:
            A(f"v_add_u32 v14, s{16+c}, v12")
            A(f"v_add_u32 v15, s{16+c}, v13")
        A("v_xor_b32 v10, 0x2000, v14")
        A("v_xor_b32 v11, 0x2000, v15")
        if first:
            for k in range(PD3):
                for x in reads3(8 * c + k):
                    A(x)
        for step in range(8):
            more = step + PD3 < 8 or nxt_ok
            if more:
                for x in reads3(8 * c + step + PD3):
                    A(x)
            if step == 3 and nxt_ok:
                A(f"v_add_u32 v14, s{17+c}, v12")
                A(f"v_add_u32 v15, s{17+c}, v13")
            A((f"s_waitcnt vmcnt({y+7-step}) " if y is not None else "s_waitcnt ") +
              f"lgkmcnt({4*(PD3 if nxt_ok else min(PD3, 7-step))})")
            for nt in range(2):
                A(mfma32(ACC + 16 * nt, WF[(8 * c + step) % 3] + 4 * nt, ofr(8 * c + step),
                         '0' if (c == 0 and step == 0) else ACC + 16 * nt))
                if c == GC:
                    for x in gat[7 * step + 4 * nt:7 * step + 4 + 3 * nt]:
                        A(x)
        if c == GC:
            A(f"buffer_store_dwordx4 {v(QR,4)}, v{GA+3}, s[52:55], 0 offen{OM}")
            A(f"buffer_store_dwordx4 {v(QR+4,4)}, v{GA+3}, s[52:55], s13 offen{OM}")

    if CONT:
        for c in range(4):
            A(f"s_xor_b32 s{16+c}, s61, {4*c}")
            A(f"s_lshl_b32 s{16+c}, s{16+c}, 12")
    A("s_waitcnt vmcnt(2)")
    avail()
    stamp3(A, 2)
    A("s_cmp_eq_u32 s62, 0")
    A("s_cbranch_scc1 P3_W0")
    A("s_cmp_eq_u32 s25, 0")
    A("s_cbranch_scc1 P3_E1")
    issue3(1)
    A("s_mov_b32 s62, 2")
    A("P3_E1:")
    consume(0, None)
    A("s_cmp_eq_u32 s62, 2")
    A("s_cbranch_scc1 P3_E2")
    A("s_waitcnt vmcnt(0)")
    A("P3_E2:")
    A("s_waitcnt vmcnt(8)")
    A("s_barrier")
    setflag(A, 's58', 3)
    stamp(A, 9)
    A("s_cmp_eq_u32 s62, 2")
    A("s_cbranch_scc1 TRY_1_2")
    A("s_branch TRY_1_1")
    A("P3_W0:")
    A("s_waitcnt vmcnt(0) lgkmcnt(0)")
    A("s_barrier")
    setflag(A, 's58', 3)
    stamp(A, 9)

    LK = int(os.environ.get('LK', 2))

    def state(c, n):
        A(f"TRY_{c}_{n}:")
        can = n < 4 and n - c < LK
        if can:
            A("s_cmp_lg_u32 s25, 0")
            A(f"s_cbranch_scc1 ISS_{c}_{n}")
            if c == n:
                A(f"POL_{c}:")
                A(fl)
                A("s_waitcnt vmcnt(0)")
                avail()
                A(f"s_cbranch_scc1 ISS_{c}_{n}")
                A(f"s_sleep {SLP3}")
                A("s_add_u32 s98, s98, 1")
                A("s_cmp_lt_u32 s98, 0x80000")
                A(f"s_cbranch_scc1 POL_{c}")
                A("s_branch P3_RED")
        if c < n:
            y = 8 * (n - 1 - c)
            if n < 4:
                A(fl)
                y += 1
            consume(c, y)
            if n < 4:
                A("s_cmp_lg_u32 s25, 0")
                A(f"s_cbranch_scc1 ISS_{c+1}_{n}")
                A("s_waitcnt vmcnt(0)")
                avail()
            if (c + 1, n) != (4, 4):
                if not (n == 4):
                    A(f"s_branch TRY_{c+1}_{n}")
        if can:
            A(f"ISS_{c}_{n}:")
            issue3(n)
            A(f"s_branch TRY_{c}_{n+1}")

    for n in range(4):
        for c in range(n + 1):
            if n - c <= LK:
                state(c, n)
    for c in range(4):
        if 4 - c <= LK:
            state(c, 4)
    A("P3_RED:")
    stamp3(A, 9)
    A("s_nop 7")
    A("s_nop 3")
    for i in range(4):
        A(f"ds_write_b128 v6, {v(ACC+16+4*i,4)} offset:{1024*i}")
    A("s_waitcnt lgkmcnt(0)")
    A("s_barrier")
    stamp3(A, 10)
    for i in range(4):
        A(f"ds_read_b128 {v(64+4*i,4)}, v7 offset:{1024*i}")
    for i in range(4):
        A(f"s_waitcnt lgkmcnt({3-i})")
        for r in range(4):
            A(f"v_add_f32 v{ACC+4*i+r}, v{ACC+4*i+r}, v{64+4*i+r}")
    for r in range(8):
        A(f"v_cvt_pk_bf16_f32 v{16+r}, v{ACC+2*r}, v{ACC+2*r+1}")
    A("ds_write_b128 v8, v[16:19]")
    A("ds_write_b128 v9, v[20:23]")
    A("ds_read_b128 v[24:27], v7")
    A("ds_read_b128 v[28:31], v7 offset:1024")
    A("s_waitcnt lgkmcnt(1)")
    A(f"buffer_store_dwordx4 v[24:27], v5, s[52:55], s14 offen{OM}")
    A("s_waitcnt lgkmcnt(0)")
    A(f"buffer_store_dwordx4 v[28:31], v5, s[52:55], s15 offen{OM}")
    stamp(A, 11)
    dump_stamps(A, 12, 8)
    A("K_END:")
    A("s_endpgm")

    A("P2_SLOW:")
    A("v_mov_b32 v12, 0xff7fffff")
    A("s_mov_b32 s50, s6")
    A("s_mov_b32 s49, 0")
    A("P2_SLOW1:")
    A(f"buffer_load_dwordx4 {v(KF[0],4)}, v1, {WS}, s50 offen{SC}")
    A(f"buffer_load_dwordx4 {v(KF[0]+4,4)}, v1, {WS}, s50 offen offset:1024{SC}")
    A("s_waitcnt vmcnt(0)")
    A(mfma32(s1, KF[0], Q, '0'))
    A(mfma32(s1, KF[0] + 4, Q + 4, s1))
    A("s_nop 7")
    A("s_nop 3")
    for r in range(0, 16, 2):
        A(f"v_max3_f32 v12, v12, v{s1+r}, v{s1+r+1}")
    A("s_add_u32 s50, s50, 4096")
    A("s_add_u32 s49, s49, 1")
    A("s_cmp_lt_u32 s49, 64")
    A("s_cbranch_scc1 P2_SLOW1")
    A("v_mov_b32 v13, v12")
    A("s_nop 1")
    A("v_permlane32_swap_b32 v12, v13")
    A("v_max_f32 v12, v12, v13")
    for r in range(16):
        A(f"v_xor_b32 v{NM+r}, 0x80000000, v12")
        A(f"v_mov_b32 v{O+r}, 0")
    for r in range(4):
        A(f"v_mov_b32 v{L+r}, 0")
    A("s_mov_b32 s50, s6")
    A("s_mov_b32 s49, 0")
    A("P2_SLOW2:")
    A(f"buffer_load_dwordx4 {v(KF[0],4)}, v1, {WS}, s50 offen{SC}")
    A(f"buffer_load_dwordx4 {v(KF[0]+4,4)}, v1, {WS}, s50 offen offset:1024{SC}")
    A(f"buffer_load_dwordx4 {v(VF[0],4)}, v1, {WS}, s50 offen offset:2048{SC}")
    A(f"buffer_load_dwordx4 {v(VF[0]+4,4)}, v1, {WS}, s50 offen offset:3072{SC}")
    A("s_waitcnt vmcnt(0)")
    A(mfma32(s1, KF[0], Q, NM))
    A(mfma32(s1, KF[0] + 4, Q + 4, s1))
    A("s_nop 7")
    A("s_nop 3")
    for r in range(16):
        A(f"v_exp_f32 v{s1+r}, v{s1+r}")
    A("s_nop 0")
    for r in range(8):
        A(f"v_cvt_pk_bf16_f32 v{P+r}, v{s1+2*r}, v{s1+2*r+1}")
    A("s_nop 1")
    A(mfma32(O, VF[0], P, O))
    A(mfma32(O, VF[0] + 4, P + 4, O))
    A(SM)
    A("s_add_u32 s50, s50, 4096")
    A("s_add_u32 s49, s49, 1")
    A("s_cmp_lt_u32 s49, 64")
    A("s_cbranch_scc1 P2_SLOW2")
    A("s_nop 7")
    A("s_nop 3")
    A(f"v_add_f32 v{L}, v{L}, v{L+1}")
    A(f"v_rcp_f32 v12, v{L}")
    A("s_nop 0")
    A("s_branch P2_FIN")
    A("K_LAST:")
    return kd(NAME, 256, 102)


DOC = """; ---------------------------------------------------------------------------------------------
;           The loaders also compute kv = shift_conv(k)*v and hand it over transposed (ws UT).
;  gap 1    waves 4-7: long causal convolution as block-Toeplitz MFMA (one channel per wave),
;           waves 0-3: publish Q/K/V fragments, wait for the head's producers.
;           waves of a SIMD alternate. The row max of the first key tile is folded into the QK
;           accumulator; a check of the row sum falls back to the exact row max (P2_SLOW).
;  phase 3  output projection (wo staged in LDS during phase 2) and the q gate of part A.
; ---------------------------------------------------------------------------------------------
"""


def build(path):
    hdr = open('concat_heads__ssm_conv_h3__mha_block__prompt.s.ref').read().split('\n')
    hdr = [l for l in hdr if l.startswith(';') and '@launch' not in l]
    A = Asm()
    k = gen(A)
    A.check()
    out = '\n'.join(hdr) + '\n' + f"; @launch grid=(256,1,1) block=(512,1,1) lds={LDS}\n"
    out += DOC + '.amdgcn_target "amdgcn-amd-amdhsa--gfx950"\n.text\n' + A.text()
    out += '.section .rodata,"a"\n' + k
    import subprocess
    open(path, 'w').write(out.replace('CODE_CHUNKS', '0'))
    subprocess.run(['clang', '-x', 'assembler', '-target', 'amdgcn-amd-amdhsa', '-mcpu=gfx950', '-c',
                    path, '-o', '_sz.o'], check=True)
    sz = int([l for l in subprocess.run(['llvm-objdump', '-h', '_sz.o'], capture_output=True,
                                        text=True).stdout.split('\n') if '.text' in l][0].split()[2], 16)
    pad = (-(sz - 256)) % 8192
    chunks = (sz - 256 + pad) // 8192
    out = out.replace('CODE_CHUNKS', str(chunks - 1))
    out = out.replace('K_LAST:\n', f'K_LAST:\n.fill {pad//4+320}, 4, 0xbf810000\n')
    open(path, 'w').write(out)
    print('code bytes', sz, 'chunks', chunks)
    ok = {x: True for x in ('POLLU_OK', 'POLL1_OK', 'POLL1B_OK', 'POLLZ_OK', 'INITP_OK')}
    loop = {'P2_LOOP': lambda c: c < 1, 'P1_LOOP': lambda c: c < 2, 'CONV_LOOP': lambda c: c < 2}
    skb = {f'SKB_{g}_{t}': True for g in ('first', 'mid', 'last') for t in range(16)}
    ska = {f'SKA_{g}_{t}': True for g in ('first', 'mid', 'last') for t in range(16)}
    iss_all = {f'ISS_{c}_{n}': True for c in range(4) for n in range(4)}
    iss_late = {f'ISS_{c}_{c}': True for c in range(4)}
    e2 = {'P3_E2': True, 'TRY_1_2': True}
    A.check_trace(NAME, {**ok, **loop, **skb, **iss_all, **e2}, 'compute init, all ready')
    A.check_trace(NAME, {**ok, **loop, **skb, **iss_late, 'NOINIT': True, 'P1_COMPUTE': True, 'NOPOLL1': True,
                         'NOE': True, 'P3_W0': True}, 'compute one by one')
    A.check_trace(NAME, {**ok, **loop, **ska, 'P1_LOADER': True, 'NOUT': True, 'NOSIGU': True, 'NOE': True, 'P3_W0': True,
                         'ISS_0_0': True, 'ISS_0_1': True, 'ISS_2_2': True, 'ISS_2_3': True}, 'loader late, 2+2')
    A.check_trace(NAME, {**ok, **loop, **ska, 'P1_LOADER': True, 'U_EARLY': True, 'P3_E1': True, 'ISS_1_1': True,
                         'ISS_1_2': True, 'ISS_3_3': True}, 'loader early')
    A.check_trace(NAME, {**ok, **loop, **ska, **iss_all, **e2, 'P1_LOADER': True, 'P2_SLOW': True,
                         'P2_SLOW1': lambda c: c < 2, 'P2_SLOW2': lambda c: c < 2}, 'slow')
    return A


if __name__ == '__main__':
    build(sys.argv[1] if len(sys.argv) > 1 else 'f.s')
```
